```python
import torch

def _softmax(x, axis=-1):
    return torch.softmax(x, dim=axis)
def _gelu(x):
    return torch.nn.functional.gelu(x, approximate="tanh")
def _silu(x):
    return torch.nn.functional.silu(x)
def _sigmoid(x):
    return torch.sigmoid(x)
def _layernorm(x, axis=-1, eps=1e-5):
    m = x.mean(dim=axis, keepdim=True)
    v = x.var(dim=axis, keepdim=True, unbiased=False)
    return (x - m) / torch.sqrt(v + eps)
def _scatter_add(tgt, idx, src, axis=0):
    return tgt.clone().index_add_(axis, idx, src)
def _segment_sum(src, seg, n):
    out = torch.zeros((n,) + src.shape[1:], dtype=src.dtype)
    return out.index_add_(0, seg, src)
def _pad(x, pw):
    flat = tuple(v for pair in reversed(pw) for v in pair)
    return torch.nn.functional.pad(x, flat)

kernel_name = 'sequential_preLN__gqa_block_cached__geglu_ffn__decode'

def setup_inputs():

    _w = (lambda a: (lambda t: t.to(torch.bfloat16) if t.is_floating_point() else t)(torch.as_tensor(a)))
    def _A_setup():
        B, Sq, D = 2, 1, 448
        Hq, Hkv, Sk, Dh = 16, 8, 8192, 256
        assert Hq % Hkv == 0, (Hq, Hkv)
        return {
            "x": _w((lambda *s: torch.randn(*s, dtype=torch.bfloat16) * 0.05)(B, Sq, D)),
            "k_cache": _w((lambda *s: torch.randn(*s, dtype=torch.bfloat16) * 3.2)(B, Hkv, Sk, Dh)),
            "v_cache": _w((lambda *s: torch.randn(*s, dtype=torch.bfloat16) * 0.4)(B, Hkv, Sk, Dh)),
            "wq": _w((lambda *s: torch.randn(*s, dtype=torch.bfloat16) * 3.2)(D, Hq * Dh) * (D ** -0.5)),
            "wo": _w((lambda *s: torch.randn(*s, dtype=torch.bfloat16) * 0.4)(Hq * Dh, D) * ((Hq * Dh) ** -0.5)),
        }
    _A_in = _A_setup()

    def _B_setup():
        B, S, D, F = 2, 1, 448, 1792
        return {
            "x": _w((lambda *s: torch.randn(*s, dtype=torch.bfloat16) * 0.05)(B, S, D)),
            "w_gate": _w((lambda *s: torch.randn(*s, dtype=torch.bfloat16) * 0.05)(D, F)),
            "w_up": _w((lambda *s: torch.randn(*s, dtype=torch.bfloat16) * 0.05)(D, F)),
            "w_down": _w((lambda *s: torch.randn(*s, dtype=torch.bfloat16) * 0.05)(F, D)),
        }
    _B_in = _B_setup()

    return {
        "A_x": _A_in["x"],
        "A_k_cache": _A_in["k_cache"],
        "A_v_cache": _A_in["v_cache"],
        "A_wq": _A_in["wq"],
        "A_wo": _A_in["wo"],
        "B_x": _B_in["x"],
        "B_w_gate": _B_in["w_gate"],
        "B_w_up": _B_in["w_up"],
        "B_w_down": _B_in["w_down"],
    }

def reference(A_x, A_k_cache, A_v_cache, A_wq, A_wo, B_x, B_w_gate, B_w_up, B_w_down):
    def _A_ref(x, k_cache, v_cache, wq, wo):
        B, Sq, D = x.shape
        Hq, Dh = 16, 256
        Hkv = k_cache.shape[1]
        rep = Hq // Hkv
        q = (lambda x, *d: x.permute(*d))((x @ wq).reshape(B, Sq, Hq, Dh), 0, 2, 1, 3)
        k = (lambda x, n, axis: torch.repeat_interleave(x, n, dim=axis))(k_cache, rep, axis=1)
        v = (lambda x, n, axis: torch.repeat_interleave(x, n, dim=axis))(v_cache, rep, axis=1)
        scores = torch.einsum("bhqd,bhkd->bhqk", q, k) * (Dh ** -0.5)
        p = _softmax(scores, axis=-1)
        o = torch.einsum("bhqk,bhkd->bhqd", p, v)
        return (lambda x, *d: x.permute(*d))(o, 0, 2, 1, 3).reshape(B, Sq, Hq * Dh) @ wo

    def _B_ref(x, w_gate, w_up, w_down):
        return (_gelu(x @ w_gate) * (x @ w_up)) @ w_down

    x = A_x
    h = x + _A_ref(_layernorm(x, axis=-1), A_k_cache, A_v_cache, A_wq, A_wo)
    h2 = h + _B_ref(_layernorm(h, axis=-1), B_w_gate, B_w_up, B_w_down)
    return h2
```

```python
import sys, math
NAME = "sequential_preLN__gqa_block_cached__geglu_ffn__decode"

HEADER = open("cdna_kernels/%s.s.ref" % NAME).read().split("; Override launch")[0]

WS_E = 0
WS_Q = 0x1000
WS_ML = 0x9000
WS_AP = 0xA000
WS_OP = 0x20000
WS_FP = 0xA0000
WS_END = 0x110000
STAMP_OFF = 128 << 20
RING = 8
MISC = RING * 16384
L_WQ = 0; L_LN = 14336; L_Q = 16128; L_P = 17152; L_O = 19200; L_H = 19712; L_ONES = 20608
L_RED = 20736; L_STAT = 22784; L_LSUM = 22848; L_MX = 22976; L_W = 22992
L_LAND = 23056; L_QF = 23060; L_C1 = 23064; L_C2 = 23068; L_WF = 23072; L_C3 = 23076
L_PROG = 23088
LDS_TOTAL = MISC + 23104
TAGM = 0x3ff
SPIN = 1 << 17

def f32(x):
    import struct
    return "0x%08x" % struct.unpack("<I", struct.pack("<f", x))[0]

class Gen:
    def __init__(self, stamps=False, win=48):
        self.L = []
        self.uid = 0
        self.stamps = stamps
        self.win = win
        self.st_used = []
    def __call__(self, s):
        for line in s.split("\n"):
            line = line.strip()
            if line: self.L.append(("" if line.endswith(":") else "    ") + line)
    def lab(self, p="L"):
        self.uid += 1
        return "%s_%d" % (p, self.uid)
    def nop(self, n):
        while n > 0:
            k = min(n, 16); self("s_nop %d" % (k - 1)); n -= k
    def stamp(self, idx):
        if not self.stamps: return
        self("s_memrealtime s[%d:%d]" % (64 + 2 * (idx % 16), 65 + 2 * (idx % 16)))
        self("s_waitcnt lgkmcnt(0)")
    def stamp_flush(self, idxs):
        if not self.stamps: return
        self("s_mov_b64 exec, 1")
        self("s_mul_i32 s60, s2, 256")
        self("s_add_u32 s60, s60, %d" % STAMP_OFF)
        self("v_mov_b32 v127, s60")
        for idx in idxs:
            self("v_mov_b32 v120, s%d\nv_mov_b32 v121, s%d" % (64 + 2 * (idx % 16), 65 + 2 * (idx % 16)))
            self("global_store_dwordx2 v127, v[120:121], s[26:27] offset:%d" % (idx * 8))
            self("s_nop 1")
    def lds_wait_ge(self, off, sreg, target, vt, cached=True):
        d = self.lab("Lw"); l = self.lab("Lw")
        if cached:
            self("s_cmp_ge_u32 s%d, %s" % (sreg, target))
            self("s_cbranch_scc1 %s" % d)
        self("%s:" % l)
        self("ds_read_b32 v%d, v%d offset:%d" % (vt, V_MISC, off))
        self("s_waitcnt lgkmcnt(0)")
        self("v_readfirstlane_b32 s%d, v%d" % (sreg, vt))
        self("s_cmp_ge_u32 s%d, %s" % (sreg, target))
        self("s_cbranch_scc1 %s" % d)
        self("s_sleep 1")
        self("s_sub_u32 s99, s99, 1")
        self("s_cbranch_scc0 %s" % l)
        self("s_mov_b32 s99, 0")
        self("%s:" % d)
    def lds_signal_add(self, off, vt):
        self("s_mov_b64 exec, 1")
        self("v_mov_b32 v%d, 1" % vt)
        self("ds_add_u32 v%d, v%d offset:%d" % (V_MISC, vt, off))
        self("s_mov_b64 exec, -1")
    def gather(self, vaddr, offs, vd, vt, soff="0"):
        l = self.lab("Lg"); d = self.lab("Lg")
        self("s_mov_b32 s58, 0")
        self("%s:" % l)
        for i, o in enumerate(offs):
            va, oo = (vaddr, o) if not isinstance(o, tuple) else o
            self("buffer_load_dwordx4 v[%d:%d], v%d, s[52:55], %s offen offset:%d sc1" % (vd + 4 * i, vd + 4 * i + 3, va, soff, oo))
        for i in range(len(offs)):
            self("s_waitcnt vmcnt(%d)" % (len(offs) - 1 - i))
            for k in range(4):
                self("v_xor_b32 v%d, s%d, v%d" % (vd + 4 * i + k, 28 + k, vd + 4 * i + k))
            if i == 0:
                self("v_or3_b32 v%d, v%d, v%d, v%d" % (vt, vd, vd + 1, vd + 2))
                self("v_or_b32 v%d, v%d, v%d" % (vt, vt, vd + 3))
            else:
                self("v_or3_b32 v%d, v%d, v%d, v%d" % (vt, vt, vd + 4 * i, vd + 4 * i + 1))
                self("v_or3_b32 v%d, v%d, v%d, v%d" % (vt, vt, vd + 4 * i + 2, vd + 4 * i + 3))
        self("v_and_b32 v%d, %d, v%d" % (vt, TAGM, vt))
        self("v_cmp_ne_u32 vcc, 0, v%d" % vt)
        self("s_cbranch_vccz %s" % d)
        self("s_sleep 2")
        self("s_add_u32 s58, s58, 1")
        self("s_cmp_lt_u32 s58, %d" % SPIN)
        self("s_cbranch_scc1 %s" % l)
        self("%s:" % d)
    def tag4(self, vs, vd):
        for k in range(4):
            self("v_and_or_b32 v%d, v%d, s59, v%d" % (vd + k, vs + k, V_TAG + k))
    def swapreduce(self, v):
        self.nop(2)
        self("v_permlane16_swap_b32 v%d, v%d" % (v, v + 1))
        self("v_permlane16_swap_b32 v%d, v%d" % (v + 2, v + 3))
        self.nop(1)
        self("v_add_f32 v%d, v%d, v%d" % (v, v, v + 1))
        self("v_add_f32 v%d, v%d, v%d" % (v + 2, v + 2, v + 3))
        self.nop(2)
        self("v_permlane32_swap_b32 v%d, v%d" % (v, v + 2))
        self.nop(1)
        self("v_add_f32 v%d, v%d, v%d" % (v, v, v + 2))

V_LANE = 0; V_G = 1; V_N = 2; V_MISC = 3; V_TAG = 4
DPP = "row_mask:0xf bank_mask:0xf"

def build(stamps=False, win=48):
    A = Gen(stamps, win)
    A.L.append(HEADER.rstrip())
    A.L.append("; @launch grid=(256,1,1) block=(512,1,1) lds=%d" % LDS_TOTAL)
    A.L.append('.amdgcn_target "amdgcn-amd-amdhsa--gfx950"')
    A.L.append(".text\n.globl %s_kernel\n.p2align 8\n.type %s_kernel,@function\n%s_kernel:" % (NAME, NAME, NAME))
    A("s_cmp_ge_u32 s2, 256\ns_cbranch_scc1 L_end")
    A("s_load_dwordx16 s[4:19], s[0:1], 0\ns_load_dwordx8 s[20:27], s[0:1], 64")
    A.stamp(0)
    A("v_lshrrev_b32 v1, 6, v0\nv_and_b32 v0, 63, v0\nv_readfirstlane_b32 s3, v1")
    A("s_and_b32 s32, s2, 15\ns_lshr_b32 s33, s2, 4\ns_lshr_b32 s34, s32, 3\ns_and_b32 s35, s32, 7")
    A("v_mov_b32 v%d, %d\ns_mov_b32 s99, %d" % (V_MISC, MISC, 1 << 20))
    A("s_cmp_lg_u32 s3, 1\ns_cbranch_scc1 L_notloader")
    A("s_setprio 3")
    A("v_lshrrev_b32 v1, 5, v0\nv_and_b32 v2, 31, v0\nv_xor_b32 v4, v2, v1\nv_lshlrev_b32 v4, 4, v4\nv_lshl_or_b32 v8, v1, 9, v4")
    for j in range(1, 8):
        A("v_xor_b32 v%d, %d, v8" % (8 + j, 32 * j))
    A("s_lshl_b32 s44, s32, 22\ns_lshl_b32 s45, s33, 18\ns_add_u32 s44, s44, s45")
    A("s_mov_b32 s45, s44")
    A("s_mov_b32 s46, 0")
    A("s_mov_b32 s47, 0")
    A("s_mov_b32 s48, 0")
    A("s_mov_b32 s49, 1024")
    A("s_mov_b32 s50, 3")
    A("s_mov_b32 m0, 0")
    A("s_cmp_lt_u32 s33, 14\ns_cselect_b32 s51, 37, 32")
    A("s_mov_b32 s38, 0x4000000\ns_mov_b32 s39, 0x20000")
    A("s_waitcnt lgkmcnt(0)")
    A("s_mov_b32 s36, s6\ns_mov_b32 s37, s7")
    W = win
    assert W % 16 == 0
    lag = W // 16 - 1
    A("L_slot:")
    A("s_add_u32 s56, s47, %d\ns_cmp_lt_u32 s46, s56\ns_cbranch_scc0 L_waitfree" % RING)
    A("L_go:")
    A("s_waitcnt vmcnt(%d)" % (W - 8))
    for j in range(16):
        if j == 8:
            A("s_waitcnt vmcnt(%d)" % (W - 8))
            A("s_sub_i32 s56, s46, %d\ns_max_i32 s48, s48, s56\nv_mov_b32 v20, s48" % lag)
            A("ds_write_b32 v%d, v20 offset:%d" % (V_MISC, L_LAND))
        A("buffer_load_dwordx4 v%d, s[36:39], s45 offen nt lds" % (8 + j % 8))
        A("s_add_u32 m0, m0, 1024\ns_add_u32 s45, s45, s49")
    A("s_and_b32 m0, m0, %d" % (MISC - 1))
    A("s_add_u32 s46, s46, 1\ns_cmp_lg_u32 s46, s50\ns_cbranch_scc1 L_slot")
    A("s_cmp_lg_u32 s46, 3\ns_cbranch_scc1 L_ev16")
    A("s_barrier\ns_mov_b32 s50, 16\ns_branch L_slot")
    A("L_ev16:\ns_cmp_lg_u32 s46, 16\ns_cbranch_scc1 L_ev32")
    A.stamp(1)
    A("v_lshlrev_b32 v4, 1, v1\nv_xor_b32 v4, v2, v4\nv_lshlrev_b32 v4, 4, v4\nv_lshl_or_b32 v8, v1, 9, v4")
    for j in range(1, 8):
        A("v_xor_b32 v%d, %d, v8" % (8 + j, 64 * (j & 3)))
    A("s_mov_b32 s36, s8\ns_mov_b32 s37, s9\ns_mov_b32 s45, s44\ns_mov_b32 s50, 32\ns_branch L_slot")
    A("L_ev32:\ns_cmp_eq_u32 s46, s51\ns_cbranch_scc1 L_ldone")
    A("s_cmp_lg_u32 s46, 32\ns_cbranch_scc1 L_ev34")
    A.stamp(2)
    A("s_cmp_ge_u32 s33, 7\ns_cselect_b32 s56, 1, 0\ns_cselect_b32 s57, 7, 0")
    A("s_lshl_b32 s45, s35, 1\ns_add_u32 s45, s45, s56\ns_mul_i32 s45, s45, %d" % (256 * 896))
    A("s_sub_u32 s57, s33, s57\ns_lshl_b32 s57, s57, 7\ns_add_u32 s45, s45, s57")
    A("v_lshrrev_b32 v4, 3, v0\nv_mul_u32_u24 v4, 896, v4\nv_and_b32 v5, 7, v0\nv_lshrrev_b32 v6, 3, v0\nv_and_b32 v6, 6, v6\nv_xor_b32 v5, v5, v6\nv_lshl_add_u32 v8, v5, 4, v4")
    A("s_mov_b32 s36, s12\ns_mov_b32 s37, s13\ns_mov_b32 s38, %d\ns_mov_b32 s49, 7168\ns_mov_b32 s50, 34" % (4096 * 896))
    A("s_branch L_bcast")
    A("L_ev34:\ns_cmp_lg_u32 s46, 34\ns_cbranch_scc1 L_ev35")
    A("s_mul_i32 s57, s35, 14\ns_add_u32 s57, s57, s33")
    A("s_lshl_b32 s45, s57, 5")
    A("v_lshrrev_b32 v4, 1, v0\nv_mul_u32_u24 v4, 3584, v4\nv_and_b32 v5, 1, v0\nv_lshl_add_u32 v8, v5, 4, v4")
    A("s_mov_b32 s36, s16\ns_mov_b32 s37, s17\ns_mov_b32 s38, %d\ns_mov_b32 s49, %d\ns_mov_b32 s50, 35" % (448 * 3584, 32 * 3584))
    A("s_branch L_bcast")
    A("L_ev35:\ns_cmp_lg_u32 s46, 35\ns_cbranch_scc1 L_ev36")
    A("s_lshl_b32 s45, s57, 5\ns_mov_b32 s36, s18\ns_mov_b32 s37, s19\ns_mov_b32 s50, 36\ns_branch L_slot")
    A("L_ev36:")
    A("s_mul_i32 s45, s57, 14336\ns_add_u32 s38, s45, 14336\nv_lshlrev_b32 v8, 4, v0")
    A("s_mov_b32 s36, s20\ns_mov_b32 s37, s21\ns_mov_b32 s49, 1024\ns_mov_b32 s50, 37")
    A("L_bcast:")
    for j in range(1, 8):
        A("v_mov_b32 v%d, v8" % (8 + j))
    A("s_branch L_slot")
    A("L_ldone:")
    A.stamp(3)
    for k in range(lag, -1, -1):
        A("s_waitcnt vmcnt(%d)" % (16 * k))
        A("s_sub_i32 s56, s46, %d\ns_max_i32 s48, s48, s56\nv_mov_b32 v20, s48" % k)
        A("ds_write_b32 v%d, v20 offset:%d" % (V_MISC, L_LAND))
    A.stamp(4)
    A.stamp_flush([0, 1, 2, 3, 4])
    A("s_endpgm")
    A("L_waitfree:")
    def prog_check():
        A("ds_read_b128 v[20:23], v%d offset:%d\ns_waitcnt lgkmcnt(0)" % (V_MISC, L_PROG))
        A("v_min3_u32 v20, v20, v21, v22\nv_min_u32 v20, v20, v23\ns_nop 0\nv_readfirstlane_b32 s47, v20")
        A("s_add_u32 s56, s47, %d\ns_cmp_lt_u32 s46, s56\ns_cbranch_scc1 L_go" % RING)
    for k in range(lag, -1, -1):
        prog_check()
        A("s_waitcnt vmcnt(%d)" % (16 * k))
        A("s_sub_i32 s56, s46, %d\ns_max_i32 s48, s48, s56\nv_mov_b32 v20, s48" % k)
        A("ds_write_b32 v%d, v20 offset:%d" % (V_MISC, L_LAND))
    A("L_wf2:")
    prog_check()
    A("s_sleep 1\ns_sub_u32 s99, s99, 1\ns_cbranch_scc0 L_wf2\ns_mov_b32 s99, 0\ns_branch L_go")

    A("L_notloader:")
    A("v_lshrrev_b32 v%d, 4, v0\nv_and_b32 v%d, 15, v0" % (V_G, V_N))
    A("s_waitcnt lgkmcnt(0)")
    A("s_load_dwordx4 s[28:31], s[26:27], %d" % WS_E)
    A("s_mov_b32 s52, s26\ns_mov_b32 s53, s27\ns_mov_b32 s54, %d\ns_mov_b32 s55, 0x20000" % WS_END)
    A("s_mov_b32 s59, %d" % (0xffffffff & ~TAGM))
    A("s_mov_b32 s40, s4\ns_mov_b32 s41, s5\ns_mov_b32 s42, 1792\ns_mov_b32 s43, 0x20000")
    A("s_cmp_lg_u32 s3, 0\ns_cbranch_scc1 L_notw0")
    A("v_lshrrev_b32 v8, 5, v0\nv_and_b32 v9, 31, v0\nv_mul_u32_u24 v10, 896, v8\nv_lshl_add_u32 v10, v9, 4, v10")
    A("v_cmp_gt_u32 vcc, 28, v9\nv_mov_b32 v11, 0x1000\ns_nop 0\nv_cndmask_b32 v11, v11, v10, vcc")
    A("buffer_load_dwordx4 v[16:19], v11, s[40:43], 0 offen\nbuffer_load_dwordx4 v[20:23], v11, s[40:43], 0 offen offset:448")
    A("s_mov_b32 s36, s10\ns_mov_b32 s37, s11\ns_mov_b32 s38, %d\ns_mov_b32 s39, 0x20000" % (448 * 8192))
    A("s_lshl_b32 s44, s34, 4\ns_add_u32 s44, s44, s33\ns_lshl_b32 s44, s44, 4\ns_lshl_b32 s45, s35, 9\ns_add_u32 s44, s44, s45")
    A("s_lshl_b32 s45, s44, 1")
    A("v_lshrrev_b32 v12, 1, v0\nv_lshlrev_b32 v12, 13, v12\nv_and_b32 v13, 1, v0\nv_lshl_add_u32 v12, v13, 4, v12")
    A("s_mov_b32 m0, %d\ns_mov_b32 s46, 0" % (MISC + L_WQ))
    A("L_wq:")
    A("buffer_load_dwordx4 v12, s[36:39], s45 offen nt lds")
    A("s_add_u32 m0, m0, 1024\ns_add_u32 s45, s45, 0x40000\ns_add_u32 s46, s46, 1\ns_cmp_lt_u32 s46, 14\ns_cbranch_scc1 L_wq")
    A("L_notw0:")
    A("s_sub_u32 s61, s3, 4\ns_add_u32 s56, s3, 3\ns_cmp_lt_u32 s3, 4\ns_cselect_b32 s61, s56, s61\ns_cmp_eq_u32 s3, 0\ns_cselect_b32 s61, 4, s61")
    A("s_lshl_b32 s56, s61, 7\ns_mul_i32 s57, s34, 896\ns_add_u32 s56, s56, s57")
    A("v_lshlrev_b32 v124, 3, v%d\nv_lshl_add_u32 v124, v%d, 1, v124\nv_mov_b32 v126, 0" % (V_N, V_G))
    A("buffer_load_short_d16_hi v126, v124, s[40:43], s56 offen")
    A("s_cmp_lg_u32 s3, 3\ns_cbranch_scc1 L_noinit")
    A("v_mov_b32 v8, 0\nv_lshl_add_u32 v9, v0, 2, v%d" % V_MISC)
    A("ds_write_b32 v9, v8 offset:%d" % (L_RED + 7 * 256))
    A("s_mov_b64 exec, 0xffffffff\nv_mov_b32 v10, 0x3f803f80\nds_write_b32 v9, v10 offset:%d" % L_ONES)
    A("s_mov_b64 exec, 0xff\nds_write_b32 v9, v8 offset:%d" % L_LAND)
    A("s_mov_b64 exec, 0xf\nds_write_b32 v9, v0 offset:%d" % L_PROG)
    A("s_mov_b64 exec, 0x3\nds_write_b32 v9, v8 offset:%d\nv_mov_b32 v10, 0xff800000\nds_write_b32 v9, v10 offset:%d" % (L_STAT + 56, L_MX))
    A("s_mov_b64 exec, -1")
    A("L_noinit:")
    A("s_waitcnt lgkmcnt(0)")
    for k in range(4):
        A("s_add_u32 s%d, s%d, 1\ns_and_b32 s%d, s%d, %d\nv_mov_b32 v%d, s%d" % (28 + k, 28 + k, 28 + k, 28 + k, TAGM, V_TAG + k, 28 + k))
    A("s_mov_b32 s48, 0")
    A("s_barrier")
    A("s_cmp_ge_u32 s3, 4\ns_cbranch_scc1 L_cons")
    A("s_cmp_eq_u32 s3, 2\ns_cbranch_scc1 L_w2")
    A("s_cmp_eq_u32 s3, 3\ns_cbranch_scc1 L_ffn")
    A("s_waitcnt vmcnt(15)")
    A.stamp(5)
    X = 24
    for i in range(8):
        A("v_lshlrev_b32 v%d, 16, v%d\nv_and_b32 v%d, 0xffff0000, v%d" % (X + 2 * i, 16 + i, X + 2 * i + 1, 16 + i))
    A("v_add_f32 v40, v%d, v%d\nv_mul_f32 v41, v%d, v%d\nv_fmac_f32 v41, v%d, v%d" % (X, X + 1, X, X, X + 1, X + 1))
    for i in range(2, 16):
        A("v_add_f32 v40, v40, v%d\nv_fmac_f32 v41, v%d, v%d" % (X + i, X + i, X + i))
    for r in (1, 2, 4, 8):
        A.nop(1)
        A("v_add_f32_dpp v40, v40, v40 row_ror:%d %s" % (r, DPP))
        A("v_add_f32_dpp v41, v41, v41 row_ror:%d %s" % (r, DPP))
    A("v_mov_b32 v42, v40\nv_mov_b32 v43, v41")
    A.nop(2)
    A("v_permlane16_swap_b32 v40, v42\nv_permlane16_swap_b32 v41, v43")
    A.nop(1)
    A("v_add_f32 v40, v40, v42\nv_add_f32 v41, v41, v43")
    def ln_stats(vs, vq, vm, vr, t):
        A("v_mul_f32 v%d, %s, v%d\nv_mul_f32 v%d, %s, v%d" % (vs, f32(1.0 / 448), vs, vq, f32(1.0 / 448), vq))
        A("v_fma_f32 v%d, -v%d, v%d, v%d\nv_max_f32 v%d, 0, v%d" % (vq, vs, vs, vq, vq, vq))
        A("v_cvt_pk_bf16_f32 v%d, v%d, v%d" % (t, vs, vq))
        A("v_and_b32 v%d, 0xffff0000, v%d\nv_lshlrev_b32 v%d, 16, v%d" % (vq, t, vm, t))
        A("v_add_f32 v%d, %s, v%d\nv_cvt_pk_bf16_f32 v%d, v%d, v%d\nv_lshlrev_b32 v%d, 16, v%d" % (vq, f32(1e-5), vq, t, vq, vq, vq, t))
        A("v_sqrt_f32 v%d, v%d\ns_nop 0\nv_cvt_pk_bf16_f32 v%d, v%d, v%d\nv_lshlrev_b32 v%d, 16, v%d" % (vq, vq, t, vq, vq, vq, t))
        A("v_rcp_f32 v%d, v%d\ns_nop 0" % (vr, vq))
    ln_stats(40, 41, 42, 43, 44)
    for i in range(8):
        a, b = X + 2 * i, X + 2 * i + 1
        A("v_sub_f32 v%d, v%d, v42\nv_sub_f32 v%d, v%d, v42\nv_cvt_pk_bf16_f32 v44, v%d, v%d" % (a, a, b, b, a, b))
        A("v_lshlrev_b32 v%d, 16, v44\nv_and_b32 v%d, 0xffff0000, v44" % (a, b))
        A("v_mul_f32 v%d, v%d, v43\nv_mul_f32 v%d, v%d, v43\nv_cvt_pk_bf16_f32 v%d, v%d, v%d" % (a, a, b, b, 16 + i, a, b))
    A("v_add_u32 v10, v%d, v10" % V_MISC)
    A("s_mov_b32 s56, 0x0fffffff\ns_mov_b32 s57, s56\ns_mov_b64 exec, s[56:57]")
    A("ds_write_b128 v10, v[16:19] offset:%d\nds_write_b128 v10, v[20:23] offset:%d" % (L_LN, L_LN + 448))
    A("s_mov_b64 exec, -1")
    A("v_and_b32 v8, 1, v%d\nv_mul_u32_u24 v8, 896, v8\nv_lshl_add_u32 v8, v%d, 4, v8\nv_add_u32 v8, v%d, v8" % (V_N, V_G, V_MISC))
    BQ = 12; AQ = 68
    for kk in range(14):
        A("ds_read_b128 v[%d:%d], v8 offset:%d" % (BQ + 4 * kk, BQ + 4 * kk + 3, L_LN + kk * 64))
    A("v_lshrrev_b32 v9, 2, v%d\nv_lshl_add_u32 v9, v%d, 3, v9\nv_lshlrev_b32 v9, 5, v9\nv_and_b32 v10, 3, v0\nv_lshl_add_u32 v9, v10, 3, v9\nv_add_u32 v9, v%d, v9" % (V_N, V_G, V_MISC))
    A("s_waitcnt vmcnt(0)")
    A.stamp(6)
    for kk in range(14):
        A("ds_read_b64_tr_b16 v[%d:%d], v9 offset:%d" % (AQ + 4 * kk, AQ + 4 * kk + 1, L_WQ + kk * 1024))
        A("ds_read_b64_tr_b16 v[%d:%d], v9 offset:%d" % (AQ + 4 * kk + 2, AQ + 4 * kk + 3, L_WQ + kk * 1024 + 128))
    A("s_waitcnt lgkmcnt(0)")
    for kk in range(14):
        A("v_mfma_f32_16x16x32_bf16 v[8:11], v[%d:%d], v[%d:%d], %s" % (AQ + 4 * kk, AQ + 4 * kk + 3, BQ + 4 * kk, BQ + 4 * kk + 3, "0" if kk == 0 else "v[8:11]"))
    A("v_and_b32 v16, 1, v%d\nv_lshlrev_b32 v16, 14, v16\nv_lshl_add_u32 v16, v%d, 4, v16" % (V_N, V_G))
    A("s_lshl_b32 s45, s44, 2\ns_add_u32 s45, s45, %d" % WS_Q)
    A.nop(5)
    A("v_cvt_pk_bf16_f32 v12, v8, v9\nv_cvt_pk_bf16_f32 v13, v10, v11")
    A("v_lshl_or_b32 v8, v12, 16, v%d\nv_and_b32 v9, 0xffff0000, v12\nv_or_b32 v9, v9, v%d" % (V_TAG, V_TAG + 1))
    A("v_lshl_or_b32 v10, v13, 16, v%d\nv_and_b32 v11, 0xffff0000, v13\nv_or_b32 v11, v11, v%d" % (V_TAG + 2, V_TAG + 3))
    A("s_mov_b32 s56, 0x00030003\ns_mov_b32 s57, s56\ns_mov_b64 exec, s[56:57]")
    A("buffer_store_dwordx4 v[8:11], v16, s[52:55], s45 offen sc1")
    A("s_mov_b64 exec, -1")
    A.stamp(7)
    A("s_lshl_b32 s45, s34, 14\ns_lshl_b32 s46, s35, 11\ns_add_u32 s45, s45, s46\ns_add_u32 s45, s45, %d" % WS_Q)
    A("v_lshlrev_b32 v16, 4, v0")
    A.gather(16, [0, 1024], 20, 17, soff="s45")
    A("s_mov_b32 s56, 0x07060302")
    for i in range(4):
        A("v_perm_b32 v%d, v%d, v%d, s56" % (28 + i, 21 + 2 * i, 20 + 2 * i))
    A("v_lshl_add_u32 v16, v0, 3, v%d" % V_MISC)
    A("ds_write_b64 v16, v[28:29] offset:%d\nds_write_b64 v16, v[30:31] offset:%d" % (L_Q, L_Q + 512))
    A.lds_signal_add(L_QF, 17)
    A.stamp(8)
    A.stamp_flush([5, 6, 7, 8])
    A("s_mov_b64 exec, -1")
    A("s_branch L_ffn")

    A("L_w2:")
    A("s_mov_b32 s47, 0")
    A.lds_wait_ge(L_C2, 47, "4", 8, cached=False)
    A("v_and_b32 v9, 31, v0\nv_lshl_add_u32 v9, v9, 2, v%d" % V_MISC)
    A("ds_read_b32 v10, v9 offset:%d\nds_read_b64 v[12:13], v%d offset:%d\ns_waitcnt lgkmcnt(0)" % (L_LSUM, V_MISC, L_MX))
    for r in (1, 2, 4, 8):
        A("v_add_f32_dpp v10, v10, v10 row_ror:%d %s" % (r, DPP))
        A.nop(2)
    A("v_readlane_b32 s56, v10, 0\nv_readlane_b32 s57, v10, 16")
    A.nop(2)
    A("v_mov_b32 v14, s56\nv_mov_b32 v15, s57")
    A.tag4(12, 12)
    A("s_lshl_b32 s45, s32, 8\ns_add_u32 s45, s45, %d\ns_lshl_b32 s46, s33, 4\nv_mov_b32 v9, s46" % WS_ML)
    A("s_mov_b64 exec, 1\nbuffer_store_dwordx4 v[12:15], v9, s[52:55], s45 offen sc1\ns_mov_b64 exec, -1")
    A("s_cmp_ge_u32 s33, 14\ns_cbranch_scc1 L_end")
    A("v_lshlrev_b32 v9, 4, v%d" % V_N)
    A.gather(9, [0], 16, 10, soff="s45")
    A("s_cmp_ge_u32 s33, 7\ns_cselect_b64 vcc, -1, 0")
    A.nop(2)
    A("v_cndmask_b32 v16, v16, v17, vcc\nv_cndmask_b32 v18, v18, v19, vcc\nv_mov_b32 v20, v16")
    for r in (1, 2, 4, 8):
        A.nop(2)
        A("v_max_f32_dpp v20, v20, v20 row_ror:%d %s" % (r, DPP))
    C1 = 0.0625 * math.log2(math.e)
    A("v_sub_f32 v16, v16, v20\nv_mul_f32 v16, %s, v16\nv_exp_f32 v16, v16\ns_nop 0\nv_mul_f32 v18, v16, v18" % f32(C1))
    for r in (1, 2, 4, 8):
        A.nop(2)
        A("v_add_f32_dpp v18, v18, v18 row_ror:%d %s" % (r, DPP))
    A("v_rcp_f32 v18, v18\ns_nop 0\nv_mul_f32 v16, v16, v18")
    A("v_lshl_add_u32 v9, v%d, 2, v%d\ns_mov_b64 exec, 0xffff\nds_write_b32 v9, v16 offset:%d" % (V_N, V_MISC, L_W))
    A.lds_signal_add(L_WF, 10)
    A("s_branch L_ffn")

    A("L_cons:")
    KA = 8
    KD = 16
    QB = 80
    AC = 112
    S = 120
    A("v_xor_b32 v12, v%d, v%d\nv_lshlrev_b32 v12, 4, v12\nv_lshl_or_b32 v12, v%d, 9, v12" % (V_G, V_N, V_N))
    A("s_lshl_b32 s56, s61, 14\nv_add_u32 v%d, s56, v12" % KA)
    for k in range(1, 4):
        A("v_xor_b32 v%d, %d, v%d" % (KA + k, 64 * k, KA))
    A("s_add_u32 s46, s61, 1")
    A("s_mov_b32 s44, 0x00030003\ns_mov_b32 s45, s44")
    A("s_mov_b32 s47, 0")
    A("s_lshl_b32 s62, s61, 2\nv_add_u32 v13, s62, v%d" % V_MISC)
    A("L_kloop:")
    A.lds_wait_ge(L_LAND, 48, "s46", 12)
    for tt in range(2):
        for kk in range(8):
            r = KD + 32 * tt + 4 * kk
            A("ds_read_b128 v[%d:%d], v%d offset:%d" % (r, r + 3, KA + (kk & 3), tt * 8192 + (kk >> 2) * 256))
    A("s_add_u32 s56, s46, 3\ns_min_u32 s56, s56, 16\nv_mov_b32 v12, s56")
    A("s_waitcnt lgkmcnt(0)")
    A("ds_write_b32 v13, v12 offset:%d" % L_PROG)
    A("s_cmp_lg_u32 s47, 0\ns_cbranch_scc1 L_haveq")
    A.lds_wait_ge(L_QF, 47, "1", 12, cached=False)
    A("v_and_b32 v12, 1, v%d\nv_lshlrev_b32 v12, 9, v12\nv_lshl_add_u32 v12, v%d, 4, v12\nv_add_u32 v12, v%d, v12" % (V_N, V_G, V_MISC))
    for kk in range(8):
        A("ds_read_b128 v[%d:%d], v12 offset:%d" % (QB + 4 * kk, QB + 4 * kk + 3, L_Q + kk * 64))
    A("s_waitcnt lgkmcnt(0)")
    A("L_haveq:")
    for kk in range(8):
        for tt in range(2):
            r = KD + 32 * tt + 4 * kk
            A("v_mfma_f32_16x16x32_bf16 v[%d:%d], v[%d:%d], v[%d:%d], %s" % (AC + 4 * tt, AC + 4 * tt + 3, r, r + 3, QB + 4 * kk, QB + 4 * kk + 3, "0" if kk == 0 else "v[%d:%d]" % (AC + 4 * tt, AC + 4 * tt + 3)))
    for k in range(4):
        A("v_xor_b32 v%d, 0x10000, v%d" % (KA + k, KA + k))
    A("s_lshl_b64 s[56:57], s[44:45], 2")
    A.nop(3)
    for k in range(4):
        A("v_cndmask_b32 v%d, v%d, v%d, s[44:45]" % (S + k, S + k, AC + k))
    for k in range(4):
        A("v_cndmask_b32 v%d, v%d, v%d, s[56:57]" % (S + k, S + k, AC + 4 + k))
    A("s_lshl_b64 s[44:45], s[44:45], 4")
    A("s_add_u32 s46, s46, 4\ns_cmp_le_u32 s46, 16\ns_cbranch_scc1 L_kloop")
    A.stamp(9)
    A("v_cvt_pk_bf16_f32 v16, v%d, v%d\nv_cvt_pk_bf16_f32 v17, v%d, v%d" % (S, S + 1, S + 2, S + 3))
    A("v_lshlrev_b32 v%d, 16, v16\nv_and_b32 v%d, 0xffff0000, v16\nv_lshlrev_b32 v%d, 16, v17\nv_and_b32 v%d, 0xffff0000, v17" % (S, S + 1, S + 2, S + 3))
    A("v_max3_f32 v16, v%d, v%d, v%d\nv_max_f32 v16, v16, v%d" % (S, S + 1, S + 2, S + 3))
    for r in (2, 4, 8):
        A.nop(2)
        A("v_max_f32_dpp v16, v16, v16 row_ror:%d %s" % (r, DPP))
    A("v_and_b32 v17, 1, v%d\nv_lshl_add_u32 v18, v17, 2, v%d" % (V_N, V_MISC))
    A("s_mov_b32 s56, 0x00030003\ns_mov_b32 s57, s56\ns_mov_b64 exec, s[56:57]")
    A("ds_max_f32 v18, v16 offset:%d" % L_MX)
    A.lds_signal_add(L_C1, 12)
    A.lds_wait_ge(L_C1, 47, "4", 12, cached=False)
    A("ds_read_b32 v16, v18 offset:%d\ns_waitcnt lgkmcnt(0)" % L_MX)
    for k in range(4):
        A("v_sub_f32 v%d, v%d, v16\nv_mul_f32 v%d, %s, v%d\nv_exp_f32 v%d, v%d" % (S + k, S + k, S + k, f32(C1), S + k, S + k, S + k))
    A.nop(1)
    A("v_add_f32 v16, v%d, v%d\nv_add_f32 v19, v%d, v%d\nv_add_f32 v16, v16, v19" % (S, S + 1, S + 2, S + 3))
    A("v_cvt_pk_bf16_f32 v20, v%d, v%d\nv_cvt_pk_bf16_f32 v21, v%d, v%d" % (S, S + 1, S + 2, S + 3))
    for r in (2, 4, 8):
        A("v_add_f32_dpp v16, v16, v16 row_ror:%d %s" % (r, DPP))
        A.nop(2)
    A("v_lshrrev_b32 v19, 2, v%d\nv_lshlrev_b32 v19, 8, v19\nv_lshl_add_u32 v19, v17, 10, v19\nv_lshl_add_u32 v19, v%d, 4, v19" % (V_N, V_G))
    A("v_and_b32 v22, 2, v%d\nv_lshl_add_u32 v19, v22, 2, v19\ns_lshl_b32 s62, s61, 6\nv_add3_u32 v19, v19, s62, v%d" % (V_N, V_MISC))
    A("ds_write_b64 v19, v[20:21] offset:%d" % L_P)
    A("v_lshlrev_b32 v19, 6, v17\nv_lshl_add_u32 v19, v%d, 2, v19\ns_lshl_b32 s62, s61, 4\nv_add3_u32 v19, v19, s62, v%d" % (V_G, V_MISC))
    A("s_mov_b64 exec, s[56:57]\nds_write_b32 v19, v16 offset:%d" % L_LSUM)
    A.lds_signal_add(L_C2, 12)
    VA = 8; VT = 16; VD = 24; PB = 40; OA = 96
    A("v_lshrrev_b32 v16, 2, v0\nv_and_b32 v18, 7, v16\ns_lshl_b32 s62, s61, 2\nv_xor_b32 v18, s62, v18\nv_lshlrev_b32 v18, 5, v18")
    A("v_lshl_or_b32 v18, v16, 9, v18\nv_and_b32 v16, 3, v0\nv_lshl_or_b32 v%d, v16, 3, v18" % VA)
    for tt in range(1, 4):
        A("v_xor_b32 v%d, %d, v%d" % (VA + tt, 32 * tt, VA))
    A("v_lshlrev_b32 v14, 10, v17\nv_lshl_add_u32 v14, v%d, 4, v14\nv_add_u32 v14, v%d, v14" % (V_G, V_MISC))
    for k in range(16):
        A("v_mov_b32 v%d, 0" % (OA + k))
    A.lds_wait_ge(L_C2, 47, "4", 12, cached=False)
    A.stamp(10)
    A("s_mov_b32 s46, 17\ns_mov_b32 s44, 0")
    A("L_vloop:")
    A("ds_read_b128 v[%d:%d], v14 offset:%d" % (PB, PB + 3, L_P))
    for tt in range(4):
        A("v_add_u32 v%d, s44, v%d" % (VT + tt, VA + tt))
    A.lds_wait_ge(L_LAND, 48, "s46", 12)
    for tt in range(4):
        A("ds_read_b64_tr_b16 v[%d:%d], v%d" % (VD + 4 * tt, VD + 4 * tt + 1, VT + tt))
        A("ds_read_b64_tr_b16 v[%d:%d], v%d offset:8192" % (VD + 4 * tt + 2, VD + 4 * tt + 3, VT + tt))
    A("v_mov_b32 v12, s46\nv_add_u32 v14, 64, v14\ns_add_u32 s44, s44, 16384\ns_and_b32 s44, s44, %d" % (MISC - 1))
    for tt in range(4):
        A("s_waitcnt lgkmcnt(%d)" % (6 - 2 * tt))
        A("v_mfma_f32_16x16x32_bf16 v[%d:%d], v[%d:%d], v[%d:%d], v[%d:%d]" % (OA + 4 * tt, OA + 4 * tt + 3, VD + 4 * tt, VD + 4 * tt + 3, PB, PB + 3, OA + 4 * tt, OA + 4 * tt + 3))
    A("ds_write_b32 v13, v12 offset:%d" % L_PROG)
    A("s_add_u32 s46, s46, 1\ns_cmp_le_u32 s46, 32\ns_cbranch_scc1 L_vloop")
    A("v_and_b32 v17, 1, v%d\nv_lshlrev_b32 v16, 14, v17\nv_lshrrev_b32 v17, 1, v%d\nv_lshl_add_u32 v16, v17, 6, v16\nv_lshl_add_u32 v16, v%d, 4, v16" % (V_N, V_N, V_G))
    A("s_lshl_b32 s45, s32, 15\ns_lshl_b32 s46, s33, 10\ns_add_u32 s45, s45, s46\ns_lshl_b32 s46, s61, 8\ns_add_u32 s45, s45, s46\ns_add_u32 s45, s45, %d" % WS_OP)
    for tt in range(1, 4):
        A("s_mov_b32 s56, 0x%08x\ns_mov_b32 s57, s56" % (0x00030003 << (2 * tt)))
        for k in range(4):
            A("v_cndmask_b32 v%d, v%d, v%d, s[56:57]" % (OA + k, OA + k, OA + 4 * tt + k))
    A.tag4(OA, OA)
    A("s_mov_b32 s56, 0x00ff00ff\ns_mov_b32 s57, s56\ns_mov_b64 exec, s[56:57]")
    A("buffer_store_dwordx4 v[%d:%d], v16, s[52:55], s45 offen sc1" % (OA, OA + 3))
    A("s_mov_b64 exec, -1")
    A.stamp(11)
    A("s_cmp_ge_u32 s33, 14\ns_cbranch_scc1 L_consend")
    WA = 48
    A("s_mov_b32 s47, 0")
    A.lds_wait_ge(L_WF, 47, "1", 12, cached=False)
    A("v_lshl_add_u32 v12, v%d, 4, v%d\nds_read_b128 v[40:43], v12 offset:%d" % (V_G, V_MISC, L_W))
    A("v_lshrrev_b32 v16, 2, v0\nv_bfe_u32 v17, v0, 3, 2\nv_xor_b32 v17, s61, v17\nv_lshlrev_b32 v17, 5, v17\nv_lshl_or_b32 v17, v16, 7, v17\nv_and_b32 v16, 3, v0\nv_lshl_or_b32 v17, v16, 3, v17")
    A("s_cmp_ge_u32 s33, 7\ns_cselect_b32 s46, 1, 0\ns_cselect_b32 s62, 7, 0\ns_sub_u32 s62, s33, s62")
    A("s_lshl_b32 s45, s32, 15\ns_lshl_b32 s56, s46, 14\ns_add_u32 s45, s45, s56\ns_lshl_b32 s56, s61, 8\ns_add_u32 s45, s45, s56\ns_add_u32 s45, s45, %d" % WS_OP)
    A("v_lshlrev_b32 v18, 12, v%d\nv_lshl_or_b32 v18, v%d, 4, v18" % (V_G, V_N))
    A("v_and_b32 v19, 3, v%d\nv_lshlrev_b32 v19, 4, v19\nv_and_b32 v20, 4, v%d\nv_lshl_or_b32 v19, v20, 1, v19\nv_and_b32 v20, 8, v%d\nv_lshl_or_b32 v19, v20, 3, v19\nv_lshl_or_b32 v19, v%d, 1, v19" % (V_N, V_N, V_N, V_G))
    A("s_lshl_b32 s56, s61, 7\nv_add3_u32 v19, v19, s56, v%d" % V_MISC)
    A("s_mul_i32 s63, s34, 28672\ns_lshl_b32 s56, s35, 1\ns_add_u32 s56, s56, s46\ns_mul_i32 s56, s56, 1792\ns_add_u32 s63, s63, s56")
    A("s_lshl_b32 s56, s62, 8\ns_add_u32 s63, s63, s56\ns_lshl_b32 s56, s61, 6\ns_add_u32 s63, s63, s56\ns_add_u32 s63, s63, %d" % WS_AP)
    A("v_lshlrev_b32 v21, 4, v%d" % V_G)
    A.lds_wait_ge(L_LAND, 48, "34", 20)
    for kk in range(8):
        A("ds_read_b64_tr_b16 v[%d:%d], v17 offset:%d" % (WA + 4 * kk, WA + 4 * kk + 1, kk * 4096))
        A("ds_read_b64_tr_b16 v[%d:%d], v17 offset:%d" % (WA + 4 * kk + 2, WA + 4 * kk + 3, kk * 4096 + 2048))
    A.gather(18, [0, 1024, 2048, 3072], 24, 20, soff="s45")
    A.stamp(12)
    A("s_waitcnt lgkmcnt(0)")
    for k in range(4):
        A("v_mul_f32 v%d, v40, v%d" % (24 + k, 24 + k))
    for i in range(1, 4):
        for k in range(4):
            A("v_fmac_f32 v%d, v%d, v%d" % (24 + k, 40 + i, 24 + 4 * i + k))
    A.swapreduce(24)
    A("v_cvt_pk_bf16_f32 v24, v24, v24\nds_write_b16 v19, v24 offset:%d" % L_O)
    A.lds_signal_add(L_C3, 20)
    A.lds_wait_ge(L_C3, 47, "4", 20, cached=False)
    for kk in range(8):
        A("ds_read_b128 v[%d:%d], v12 offset:%d" % (80 + 4 * kk, 83 + 4 * kk, L_O + kk * 64))
    for kk in range(8):
        A("s_waitcnt lgkmcnt(%d)" % (7 - kk))
        A("v_mfma_f32_16x16x32_bf16 v[24:27], v[%d:%d], v[%d:%d], %s" % (WA + 4 * kk, WA + 4 * kk + 3, 80 + 4 * kk, 83 + 4 * kk, "0" if kk == 0 else "v[24:27]"))
    A("s_mov_b32 s56, 0x00010001\ns_mov_b32 s57, s56")
    A.nop(6)
    A.tag4(24, 24)
    A("s_mov_b64 exec, s[56:57]")
    A("buffer_store_dwordx4 v[24:27], v21, s[52:55], s63 offen sc1")
    A("s_mov_b64 exec, -1")
    A.stamp(13)

    A("L_ffn:")
    A("s_cmp_ge_u32 s33, 14\ns_cbranch_scc1 L_end")
    GA = 48; UA = 56; DA = 64
    A("v_lshrrev_b32 v8, 2, v%d\nv_lshl_add_u32 v8, v%d, 3, v8\nv_lshlrev_b32 v8, 5, v8\nv_and_b32 v9, 3, v0\nv_lshl_add_u32 v8, v9, 3, v8" % (V_N, V_G))
    A("s_lshl_b32 s56, s61, 11\ns_add_u32 s56, s56, 32768\nv_add_u32 v8, s56, v8")
    A("v_lshrrev_b32 v10, 2, v0\nv_mul_u32_u24 v10, 896, v10\nv_lshl_add_u32 v10, v9, 3, v10\ns_lshl_b32 s56, s61, 7\ns_add_u32 s56, s56, 65536\nv_add_u32 v10, s56, v10")
    A("s_mul_i32 s45, s34, 28672\ns_lshl_b32 s56, s61, 8\ns_add_u32 s45, s45, s56\ns_add_u32 s45, s45, %d" % WS_AP)
    A("v_mul_u32_u24 v11, 7168, v%d\nv_lshl_add_u32 v11, v%d, 4, v11\nv_add_u32 v12, 3584, v11" % (V_G, V_N))
    A("s_lshl_b32 s56, s61, 7\nv_add3_u32 v13, v124, s56, v%d" % V_MISC)
    A("v_lshlrev_b32 v14, 4, v%d\nv_add_u32 v14, s56, v14\nv_mov_b32 v15, %d\nv_and_b32 v9, 1, v%d\nv_cmp_eq_u32 vcc, 1, v9" % (V_G, L_ONES - L_H, V_N))
    A.nop(2)
    A("v_cndmask_b32 v14, v14, v15, vcc\nv_add_u32 v14, v%d, v14" % V_MISC)
    A("v_lshlrev_b32 v15, 6, v9\nv_lshl_add_u32 v15, v%d, 4, v15\ns_lshl_b32 s56, s61, 8\nv_add3_u32 v15, v15, s56, v%d" % (V_G, V_MISC))
    A("v_lshlrev_b32 v16, 6, v%d\nv_lshl_add_u32 v16, v%d, 4, v16\nv_add_u32 v16, v%d, v16" % (V_N, V_G, V_MISC))
    A("s_lshl_b32 s56, s61, 3\nv_add_u32 v17, s56, v%d\nv_lshrrev_b32 v18, 2, v%d\nv_lshl_add_u32 v18, v18, 3, v%d" % (V_MISC, V_N, V_MISC))
    A("s_mul_i32 s62, s35, 14\ns_add_u32 s62, s62, s33\ns_mul_i32 s62, s62, 1792\ns_mul_i32 s56, s34, 200704\ns_add_u32 s62, s62, s56")
    A("s_lshl_b32 s56, s61, 8\ns_add_u32 s62, s62, s56\ns_add_u32 s62, s62, %d" % WS_FP)
    A("v_lshrrev_b32 v19, 2, v%d\nv_lshlrev_b32 v19, 6, v19\nv_lshl_add_u32 v19, v%d, 4, v19" % (V_N, V_G))
    A.lds_wait_ge(L_LAND, 48, "36", 20)
    for kk in range(2):
        for (R, o) in ((GA, 0), (UA, 16384)):
            A("ds_read_b64_tr_b16 v[%d:%d], v8 offset:%d" % (R + 4 * kk, R + 4 * kk + 1, o + kk * 1024))
            A("ds_read_b64_tr_b16 v[%d:%d], v8 offset:%d" % (R + 4 * kk + 2, R + 4 * kk + 3, o + kk * 1024 + 128))
    A.lds_wait_ge(L_LAND, 48, "37", 20)
    for t in range(4):
        A("ds_read_b64_tr_b16 v[%d:%d], v10 offset:%d" % (DA + 2 * t, DA + 2 * t + 1, t * 32))
    A.gather(11, [(11, 0), (11, 1792), (12, 0), (12, 1792)], 24, 20, soff="s45")
    A.stamp(14)
    for k in range(4):
        A("v_add_f32 v%d, v%d, v%d\nv_add_f32 v%d, v%d, v%d" % (24 + k, 24 + k, 28 + k, 32 + k, 32 + k, 36 + k))
    for k in range(4):
        A("v_add_f32 v%d, v%d, v%d" % (24 + k, 24 + k, 32 + k))
    A.swapreduce(24)
    A("v_cvt_pk_bf16_f32 v24, v24, v24\nv_lshlrev_b32 v24, 16, v24\nv_add_f32 v24, v126, v24\nv_cvt_pk_bf16_f32 v24, v24, v24")
    A("ds_write_b16 v13, v24 offset:%d" % L_H)
    A("ds_read_b128 v[28:31], v14 offset:%d\nds_read_b128 v[32:35], v14 offset:%d" % (L_H, L_H + 64))
    A("s_waitcnt lgkmcnt(1)")
    A("v_mfma_f32_16x16x32_bf16 v[36:39], v[%d:%d], v[28:31], 0" % (GA, GA + 3))
    A("v_mfma_f32_16x16x32_bf16 v[40:43], v[%d:%d], v[28:31], 0" % (UA, UA + 3))
    A("v_mfma_f32_16x16x32_bf16 v[44:47], v[28:31], v[28:31], 0")
    A("s_waitcnt lgkmcnt(0)")
    A("v_mfma_f32_16x16x32_bf16 v[36:39], v[%d:%d], v[32:35], v[36:39]" % (GA + 4, GA + 7))
    A("v_mfma_f32_16x16x32_bf16 v[40:43], v[%d:%d], v[32:35], v[40:43]" % (UA + 4, UA + 7))
    A("v_mfma_f32_16x16x32_bf16 v[44:47], v[32:35], v[32:35], v[44:47]")
    A("s_mov_b32 s56, 0x00030003\ns_mov_b32 s57, s56\ns_mov_b64 exec, s[56:57]")
    A.nop(4)
    A("ds_write_b128 v15, v[36:39] offset:%d\nds_write_b128 v15, v[40:43] offset:%d" % (L_RED, L_RED + 128))
    A("s_mov_b64 exec, 1\nds_write_b64 v17, v[44:45] offset:%d\ns_mov_b64 exec, -1" % L_STAT)
    A("s_waitcnt lgkmcnt(0)\ns_barrier")
    A("ds_read_b64 v[36:37], v18 offset:%d\nds_read_b64 v[38:39], v18 offset:%d" % (L_STAT, L_STAT + 32))
    A("ds_read_b128 v[28:31], v16 offset:%d\nds_read_b128 v[32:35], v16 offset:%d" % (L_RED, L_RED + 1024))
    A("s_waitcnt lgkmcnt(2)")
    A("v_add_f32 v36, v36, v38\nv_add_f32 v37, v37, v39")
    A("s_waitcnt lgkmcnt(0)")
    for k in range(4):
        A("v_add_f32 v%d, v%d, v%d" % (28 + k, 28 + k, 32 + k))
    for r in (4, 8):
        for v in (36, 37, 28, 29, 30, 31):
            A("v_add_f32_dpp v%d, v%d, v%d row_ror:%d %s" % (v, v, v, r, DPP))
    ln_stats(37, 36, 38, 39, 40)
    A("v_sub_f32 v38, 0, v38")
    A.nop(2)
    for k in range(4):
        A("v_fmac_f32_dpp v%d, v%d, v38 quad_perm:[1,1,3,3] %s" % (28 + k, 28 + k, DPP))
    for k in range(4):
        A("v_mul_f32 v%d, v%d, v39" % (28 + k, 28 + k))
    A("v_cvt_pk_bf16_f32 v32, v28, v29\nv_cvt_pk_bf16_f32 v33, v30, v31")
    A("v_lshlrev_b32 v28, 16, v32\nv_and_b32 v29, 0xffff0000, v32\nv_lshlrev_b32 v30, 16, v33\nv_and_b32 v31, 0xffff0000, v33")
    ga = 2 * math.sqrt(2 / math.pi) * math.log2(math.e); gb = ga * 0.044715
    A("v_mov_b32 v40, %s\ns_mov_b32 s56, %s" % (f32(-ga), f32(-gb)))
    for k in range(4):
        A("v_mul_f32 v%d, v%d, v%d" % (32 + k, 28 + k, 28 + k))
    for k in range(4):
        A("v_fma_f32 v%d, v%d, s56, v40" % (32 + k, 32 + k))
    for k in range(4):
        A("v_mul_f32 v%d, v%d, v%d" % (32 + k, 32 + k, 28 + k))
    for k in range(4):
        A("v_exp_f32 v%d, v%d" % (32 + k, 32 + k))
    for k in range(4):
        A("v_add_f32 v%d, 1.0, v%d" % (32 + k, 32 + k))
    for k in range(4):
        A("v_rcp_f32 v%d, v%d" % (32 + k, 32 + k))
    for k in range(4):
        A("v_mul_f32 v%d, v%d, v%d" % (32 + k, 32 + k, 28 + k))
    A("v_cvt_pk_bf16_f32 v36, v32, v33\nv_cvt_pk_bf16_f32 v37, v34, v35")
    A("v_lshlrev_b32 v32, 16, v36\nv_and_b32 v33, 0xffff0000, v36\nv_lshlrev_b32 v34, 16, v37\nv_and_b32 v35, 0xffff0000, v37")
    for k in range(4):
        A("v_mul_f32_dpp v%d, v%d, v%d quad_perm:[2,2,2,2] %s" % (32 + k, 28 + k, 32 + k, DPP))
    A("v_cvt_pk_bf16_f32 v36, v32, v33\nv_cvt_pk_bf16_f32 v37, v34, v35")
    A.nop(2)
    for t in range(4):
        A("v_mfma_f32_16x16x16_bf16 v[%d:%d], v[%d:%d], v[36:37], 0" % (80 + 4 * t, 83 + 4 * t, DA + 2 * t, DA + 2 * t + 1))
    A.nop(5)
    for t in range(1, 4):
        A("s_mov_b32 s56, 0x%08x\ns_mov_b32 s57, s56" % (0x00010001 << (4 * t)))
        for k in range(4):
            A("v_cndmask_b32 v%d, v%d, v%d, s[56:57]" % (80 + k, 80 + k, 80 + 4 * t + k))
    A.tag4(80, 80)
    A("s_mov_b32 s56, 0x11111111\ns_mov_b32 s57, s56\ns_mov_b64 exec, s[56:57]")
    A("buffer_store_dwordx4 v[80:83], v19, s[52:55], s62 offen sc1")
    A("s_mov_b64 exec, -1")
    A.stamp(15)
    A("s_cmp_lg_u32 s61, 0\ns_cbranch_scc1 L_end")
    A("s_cmp_ge_u32 s33, 4\ns_cbranch_scc1 L_consend\ns_cmp_ge_u32 s35, 7\ns_cbranch_scc1 L_consend")
    A("s_lshl_b32 s46, s35, 2\ns_add_u32 s46, s46, s33")
    A("s_mul_i32 s45, s34, 200704\ns_lshl_b32 s56, s46, 6\ns_add_u32 s45, s45, s56\ns_add_u32 s45, s45, %d" % WS_FP)
    A("v_lshrrev_b32 v8, 2, v0\nv_mul_u32_u24 v8, 1792, v8\nv_and_b32 v15, 3, v0\nv_lshl_add_u32 v8, v15, 4, v8")
    for i in range(1, 7):
        A("v_add_u32 v%d, %d, v8" % (8 + i, 28672 * i))
    A("v_lshlrev_b32 v16, 3, v15\nv_lshl_add_u32 v16, v%d, 1, v16\ns_lshl_b32 s56, s46, 5\nv_add3_u32 v17, v16, s56, v%d" % (V_G, V_MISC))
    A("v_mov_b32 v18, 0\nds_read_u16_d16_hi v18, v17 offset:%d" % L_H)
    A("s_mul_i32 s57, s34, 896\ns_add_u32 s46, s56, s57")
    A("s_mov_b32 s40, s22\ns_mov_b32 s41, s23")
    A.gather(8, [(8 + i, 0) for i in range(7)], 24, 20, soff="s45")
    for k in range(4):
        A("v_add_f32 v%d, v%d, v%d\nv_add_f32 v%d, v%d, v%d\nv_add_f32 v%d, v%d, v%d" % (24 + k, 24 + k, 28 + k, 32 + k, 32 + k, 36 + k, 40 + k, 40 + k, 44 + k))
    for k in range(4):
        A("v_add_f32 v%d, v%d, v%d\nv_add_f32 v%d, v%d, v%d" % (24 + k, 24 + k, 32 + k, 40 + k, 40 + k, 48 + k))
    for k in range(4):
        A("v_add_f32 v%d, v%d, v%d" % (24 + k, 24 + k, 40 + k))
    A.swapreduce(24)
    for r in (4, 8):
        A.nop(2)
        A("v_add_f32_dpp v24, v24, v24 row_ror:%d %s" % (r, DPP))
    A("s_waitcnt lgkmcnt(0)")
    A("v_cvt_pk_bf16_f32 v24, v24, v24\nv_lshlrev_b32 v24, 16, v24\nv_add_f32 v24, v18, v24\nv_cvt_pk_bf16_f32 v24, v24, v24")
    A("s_mov_b32 s56, 0x000f000f\ns_mov_b32 s57, s56\ns_mov_b64 exec, s[56:57]")
    A("buffer_store_short v24, v16, s[40:43], s46 offen")
    A("s_cmp_lg_u32 s2, 0\ns_cbranch_scc1 L_noE")
    A("s_mov_b64 exec, 1\nv_mov_b32 v8, 0\nbuffer_store_dwordx4 v[%d:%d], v8, s[52:55], 0 offen offset:%d" % (V_TAG, V_TAG + 3, WS_E))
    A("L_noE:")
    if stamps:
        A("s_waitcnt vmcnt(0)")
        A("s_memrealtime s[96:97]\ns_waitcnt lgkmcnt(0)")
        A("s_mov_b64 exec, 1\ns_mul_i32 s60, s2, 256\ns_add_u32 s60, s60, %d\nv_mov_b32 v1, s60\nv_mov_b32 v2, s96\nv_mov_b32 v3, s97" % STAMP_OFF)
        A("global_store_dwordx2 v1, v[2:3], s[26:27] offset:128")
    A("L_consend:")
    if stamps:
        A("s_cmp_lg_u32 s61, 0\ns_cbranch_scc1 L_end")
        A.stamp_flush([9, 10, 11, 12, 13, 14, 15])
    A("L_end:\ns_endpgm")
    A.L.append('.section .rodata,"a"\n.p2align 6\n.amdhsa_kernel %s_kernel' % NAME)
    A.L.append("  .amdhsa_next_free_vgpr 128\n  .amdhsa_next_free_sgpr 100\n  .amdhsa_accum_offset 128")
    A.L.append("  .amdhsa_group_segment_fixed_size 0\n  .amdhsa_kernarg_size 96\n  .amdhsa_user_sgpr_count 2\n  .amdhsa_user_sgpr_kernarg_segment_ptr 1\n  .amdhsa_system_sgpr_workgroup_id_x 1\n  .amdhsa_float_denorm_mode_32 3\n.end_amdhsa_kernel")
    return "\n".join(A.L) + "\n"

if __name__ == "__main__":
    out = sys.argv[1]
    kw = {}
    for a in sys.argv[2:]:
        k, v = a.split("="); kw[k] = int(v)
    open(out, "w").write(build(**kw))
```

```python
import sys, math, struct
NAME = "sequential_preLN__gqa_block_cached__geglu_ffn__decode"
HEADER = open("cdna_kernels/%s.s.ref" % NAME).read().split("; Override launch")[0]

NA = 12
NSL = 22
WS_E = 0
WS_Q = 0x1000
WS_ML = 0x9000
WS_AP = 0xA000
WS_OP = 0x20000
WS_FP = 0xA0000
WS_END = 0xC0000
STAMP_OFF = 128 << 20
RING = 8
MISC = RING * 16384
L_Q = 0; L_P = 1024; PSTR = 1536; L_O = 4096; L_LSUM = 4608; L_MX = 4736; L_W = 4752
L_LAND = 4816; L_QF = 4820; L_C1 = 4824; L_C2 = 4828; L_WF = 4832; L_C3 = 4836
L_PROG = 4848
R_A = 0; R_B = 57344
L_LN = 0; L_H = 2048; L_ONES = 3072; L_ACT = 4096
LDS_TOTAL = MISC + 8192
WO_POS = ((2 * NSL) % RING) * 16384
assert WO_POS + 3 * 16384 <= MISC
TAGM = 0x3ff
SPIN = 1 << 17
V_G = 1; V_N = 2; V_MISC = 3; V_TAG = 4
DPP = "row_mask:0xf bank_mask:0xf"
C1 = 0.0625 * math.log2(math.e)

def f32(x): return "0x%08x" % struct.unpack("<I", struct.pack("<f", x))[0]

class Gen:
    def __init__(self, stamps):
        self.L = []; self.uid = 0; self.stamps = stamps
    def __call__(self, s):
        for line in s.split("\n"):
            line = line.strip()
            if line: self.L.append(("" if line.endswith(":") else "    ") + line)
    def lab(self, p="L"):
        self.uid += 1
        return "%s_%d" % (p, self.uid)
    def nop(self, n):
        while n > 0:
            k = min(n, 16); self("s_nop %d" % (k - 1)); n -= k
    def mask(self, m32, dst="s[56:57]"):
        self("s_mov_b32 s56, 0x%08x\ns_mov_b32 s57, s56" % m32)
        if dst == "exec": self("s_mov_b64 exec, s[56:57]")
    def stamp(self, idx):
        if not self.stamps: return
        self("s_memrealtime s[%d:%d]\ns_waitcnt lgkmcnt(0)" % (68 + 2 * (idx % 16), 69 + 2 * (idx % 16)))
    def stamp_flush(self, idxs):
        if not self.stamps: return
        self("s_mov_b64 exec, 1\ns_mul_i32 s60, s2, 256\ns_add_u32 s60, s60, %d\nv_mov_b32 v255, s60" % STAMP_OFF)
        for idx in idxs:
            self("v_mov_b32 v250, s%d\nv_mov_b32 v251, s%d" % (68 + 2 * (idx % 16), 69 + 2 * (idx % 16)))
            self("global_store_dwordx2 v255, v[250:251], s[26:27] offset:%d\ns_nop 1" % (idx * 8))
        self("s_mov_b64 exec, -1")
    def lds_wait_ge(self, off, sreg, target, vt, cached=True, sleep=1):
        d = self.lab("Lw"); l = self.lab("Lw")
        if cached:
            self("s_cmp_ge_u32 s%d, %s\ns_cbranch_scc1 %s" % (sreg, target, d))
        self("%s:" % l)
        self("ds_read_b32 v%d, v%d offset:%d\ns_waitcnt lgkmcnt(0)" % (vt, V_MISC, off))
        self("v_readfirstlane_b32 s%d, v%d\ns_cmp_ge_u32 s%d, %s\ns_cbranch_scc1 %s" % (sreg, vt, sreg, target, d))
        if sleep: self("s_sleep %d" % sleep)
        self("s_sub_u32 s64, s64, 1\ns_cbranch_scc0 %s\ns_mov_b32 s64, 0" % l)
        self("%s:" % d)
    def lds_signal_add(self, off, vt):
        self("s_mov_b64 exec, 1\nv_mov_b32 v%d, 1\nds_add_u32 v%d, v%d offset:%d\ns_mov_b64 exec, -1" % (vt, V_MISC, vt, off))
    def gather(self, offs, vd, vt, soff, sleep=2):
        l = self.lab("Lg"); d = self.lab("Lg")
        self("s_mov_b32 s58, 0\n%s:" % l)
        for i, (va, oo) in enumerate(offs):
            self("buffer_load_dwordx4 v[%d:%d], v%d, s[52:55], %s offen offset:%d sc1" % (vd + 4 * i, vd + 4 * i + 3, va, soff, oo))
        for i in range(len(offs)):
            self("s_waitcnt vmcnt(%d)" % (len(offs) - 1 - i))
            for k in range(4):
                self("v_xor_b32 v%d, s%d, v%d" % (vd + 4 * i + k, 28 + k, vd + 4 * i + k))
            if i == 0:
                self("v_or3_b32 v%d, v%d, v%d, v%d\nv_or_b32 v%d, v%d, v%d" % (vt, vd, vd + 1, vd + 2, vt, vt, vd + 3))
            else:
                self("v_or3_b32 v%d, v%d, v%d, v%d" % (vt, vt, vd + 4 * i, vd + 4 * i + 1))
                self("v_or3_b32 v%d, v%d, v%d, v%d" % (vt, vt, vd + 4 * i + 2, vd + 4 * i + 3))
        self("v_and_b32 v%d, %d, v%d\nv_cmp_ne_u32 vcc, 0, v%d\ns_cbranch_vccz %s" % (vt, TAGM, vt, vt, d))
        if sleep: self("s_sleep %d" % sleep)
        self("s_add_u32 s58, s58, 1\ns_cmp_lt_u32 s58, %d\ns_cbranch_scc1 %s\n%s:" % (SPIN, l, d))
    def tag4(self, vs, vd):
        for k in range(4):
            self("v_and_or_b32 v%d, v%d, s59, v%d" % (vd + k, vs + k, V_TAG + k))
    def swapreduce(self, v):
        self.nop(2)
        self("v_permlane16_swap_b32 v%d, v%d\nv_permlane16_swap_b32 v%d, v%d" % (v, v + 1, v + 2, v + 3))
        self("v_add_f32 v%d, v%d, v%d\nv_add_f32 v%d, v%d, v%d" % (v, v, v + 1, v + 2, v + 2, v + 3))
        self.nop(2)
        self("v_permlane32_swap_b32 v%d, v%d" % (v, v + 2))
        self("v_add_f32 v%d, v%d, v%d" % (v, v, v + 2))
    def ln_stats_list(self, vs, vq, vm, vr, t):
        return ["v_mul_f32 v%d, %s, v%d" % (vs, f32(1.0 / 448), vs), "v_mul_f32 v%d, %s, v%d" % (vq, f32(1.0 / 448), vq),
                "v_fma_f32 v%d, -v%d, v%d, v%d" % (vq, vs, vs, vq), "v_max_f32 v%d, 0, v%d" % (vq, vq),
                "v_cvt_pk_bf16_f32 v%d, v%d, v%d" % (t, vs, vq),
                "v_and_b32 v%d, 0xffff0000, v%d" % (vq, t), "v_lshlrev_b32 v%d, 16, v%d" % (vm, t),
                "v_add_f32 v%d, %s, v%d" % (vq, f32(1e-5), vq), "v_cvt_pk_bf16_f32 v%d, v%d, v%d" % (t, vq, vq),
                "v_lshlrev_b32 v%d, 16, v%d" % (vq, t), "v_sqrt_f32 v%d, v%d" % (vq, vq), "s_nop 0",
                "v_cvt_pk_bf16_f32 v%d, v%d, v%d" % (t, vq, vq), "v_lshlrev_b32 v%d, 16, v%d" % (vq, t),
                "v_rcp_f32 v%d, v%d" % (vr, vq), "s_nop 0"]
    def tags_setup(self):
        for k in range(4):
            self("s_add_u32 s%d, s%d, 1\ns_and_b32 s%d, s%d, %d\nv_mov_b32 v%d, s%d" % (28 + k, 28 + k, 28 + k, 28 + k, TAGM, V_TAG + k, 28 + k))

def build(stamps=0, win=48, qp=8, mp=38, qslp=16):
    A = Gen(stamps)
    A.L.append(HEADER.rstrip())
    A.L.append("; @launch grid=(256,1,1) block=(512,1,1) lds=%d" % LDS_TOTAL)
    A.L.append('.amdgcn_target "amdgcn-amd-amdhsa--gfx950"')
    A.L.append(".text\n.globl %s_kernel\n.p2align 8\n.type %s_kernel,@function\n%s_kernel:" % (NAME, NAME, NAME))
    A("s_cmp_ge_u32 s2, 256\ns_cbranch_scc1 L_end")
    A("s_load_dwordx16 s[4:19], s[0:1], 0\ns_load_dwordx8 s[20:27], s[0:1], 64")
    A.stamp(0)
    A("v_lshrrev_b32 v1, 6, v0\nv_and_b32 v0, 63, v0\nv_readfirstlane_b32 s3, v1")
    A("s_and_b32 s32, s2, 15\ns_lshr_b32 s33, s2, 4\ns_lshr_b32 s34, s32, 3\ns_and_b32 s35, s32, 7")
    A("v_mov_b32 v%d, %d\ns_mov_b32 s64, %d" % (V_MISC, MISC, 1 << 20))
    A("s_cmp_ge_u32 s33, %d\ns_cbranch_scc1 L_service" % NA)
    A("s_mul_i32 s65, s33, 43691\ns_add_u32 s66, s65, 43691\ns_lshr_b32 s65, s65, 6\ns_lshr_b32 s66, s66, 6")
    for a in range(NA + 1): assert (a * 43691) >> 6 == a * 8192 // NA
    A("s_cmp_lg_u32 s3, 1\ns_cbranch_scc1 L_notloader")
    A("s_setprio 3")
    A("v_lshrrev_b32 v1, 5, v0\nv_and_b32 v2, 31, v0\nv_xor_b32 v4, v2, v1\nv_lshlrev_b32 v4, 4, v4\nv_lshl_or_b32 v8, v1, 9, v4")
    for j in range(1, 8):
        A("v_xor_b32 v%d, %d, v8" % (8 + j, 32 * j))
    A("s_lshl_b32 s45, s32, 22\ns_lshl_b32 s44, s65, 9\ns_add_u32 s44, s44, s45\ns_lshl_b32 s38, s66, 9\ns_add_u32 s38, s38, s45")
    A("s_mov_b32 s45, s44\ns_mov_b32 s46, 0\ns_mov_b32 s47, 0\ns_mov_b32 s48, 0\ns_mov_b32 s49, 1024\ns_mov_b32 s50, 3\ns_mov_b32 m0, 0")
    A("s_mov_b32 s39, 0x20000")
    A("s_waitcnt lgkmcnt(0)")
    A("s_mov_b32 s36, s6\ns_mov_b32 s37, s7")
    W = win
    lag = W // 16 - 1
    def land(k):
        A("s_sub_i32 s56, s46, %d\ns_max_i32 s48, s48, s56\nv_mov_b32 v20, s48\nds_write_b32 v%d, v20 offset:%d" % (k, V_MISC, L_LAND))
    A("L_slot:")
    A("s_add_u32 s56, s47, %d\ns_cmp_lt_u32 s46, s56\ns_cbranch_scc0 L_waitfree" % RING)
    A("L_go:")
    A("s_waitcnt vmcnt(%d)" % (W - 8))
    for j in range(16):
        if j == 8:
            A("s_waitcnt vmcnt(%d)" % (W - 8))
            land(lag)
        A("buffer_load_dwordx4 v%d, s[36:39], s45 offen nt lds" % (8 + j % 8))
        A("s_add_u32 m0, m0, 1024\ns_add_u32 s45, s45, s49")
    A("s_and_b32 m0, m0, %d" % (MISC - 1))
    A("s_add_u32 s46, s46, 1\ns_cmp_lg_u32 s46, s50\ns_cbranch_scc1 L_slot")
    A("s_cmp_lg_u32 s46, 3\ns_cbranch_scc1 L_evV")
    A("s_barrier\ns_mov_b32 s50, %d\ns_branch L_slot" % NSL)
    A("L_evV:\ns_cmp_lg_u32 s46, %d\ns_cbranch_scc1 L_evW" % NSL)
    A.stamp(1)
    A("v_lshlrev_b32 v4, 1, v1\nv_xor_b32 v4, v2, v4\nv_lshlrev_b32 v4, 4, v4\nv_lshl_or_b32 v8, v1, 9, v4")
    for j in range(1, 8):
        A("v_xor_b32 v%d, %d, v8" % (8 + j, 64 * (j & 3)))
    A("s_mov_b32 s36, s8\ns_mov_b32 s37, s9\ns_mov_b32 s45, s44\ns_mov_b32 s50, %d\ns_branch L_slot" % (2 * NSL))
    A("L_evW:\ns_cmp_lg_u32 s46, %d\ns_cbranch_scc1 L_evX" % (2 * NSL))
    A.stamp(2)
    A("s_cmp_ge_u32 s33, 6\ns_cselect_b32 s56, 1, 0\ns_cselect_b32 s57, 6, 0")
    A("s_lshl_b32 s44, s35, 1\ns_add_u32 s44, s44, s56\ns_mul_i32 s44, s44, %d\ns_add_u32 s38, s44, %d" % (256 * 896, 256 * 896))
    A("s_sub_u32 s57, s33, s57\ns_lshl_b32 s56, s57, 7\ns_add_u32 s45, s44, s56")
    A("v_lshrrev_b32 v4, 3, v0\nv_and_b32 v6, 6, v4\nv_mul_u32_u24 v4, 896, v4\nv_and_b32 v5, 7, v0\nv_xor_b32 v5, v5, v6\nv_lshl_add_u32 v8, v5, 4, v4")
    A("s_mov_b32 s36, s12\ns_mov_b32 s37, s13\ns_mov_b32 s49, 7168\ns_mov_b32 s50, %d" % (2 * NSL + 2))
    A("s_branch L_bcast")
    A("L_evX:\ns_cmp_lg_u32 s46, %d\ns_cbranch_scc1 L_ldone\ns_cmp_ge_u32 s57, 4\ns_cbranch_scc1 L_ldone" % (2 * NSL + 2))
    A("s_lshl_b32 s56, s57, 5\ns_add_u32 s45, s44, s56\ns_add_u32 s45, s45, 768")
    A("v_lshrrev_b32 v4, 1, v0\nv_mul_u32_u24 v4, 896, v4\nv_and_b32 v5, 1, v0\nv_lshl_add_u32 v8, v5, 4, v4")
    A("s_mov_b32 s49, %d\ns_mov_b32 s50, %d" % (32 * 896, 2 * NSL + 3))
    A("L_bcast:")
    for j in range(1, 8):
        A("v_mov_b32 v%d, v8" % (8 + j))
    A("s_branch L_slot")
    A("L_ldone:")
    A.stamp(3)
    for k in range(lag, -1, -1):
        A("s_waitcnt vmcnt(%d)" % (16 * k))
        land(k)
    A.stamp(4)
    A.stamp_flush([0, 1, 2, 3, 4])
    A("s_endpgm")
    A("L_waitfree:")
    def prog_check():
        A("ds_read_b128 v[20:23], v%d offset:%d\ns_waitcnt lgkmcnt(0)" % (V_MISC, L_PROG))
        A("v_min3_u32 v20, v20, v21, v22\nv_min_u32 v20, v20, v23\ns_nop 0\nv_readfirstlane_b32 s47, v20")
        A("s_add_u32 s56, s47, %d\ns_cmp_lt_u32 s46, s56\ns_cbranch_scc1 L_go" % RING)
    for k in range(lag, -1, -1):
        prog_check()
        A("s_waitcnt vmcnt(%d)" % (16 * k))
        land(k)
    A("L_wf2:")
    prog_check()
    A("s_sleep 1\ns_sub_u32 s64, s64, 1\ns_cbranch_scc0 L_wf2\ns_mov_b32 s64, 0\ns_branch L_go")

    def common_setup():
        A("v_lshrrev_b32 v%d, 4, v0\nv_and_b32 v%d, 15, v0" % (V_G, V_N))
        A("s_waitcnt lgkmcnt(0)")
        A("s_load_dwordx4 s[28:31], s[26:27], %d" % WS_E)
        A("s_mov_b32 s52, s26\ns_mov_b32 s53, s27\ns_mov_b32 s54, %d\ns_mov_b32 s55, 0x20000" % WS_END)
        A("s_mov_b32 s59, %d" % (0xffffffff & ~TAGM))
    A("L_notloader:")
    common_setup()
    A("s_cmp_lg_u32 s3, 3\ns_cbranch_scc1 L_noinit")
    A("v_mov_b32 v8, 0\nv_lshl_add_u32 v9, v0, 2, v%d" % V_MISC)
    A("s_mov_b64 exec, 0xff\nds_write_b32 v9, v8 offset:%d" % L_LAND)
    A("s_mov_b64 exec, 0xf\nds_write_b32 v9, v0 offset:%d" % L_PROG)
    A("s_mov_b64 exec, 0x3\nv_mov_b32 v10, 0xff800000\nds_write_b32 v9, v10 offset:%d" % L_MX)
    A("s_waitcnt lgkmcnt(0)\ns_barrier\ns_endpgm")
    A("L_noinit:")
    A("s_sub_u32 s61, s3, 4")
    A("s_cmp_ge_u32 s33, 6\ns_cselect_b32 s67, 1, 0\ns_cselect_b32 s63, 6, 0\ns_sub_u32 s63, s33, s63")
    A("s_waitcnt lgkmcnt(0)")
    A.tags_setup()
    A("s_mov_b32 s48, 0\ns_barrier")
    A("s_cmp_ge_u32 s3, 4\ns_cbranch_scc1 L_cons")
    A("s_cmp_eq_u32 s3, 2\ns_cbranch_scc1 L_w2")
    A("s_lshl_b32 s45, s34, 14\ns_lshl_b32 s46, s35, 11\ns_add_u32 s45, s45, s46\ns_add_u32 s45, s45, %d" % WS_Q)
    A("v_lshlrev_b32 v16, 4, v0")
    A.lds_wait_ge(L_LAND, 48, str(qp), 17)
    A.stamp(7)
    A.gather([(16, 0), (16, 1024)], 20, 17, "s45", sleep=qslp)
    A("s_mov_b32 s56, 0x07060302")
    for i in range(4):
        A("v_perm_b32 v%d, v%d, v%d, s56" % (28 + i, 21 + 2 * i, 20 + 2 * i))
    A("v_lshl_add_u32 v16, v0, 3, v%d" % V_MISC)
    A("ds_write_b64 v16, v[28:29] offset:%d\nds_write_b64 v16, v[30:31] offset:%d" % (L_Q, L_Q + 512))
    A.lds_signal_add(L_QF, 17)
    A.stamp(8)
    A.lds_wait_ge(L_C2, 47, "4", 8, cached=False, sleep=4)
    A("v_and_b32 v9, 31, v0\nv_lshl_add_u32 v9, v9, 2, v%d" % V_MISC)
    A("ds_read_b32 v10, v9 offset:%d\nds_read_b64 v[12:13], v%d offset:%d\ns_waitcnt lgkmcnt(0)" % (L_LSUM, V_MISC, L_MX))
    for r in (1, 2, 4, 8):
        A("v_add_f32_dpp v10, v10, v10 row_ror:%d %s" % (r, DPP))
        A.nop(2)
    A("v_readlane_b32 s56, v10, 0\nv_readlane_b32 s57, v10, 16")
    A.nop(2)
    A("v_mov_b32 v14, s56\nv_mov_b32 v15, s57")
    A.tag4(12, 12)
    A("s_lshl_b32 s45, s32, 8\ns_add_u32 s45, s45, %d\ns_lshl_b32 s46, s33, 4\nv_mov_b32 v9, s46" % WS_ML)
    A("s_mov_b64 exec, 1\nbuffer_store_dwordx4 v[12:15], v9, s[52:55], s45 offen sc1\ns_mov_b64 exec, -1")
    A("v_min_u32 v9, %d, v%d\nv_lshlrev_b32 v9, 4, v9" % (NA - 1, V_N))
    A.lds_wait_ge(L_LAND, 48, str(mp), 10, sleep=4)
    A.gather([(9, 0)], 16, 10, "s45", sleep=qslp)
    A("s_cmp_eq_u32 s67, 1\ns_cselect_b64 vcc, -1, 0")
    A.nop(2)
    A("v_cndmask_b32 v16, v16, v17, vcc\nv_cndmask_b32 v18, v18, v19, vcc\nv_cmp_gt_u32 vcc, %d, v%d\nv_mov_b32 v20, v16" % (NA, V_N))
    A.nop(1)
    A("v_cndmask_b32 v18, 0, v18, vcc")
    for r in (1, 2, 4, 8):
        A("v_max_f32_dpp v20, v20, v20 row_ror:%d %s" % (r, DPP))
        A.nop(2)
    A("v_sub_f32 v16, v16, v20\nv_mul_f32 v16, %s, v16\nv_exp_f32 v16, v16\ns_nop 0\nv_mul_f32 v18, v16, v18" % f32(C1))
    for r in (1, 2, 4, 8):
        A.nop(2)
        A("v_add_f32_dpp v18, v18, v18 row_ror:%d %s" % (r, DPP))
    A("v_rcp_f32 v18, v18\ns_nop 0\nv_mul_f32 v16, v16, v18")
    A("v_mul_u32_u24 v9, 43, v%d\nv_lshrrev_b32 v9, 7, v9\nv_add_u32 v9, v9, v%d\nv_lshl_add_u32 v9, v9, 2, v%d" % (V_N, V_N, V_MISC))
    A("s_mov_b64 exec, 0x%x\nds_write_b32 v9, v16 offset:%d" % ((1 << NA) - 1, L_W))
    A.lds_signal_add(L_WF, 10)
    A.stamp_flush([7, 8])
    A("s_endpgm")

    def ap_base():
        A("s_mul_i32 s62, s34, 28672\ns_lshl_b32 s56, s35, 1\ns_add_u32 s56, s56, s67\ns_mul_i32 s56, s56, 1792\ns_add_u32 s62, s62, s56\ns_add_u32 s62, s62, %d" % WS_AP)
    WA = 48
    def wo_tail():
        A.lds_wait_ge(L_C3, 47, "4", 20, cached=False, sleep=0)
        for kk in range(8):
            A("ds_read_b128 v[%d:%d], v12 offset:%d" % (80 + 4 * kk, 83 + 4 * kk, L_O + kk * 64))
        for kk in range(8):
            A("s_waitcnt lgkmcnt(%d)" % (7 - kk))
            A("v_mfma_f32_16x16x32_bf16 v[24:27], v[%d:%d], v[%d:%d], %s" % (WA + 4 * kk, WA + 4 * kk + 3, 80 + 4 * kk, 83 + 4 * kk, "0" if kk == 0 else "v[24:27]"))
        A.mask(0x00010001)
        A.nop(6)
        A.tag4(24, 24)
        A("s_mov_b64 exec, s[56:57]")
        A("buffer_store_dwordx4 v[24:27], v21, s[52:55], s62 offen sc1")
    A("L_w2:")
    A("s_cmp_ge_u32 s63, 4\ns_cbranch_scc1 L_end")
    ap_base()
    A("s_lshl_b32 s56, s63, 6\ns_add_u32 s62, s62, s56\ns_add_u32 s62, s62, 1536")
    A("v_lshlrev_b32 v21, 4, v%d\nv_add_u32 v12, v21, v%d" % (V_G, V_MISC))
    A("v_lshlrev_b32 v17, 3, v0\nv_add_u32 v17, %d, v17" % (WO_POS + 32768))
    A.lds_wait_ge(L_LAND, 48, str(2 * NSL + 3), 20, sleep=4)
    for kk in range(8):
        A("ds_read_b64_tr_b16 v[%d:%d], v17 offset:%d" % (WA + 4 * kk, WA + 4 * kk + 1, kk * 1024))
        A("ds_read_b64_tr_b16 v[%d:%d], v17 offset:%d" % (WA + 4 * kk + 2, WA + 4 * kk + 3, kk * 1024 + 512))
    A("s_branch L_wotail")

    A("L_cons:")
    KA = 8; KT = 244; KD = [16, 80, 144, 16, 80, 144]; QB = 208; AC = 240; S0 = 248; S1 = 252
    A("v_xor_b32 v12, v%d, v%d\nv_lshlrev_b32 v12, 4, v12\nv_lshl_or_b32 v12, v%d, 9, v12" % (V_G, V_N, V_N))
    A("s_lshl_b32 s56, s61, 14\nv_add_u32 v%d, s56, v12" % KA)
    for k in range(1, 4):
        A("v_xor_b32 v%d, %d, v%d" % (KA + k, 64 * k, KA))
    A("s_add_u32 s46, s61, 1")
    A("s_lshl_b32 s62, s61, 2\nv_add_u32 v13, s62, v%d" % V_MISC)
    def kread(i):
        A.lds_wait_ge(L_LAND, 48, "s46", 12)
        for tt in range(2):
            for kk in range(8):
                r = KD[i] + 32 * tt + 4 * kk
                A("ds_read_b128 v[%d:%d], v%d offset:%d" % (r, r + 3, KA + (kk & 3), tt * 8192 + (kk >> 2) * 256))
        A("s_add_u32 s56, s46, 3\ns_min_u32 s56, s56, %d\nv_mov_b32 v12, s56\ns_add_u32 s46, s46, 4" % NSL)
        for k in range(4):
            A("v_xor_b32 v%d, 0x10000, v%d" % (KA + k, KA + k))
        A("s_waitcnt lgkmcnt(0)")
        A("ds_write_b32 v13, v12 offset:%d" % L_PROG)
    def kcomp(i):
        S = S0 if i < 4 else S1
        for kk in range(8):
            for tt in range(2):
                r = KD[i] + 32 * tt + 4 * kk
                A("v_mfma_f32_16x16x32_bf16 v[%d:%d], v[%d:%d], v[%d:%d], %s" % (AC + 4 * tt, AC + 4 * tt + 3, r, r + 3, QB + 4 * kk, QB + 4 * kk + 3, "0" if kk == 0 else "v[%d:%d]" % (AC + 4 * tt, AC + 4 * tt + 3)))
        A.mask(0x00030003 << (4 * (i & 3)))
        A.nop(5)
        for k in range(4):
            A("v_cndmask_b32 v%d, v%d, v%d, s[56:57]" % (S + k, S + k, AC + k))
        A("s_lshl_b64 s[56:57], s[56:57], 2")
        for k in range(4):
            A("v_cndmask_b32 v%d, v%d, v%d, s[56:57]" % (S + k, S + k, AC + 4 + k))
    for i in range(3):
        kread(i)
    A.lds_wait_ge(L_QF, 47, "1", 12, cached=False)
    A("v_and_b32 v12, 1, v%d\nv_lshlrev_b32 v12, 9, v12\nv_lshl_add_u32 v12, v%d, 4, v12\nv_add_u32 v12, v%d, v12" % (V_N, V_G, V_MISC))
    for kk in range(8):
        A("ds_read_b128 v[%d:%d], v12 offset:%d" % (QB + 4 * kk, QB + 4 * kk + 3, L_Q + kk * 64))
    A("s_waitcnt lgkmcnt(0)")
    for i in range(3):
        kcomp(i)
    kread(3); kcomp(3); kread(4); kcomp(4)
    A("s_cmp_gt_u32 s46, %d\ns_cbranch_scc1 L_kdone" % NSL)
    kread(5); kcomp(5)
    A("L_kdone:")
    A.stamp(9)
    A("v_lshrrev_b32 v16, 2, v%d\nv_lshlrev_b32 v16, 7, v16\nv_and_b32 v22, 2, v%d\nv_lshl_add_u32 v16, v22, 3, v16\nv_lshl_add_u32 v16, v%d, 2, v16" % (V_N, V_N, V_G))
    A("s_sub_u32 s44, s66, s65\ns_lshl_b32 s45, s61, 5\ns_sub_u32 s44, s44, s45\ns_sub_u32 s44, s44, 512\nv_mov_b32 v17, 0xff800000")
    for k in range(4):
        A("v_cmp_gt_u32 vcc, s44, v16\nv_add_u32 v16, 1, v16\ns_nop 0\nv_cndmask_b32 v%d, v17, v%d, vcc" % (S1 + k, S1 + k))
    for k in range(4):
        A("v_cvt_pk_bf16_f32 v%d, v%d, v%d" % (16 + k, S0 + 2 * k, S0 + 2 * k + 1))
    for k in range(4):
        A("v_lshlrev_b32 v%d, 16, v%d\nv_and_b32 v%d, 0xffff0000, v%d" % (S0 + 2 * k, 16 + k, S0 + 2 * k + 1, 16 + k))
    A("v_max3_f32 v16, v%d, v%d, v%d\nv_max3_f32 v16, v16, v%d, v%d\nv_max3_f32 v16, v16, v%d, v%d\nv_max_f32 v16, v16, v%d" % tuple(S0 + k for k in range(8)))
    for r in (2, 4, 8):
        A.nop(2)
        A("v_max_f32_dpp v16, v16, v16 row_ror:%d %s" % (r, DPP))
    A("v_and_b32 v17, 1, v%d\nv_lshl_add_u32 v18, v17, 2, v%d" % (V_N, V_MISC))
    A.mask(0x00030003, "exec")
    A("ds_max_f32 v18, v16 offset:%d" % L_MX)
    A.lds_signal_add(L_C1, 12)
    A.lds_wait_ge(L_C1, 47, "4", 12, cached=False)
    A("ds_read_b32 v16, v18 offset:%d\ns_waitcnt lgkmcnt(0)" % L_MX)
    for k in range(8):
        A("v_sub_f32 v%d, v%d, v16\nv_mul_f32 v%d, %s, v%d\nv_exp_f32 v%d, v%d" % (S0 + k, S0 + k, S0 + k, f32(C1), S0 + k, S0 + k, S0 + k))
    A("v_add_f32 v16, v%d, v%d" % (S0, S0 + 1))
    for k in range(2, 8):
        A("v_add_f32 v16, v16, v%d" % (S0 + k))
    for k in range(4):
        A("v_cvt_pk_bf16_f32 v%d, v%d, v%d" % (24 + k, S0 + 2 * k, S0 + 2 * k + 1))
    for r in (2, 4, 8):
        A("v_add_f32_dpp v16, v16, v16 row_ror:%d %s" % (r, DPP))
        A.nop(2)
    A("v_lshrrev_b32 v19, 2, v%d\nv_lshlrev_b32 v19, 8, v19\nv_mul_u32_u24 v14, %d, v17\nv_lshl_add_u32 v14, v%d, 4, v14\nv_add_u32 v14, v%d, v14" % (V_N, PSTR, V_G, V_MISC))
    A("v_lshl_add_u32 v19, v22, 2, v19\ns_lshl_b32 s62, s61, 6\nv_add3_u32 v19, v19, s62, v14")
    A("ds_write_b64 v19, v[24:25] offset:%d" % L_P)
    A("s_mov_b32 s44, 0x00ff00ff\ns_mov_b32 s45, s44\ns_mov_b64 exec, s[44:45]\nds_write_b64 v19, v[26:27] offset:%d\ns_mov_b64 exec, -1" % (L_P + 1024))
    A("v_lshlrev_b32 v19, 6, v17\nv_lshl_add_u32 v19, v%d, 2, v19\ns_lshl_b32 s62, s61, 4\nv_add3_u32 v19, v19, s62, v%d" % (V_G, V_MISC))
    A("s_mov_b64 exec, s[56:57]\nds_write_b32 v19, v16 offset:%d" % L_LSUM)
    A.lds_signal_add(L_C2, 12)
    VA = 8; VT = 16; VD = 24; PB = 40; OA = 96
    A("v_lshrrev_b32 v16, 2, v0\nv_and_b32 v18, 7, v16\ns_lshl_b32 s62, s61, 2\nv_xor_b32 v18, s62, v18\nv_lshlrev_b32 v18, 5, v18")
    A("v_lshl_or_b32 v18, v16, 9, v18\nv_and_b32 v16, 3, v0\nv_lshl_or_b32 v%d, v16, 3, v18" % VA)
    for tt in range(1, 4):
        A("v_xor_b32 v%d, %d, v%d" % (VA + tt, 32 * tt, VA))
    for k in range(16):
        A("v_mov_b32 v%d, 0" % (OA + k))
    A("v_and_b32 v17, 1, v%d\nv_lshlrev_b32 v112, 14, v17\nv_lshrrev_b32 v17, 1, v%d\nv_lshl_add_u32 v112, v17, 6, v112\nv_lshl_add_u32 v112, v%d, 4, v112" % (V_N, V_N, V_G))
    A("s_lshl_b32 s41, s32, 15\ns_lshl_b32 s56, s61, 8\ns_add_u32 s41, s41, s56\ns_add_u32 s41, s41, %d" % WS_OP)
    A("s_lshl_b32 s56, s33, 10\ns_add_u32 s40, s41, s56\ns_lshl_b32 s56, s67, 14\ns_add_u32 s41, s41, s56")
    A("v_lshrrev_b32 v16, 2, v0\nv_bfe_u32 v17, v0, 3, 2\nv_xor_b32 v17, s61, v17\nv_lshlrev_b32 v17, 5, v17\nv_lshl_or_b32 v17, v16, 7, v17\nv_and_b32 v16, 3, v0\nv_lshl_or_b32 v17, v16, 3, v17\nv_add_u32 v113, %d, v17" % WO_POS)
    A("v_mul_u32_u24 v114, 3072, v%d\nv_lshl_add_u32 v114, v%d, 4, v114" % (V_G, V_N))
    A("v_and_b32 v19, 3, v%d\nv_lshlrev_b32 v19, 4, v19\nv_and_b32 v20, 4, v%d\nv_lshl_or_b32 v19, v20, 1, v19\nv_and_b32 v20, 8, v%d\nv_lshl_or_b32 v19, v20, 3, v19\nv_lshl_or_b32 v19, v%d, 1, v19" % (V_N, V_N, V_N, V_G))
    A("s_lshl_b32 s56, s61, 7\nv_add3_u32 v115, v19, s56, v%d" % V_MISC)
    ap_base()
    A("s_lshl_b32 s56, s63, 8\ns_add_u32 s62, s62, s56\ns_lshl_b32 s56, s61, 6\ns_add_u32 s62, s62, s56")
    A("v_lshlrev_b32 v21, 4, v%d" % V_G)
    A.lds_wait_ge(L_C2, 47, "4", 12, cached=False)
    A.stamp(10)
    A("s_mov_b32 s46, %d\ns_mov_b32 s44, %d" % (NSL + 1, (NSL % RING) * 16384))
    A("L_vloop:")
    A("ds_read_b128 v[%d:%d], v14 offset:%d" % (PB, PB + 3, L_P))
    for tt in range(4):
        A("v_add_u32 v%d, s44, v%d" % (VT + tt, VA + tt))
    A.lds_wait_ge(L_LAND, 48, "s46", 12, sleep=0)
    for tt in range(4):
        A("ds_read_b64_tr_b16 v[%d:%d], v%d" % (VD + 4 * tt, VD + 4 * tt + 1, VT + tt))
        A("ds_read_b64_tr_b16 v[%d:%d], v%d offset:8192" % (VD + 4 * tt + 2, VD + 4 * tt + 3, VT + tt))
    A("v_mov_b32 v12, s46\nv_add_u32 v14, 64, v14\ns_add_u32 s44, s44, 16384\ns_and_b32 s44, s44, %d" % (MISC - 1))
    for tt in range(4):
        A("s_waitcnt lgkmcnt(%d)" % (6 - 2 * tt))
        A("v_mfma_f32_16x16x32_bf16 v[%d:%d], v[%d:%d], v[%d:%d], v[%d:%d]" % (OA + 4 * tt, OA + 4 * tt + 3, VD + 4 * tt, VD + 4 * tt + 3, PB, PB + 3, OA + 4 * tt, OA + 4 * tt + 3))
    A("ds_write_b32 v13, v12 offset:%d" % L_PROG)
    A("s_add_u32 s46, s46, 1\ns_cmp_le_u32 s46, %d\ns_cbranch_scc1 L_vloop" % (2 * NSL))
    for tt in range(1, 4):
        A.mask(0x00030003 << (2 * tt))
        for k in range(4):
            A("v_cndmask_b32 v%d, v%d, v%d, s[56:57]" % (OA + k, OA + k, OA + 4 * tt + k))
    A.tag4(OA, OA)
    A.mask(0x00ff00ff, "exec")
    A("buffer_store_dwordx4 v[%d:%d], v112, s[52:55], s40 offen sc1" % (OA, OA + 3))
    A("s_mov_b64 exec, -1")
    A.stamp(11)
    A.lds_wait_ge(L_WF, 47, "1", 12, cached=False)
    A("v_add_u32 v12, v21, v%d\nds_read_b128 v[40:43], v12 offset:%d" % (V_MISC, L_W))
    A.lds_wait_ge(L_LAND, 48, str(2 * NSL + 2), 20)
    for kk in range(8):
        A("ds_read_b64_tr_b16 v[%d:%d], v113 offset:%d" % (WA + 4 * kk, WA + 4 * kk + 1, kk * 4096))
        A("ds_read_b64_tr_b16 v[%d:%d], v113 offset:%d" % (WA + 4 * kk + 2, WA + 4 * kk + 3, kk * 4096 + 2048))
    A.gather([(114, 0), (114, 1024), (114, 2048)], 24, 20, "s41", sleep=1)
    A.stamp(12)
    A("s_waitcnt lgkmcnt(0)")
    for k in range(4):
        A("v_mul_f32 v%d, v40, v%d" % (24 + k, 24 + k))
    for i in range(1, 3):
        for k in range(4):
            A("v_fmac_f32 v%d, v%d, v%d" % (24 + k, 40 + i, 24 + 4 * i + k))
    A.swapreduce(24)
    A("v_cvt_pk_bf16_f32 v24, v24, v24\nds_write_b16 v115, v24 offset:%d" % L_O)
    A.lds_signal_add(L_C3, 20)
    A("L_wotail:")
    wo_tail()
    if stamps:
        A.stamp(13)
        A("s_cmp_lg_u32 s3, 4\ns_cbranch_scc1 L_end")
        A.stamp_flush([9, 10, 11, 12, 13])
    A("s_endpgm")

    A("L_service:")
    common_setup()
    A("s_sub_u32 s33, s2, %d\ns_lshr_b32 s33, s33, 3\ns_and_b32 s34, s33, 1" % (16 * NA))
    A("s_lshl_b32 s65, s35, 2\ns_lshr_b32 s56, s33, 1\ns_add_u32 s65, s65, s56")
    A("s_mov_b32 s40, s4\ns_mov_b32 s41, s5\ns_mov_b32 s42, 1792\ns_mov_b32 s43, 0x20000")
    A("s_cmp_lg_u32 s3, 0\ns_cbranch_scc1 L_s1")
    A("v_lshrrev_b32 v8, 5, v0\nv_and_b32 v9, 31, v0\nv_mul_u32_u24 v10, 896, v8\nv_lshl_add_u32 v10, v9, 4, v10")
    A("v_cmp_gt_u32 vcc, 28, v9\nv_mov_b32 v11, 0x1000\ns_nop 0\nv_cndmask_b32 v11, v11, v10, vcc")
    A("buffer_load_dwordx4 v[16:19], v11, s[40:43], 0 offen\nbuffer_load_dwordx4 v[20:23], v11, s[40:43], 0 offen offset:448")
    A("L_s1:")
    def dma7(vaddr, gstep, lds):
        A("s_mul_i32 s56, s3, 7168\ns_add_u32 m0, s56, %d" % lds)
        for j in range(7):
            if j: A("s_add_u32 m0, m0, 1024\ns_add_u32 s45, s45, %d" % gstep)
            else: A("s_nop 0")
            A("buffer_load_dwordx4 v%d, s[36:39], s45 offen nt lds" % vaddr)
    A("v_lshrrev_b32 v12, 3, v0\nv_and_b32 v13, 7, v0\nv_lshlrev_b32 v13, 4, v13\nv_lshl_add_u32 v14, v12, 13, v13\nv_mul_u32_u24 v12, 3584, v12\nv_add_u32 v15, v12, v13")
    A("s_mov_b32 s36, s10\ns_mov_b32 s37, s11\ns_mov_b32 s38, %d\ns_mov_b32 s39, 0x20000" % (448 * 8192))
    A("s_lshl_b32 s44, s35, 3\ns_add_u32 s44, s44, s33\ns_lshl_b32 s45, s44, 7\ns_mul_i32 s56, s3, %d\ns_add_u32 s45, s45, s56" % (56 * 8192))
    dma7(14, 8 * 8192, R_A)
    A("s_cmp_lt_u32 s35, 7\ns_cselect_b32 s38, %d, 0\ns_mov_b32 s36, s16\ns_mov_b32 s37, s17" % (448 * 3584))
    A("s_lshl_b32 s66, s65, 7\ns_mul_i32 s56, s3, %d\ns_add_u32 s66, s66, s56\ns_mov_b32 s45, s66" % (56 * 3584))
    dma7(15, 8 * 3584, R_B)
    A("s_lshl_b32 s56, s3, 7\ns_mul_i32 s57, s34, 896\ns_add_u32 s56, s56, s57")
    A("v_lshlrev_b32 v252, 3, v%d\nv_lshl_add_u32 v252, v%d, 1, v252\nv_mov_b32 v253, 0" % (V_N, V_G))
    A("buffer_load_short_d16_hi v253, v252, s[40:43], s56 offen")
    A("s_waitcnt lgkmcnt(0)")
    A.tags_setup()
    A("s_cmp_lg_u32 s3, 1\ns_cbranch_scc1 L_s2")
    A("v_lshl_add_u32 v9, v0, 4, v%d\nv_mov_b32 v24, 0x3f803f80\nv_mov_b32 v25, v24\nv_mov_b32 v26, v24\nv_mov_b32 v27, v24" % V_MISC)
    A("ds_write_b128 v9, v[24:27] offset:%d" % L_ONES)
    A("v_mov_b32 v28, 0\nv_mov_b32 v29, 0\nv_mov_b32 v30, 0\nv_mov_b32 v31, 0\nds_write_b128 v9, v[28:31] offset:%d" % L_H)
    A("L_s2:")
    A("s_cmp_lg_u32 s3, 0\ns_cbranch_scc1 L_s3")
    A("s_waitcnt vmcnt(15)")
    A.stamp(5)
    X = 24
    for i in range(8):
        A("v_lshlrev_b32 v%d, 16, v%d\nv_and_b32 v%d, 0xffff0000, v%d" % (X + 2 * i, 16 + i, X + 2 * i + 1, 16 + i))
    A("v_add_f32 v40, v%d, v%d\nv_mul_f32 v41, v%d, v%d\nv_fmac_f32 v41, v%d, v%d" % (X, X + 1, X, X, X + 1, X + 1))
    for i in range(2, 16):
        A("v_add_f32 v40, v40, v%d\nv_fmac_f32 v41, v%d, v%d" % (X + i, X + i, X + i))
    for r in (1, 2, 4, 8):
        A.nop(1)
        A("v_add_f32_dpp v40, v40, v40 row_ror:%d %s\nv_add_f32_dpp v41, v41, v41 row_ror:%d %s" % (r, DPP, r, DPP))
    A("v_mov_b32 v42, v40\nv_mov_b32 v43, v41")
    A.nop(2)
    A("v_permlane16_swap_b32 v40, v42\nv_permlane16_swap_b32 v41, v43")
    A("v_add_f32 v40, v40, v42\nv_add_f32 v41, v41, v43")
    A("\n".join(A.ln_stats_list(40, 41, 42, 43, 44)))
    for i in range(8):
        a, b = X + 2 * i, X + 2 * i + 1
        A("v_sub_f32 v%d, v%d, v42\nv_sub_f32 v%d, v%d, v42\nv_cvt_pk_bf16_f32 v44, v%d, v%d" % (a, a, b, b, a, b))
        A("v_lshlrev_b32 v%d, 16, v44\nv_and_b32 v%d, 0xffff0000, v44" % (a, b))
        A("v_mul_f32 v%d, v%d, v43\nv_mul_f32 v%d, v%d, v43\nv_cvt_pk_bf16_f32 v%d, v%d, v%d" % (a, a, b, b, 16 + i, a, b))
    A("v_add_u32 v10, v%d, v10" % V_MISC)
    A.mask(0x0fffffff, "exec")
    A("ds_write_b128 v10, v[16:19] offset:%d\nds_write_b128 v10, v[20:23] offset:%d" % (L_LN, L_LN + 448))
    A("s_mov_b64 exec, -1")
    A("L_s3:")
    A("v_lshrrev_b32 v9, 2, v%d\nv_lshl_add_u32 v9, v%d, 3, v9\nv_lshlrev_b32 v11, 7, v9\nv_and_b32 v10, 3, v0" % (V_N, V_G))
    A("s_waitcnt vmcnt(8) lgkmcnt(0)\ns_barrier")
    A.stamp(6)
    A("s_cmp_ge_u32 s3, 4\ns_cbranch_scc1 L_s4")
    BQ = 16; AQ = 72
    A("v_and_b32 v8, 1, v%d\nv_mul_u32_u24 v8, 896, v8\nv_lshl_add_u32 v8, v%d, 4, v8\nv_add_u32 v8, v%d, v8" % (V_N, V_G, V_MISC))
    A("v_lshl_add_u32 v12, v10, 3, v11\ns_lshl_b32 s56, s3, 5\nv_add_u32 v12, s56, v12")
    for kk in range(14):
        A("ds_read_b128 v[%d:%d], v8 offset:%d" % (BQ + 4 * kk, BQ + 4 * kk + 3, L_LN + kk * 64))
        A("ds_read_b64_tr_b16 v[%d:%d], v12 offset:%d" % (AQ + 4 * kk, AQ + 4 * kk + 1, R_A + kk * 4096))
        A("ds_read_b64_tr_b16 v[%d:%d], v12 offset:%d" % (AQ + 4 * kk + 2, AQ + 4 * kk + 3, R_A + kk * 4096 + 512))
    A("s_waitcnt lgkmcnt(0)")
    for kk in range(14):
        A("v_mfma_f32_16x16x32_bf16 v[128:131], v[%d:%d], v[%d:%d], %s" % (AQ + 4 * kk, AQ + 4 * kk + 3, BQ + 4 * kk, BQ + 4 * kk + 3, "0" if kk == 0 else "v[128:131]"))
    A("v_and_b32 v16, 1, v%d\nv_lshlrev_b32 v16, 14, v16\nv_lshl_add_u32 v16, v%d, 4, v16" % (V_N, V_G))
    A("s_lshl_b32 s45, s44, 8\ns_lshl_b32 s56, s3, 6\ns_add_u32 s45, s45, s56\ns_add_u32 s45, s45, %d" % WS_Q)
    A.nop(3)
    A("v_cvt_pk_bf16_f32 v12, v128, v129\nv_cvt_pk_bf16_f32 v13, v130, v131")
    A("v_lshl_or_b32 v128, v12, 16, v%d\nv_and_b32 v129, 0xffff0000, v12\nv_or_b32 v129, v129, v%d" % (V_TAG, V_TAG + 1))
    A("v_lshl_or_b32 v130, v13, 16, v%d\nv_and_b32 v131, 0xffff0000, v13\nv_or_b32 v131, v131, v%d" % (V_TAG + 2, V_TAG + 3))
    A.mask(0x00030003, "exec")
    A("buffer_store_dwordx4 v[128:131], v16, s[52:55], s45 offen sc1")
    A("s_mov_b64 exec, -1")
    A.stamp(7)
    A("L_s4:")
    A("s_cmp_lt_u32 s35, 7\ns_cbranch_scc1 L_s5")
    if stamps:
        A("s_cmp_lg_u32 s3, 0\ns_cbranch_scc1 L_end")
        A.stamp_flush([0, 5, 6, 7])
    A("s_cmp_lg_u32 s2, 255\ns_cbranch_scc1 L_end\ns_cmp_lg_u32 s3, 0\ns_cbranch_scc1 L_end")
    A("v_and_b32 v8, 1, v0\nv_mul_u32_u24 v8, %d, v8\ns_mov_b32 s45, %d" % (28 * 1792, WS_FP))
    A.gather([(8, 0)], 16, 10, "s45", sleep=32)
    A("s_mov_b64 exec, 1\nv_mov_b32 v8, 0\nbuffer_store_dwordx4 v[%d:%d], v8, s[52:55], 0 offen offset:%d" % (V_TAG, V_TAG + 3, WS_E))
    A("s_endpgm")
    A("L_s5:")
    A("s_barrier")
    A("s_mov_b32 s36, s18\ns_mov_b32 s37, s19\ns_mov_b32 s45, s66")
    dma7(15, 8 * 3584, R_A)
    A("v_and_b32 v12, 1, v0\nv_lshl_add_u32 v12, v12, 3, v11\ns_lshl_b32 s56, s3, 4\nv_add_u32 v12, s56, v12\nv_add_u32 v13, %d, v12" % R_B)
    A("v_cmp_gt_u32 vcc, 2, v10")
    A.nop(2)
    A("v_cndmask_b32 v12, v12, v13, vcc")
    A("s_waitcnt vmcnt(0)\ns_barrier")
    GA = 128
    for kk in range(14):
        A("ds_read_b64_tr_b16 v[%d:%d], v12 offset:%d" % (GA + 4 * kk, GA + 4 * kk + 1, kk * 4096))
        A("ds_read_b64_tr_b16 v[%d:%d], v12 offset:%d" % (GA + 4 * kk + 2, GA + 4 * kk + 3, kk * 4096 + 512))
    A("s_waitcnt lgkmcnt(0)\ns_barrier")
    A("s_mov_b32 s36, s20\ns_mov_b32 s37, s21\ns_mov_b32 s38, %d" % (1792 * 896))
    A("s_mul_i32 s45, s65, 57344\ns_mul_i32 s56, s3, 7168\ns_add_u32 s45, s45, s56\nv_lshlrev_b32 v14, 4, v0")
    dma7(14, 1024, R_A)
    A("v_mul_u32_u24 v12, 896, v9\nv_lshl_add_u32 v12, v10, 3, v12\ns_lshl_b32 s56, s3, 7\nv_add_u32 v12, s56, v12")
    A("s_mul_i32 s45, s34, 28672\ns_lshl_b32 s56, s3, 8\ns_add_u32 s45, s45, s56\ns_add_u32 s45, s45, %d" % WS_AP)
    A("v_mul_u32_u24 v16, 7168, v%d\nv_lshl_add_u32 v16, v%d, 4, v16\nv_add_u32 v17, 3584, v16" % (V_G, V_N))
    A("s_lshl_b32 s56, s3, 7\nv_add3_u32 v13, v252, s56, v%d" % V_MISC)
    A("v_lshlrev_b32 v14, 4, v%d\nv_mov_b32 v15, %d\nv_and_b32 v9, 1, v%d\nv_cmp_eq_u32 vcc, 1, v9\nv_add_u32 v22, v14, v%d" % (V_G, L_ONES - L_H, V_N, V_MISC))
    A.nop(1)
    A("v_cndmask_b32 v14, v14, v15, vcc\nv_add_u32 v14, v%d, v14" % V_MISC)
    A("v_lshl_add_u32 v15, v0, 4, v%d" % V_MISC)
    A("s_lshl_b32 s56, s3, 4\nv_lshl_add_u32 v18, v%d, 3, v%d\nv_add_u32 v18, s56, v18" % (V_G, V_MISC))
    A("s_mul_i32 s62, s34, 28\ns_add_u32 s62, s62, s65\ns_mul_i32 s62, s62, 1792\ns_lshl_b32 s56, s3, 8\ns_add_u32 s62, s62, s56\ns_add_u32 s62, s62, %d" % WS_FP)
    A("v_lshlrev_b32 v19, 6, v%d\nv_lshl_add_u32 v19, v%d, 4, v19" % (V_N, V_G))
    A("s_waitcnt vmcnt(0)\ns_barrier")
    DA = 184
    A("s_cmp_eq_u32 s3, 7\ns_cbranch_scc1 L_s6")
    for t in range(4):
        for kk in range(2):
            r = DA + 8 * t + 4 * kk
            A("ds_read_b64_tr_b16 v[%d:%d], v12 offset:%d" % (r, r + 1, t * 32 + kk * 32 * 896))
            A("ds_read_b64_tr_b16 v[%d:%d], v12 offset:%d" % (r + 2, r + 3, t * 32 + kk * 32 * 896 + 4 * 896))
    A.stamp(17)
    A.mask(0x00010001, "exec")
    A.gather([(16, 0)], 24, 20, "s45", sleep=8)
    A("s_mov_b64 exec, -1")
    A.gather([(16, 0), (16, 1792), (17, 0), (17, 1792)], 24, 20, "s45", sleep=1)
    A.stamp(14)
    for k in range(4):
        A("v_add_f32 v%d, v%d, v%d\nv_add_f32 v%d, v%d, v%d" % (24 + k, 24 + k, 28 + k, 32 + k, 32 + k, 36 + k))
    for k in range(4):
        A("v_add_f32 v%d, v%d, v%d" % (24 + k, 24 + k, 32 + k))
    A.swapreduce(24)
    A("v_cvt_pk_bf16_f32 v24, v24, v24\nv_lshlrev_b32 v24, 16, v24\nv_add_f32 v24, v253, v24\nv_cvt_pk_bf16_f32 v24, v24, v24")
    A("ds_write_b16 v13, v24 offset:%d" % L_H)
    A("L_s6:")
    A("s_waitcnt lgkmcnt(0)\ns_barrier")
    A.stamp(18)
    HB = 40
    A("ds_read_b128 v[28:31], v15 offset:%d" % L_H)
    for kk in range(14):
        A("ds_read_b128 v[%d:%d], v14 offset:%d" % (HB + 4 * kk, HB + 4 * kk + 3, L_H + kk * 64))
    side = ["s_mov_b32 s56, 0x3f803f80"]
    side += ["v_dot2_f32_bf16 v32, v28, s56, 0", "v_dot2_f32_bf16 v33, v28, v28, 0"]
    for k in range(1, 4):
        side += ["v_dot2_f32_bf16 v32, v%d, s56, v32" % (28 + k), "v_dot2_f32_bf16 v33, v%d, v%d, v33" % (28 + k, 28 + k)]
    side += ["s_nop 2"]
    for r in (1, 2, 4, 8):
        side += ["v_add_f32_dpp v32, v32, v32 row_ror:%d %s" % (r, DPP), "v_add_f32_dpp v33, v33, v33 row_ror:%d %s" % (r, DPP), "s_nop 0"]
    side += ["v_mov_b32 v34, v32", "v_mov_b32 v35, v33", "s_nop 1", "v_permlane16_swap_b32 v32, v34", "v_permlane16_swap_b32 v33, v35",
             "v_add_f32 v32, v32, v34", "v_add_f32 v33, v33, v35", "v_mov_b32 v34, v32", "v_mov_b32 v35, v33", "s_nop 1",
             "v_permlane32_swap_b32 v32, v34", "v_permlane32_swap_b32 v33, v35", "v_add_f32 v32, v32, v34", "v_add_f32 v33, v33, v35"]
    side += A.ln_stats_list(32, 33, 34, 35, 36) + ["v_sub_f32 v34, 0, v34"]
    per = -(-len(side) // 14)
    for kk in range(14):
        A("s_waitcnt lgkmcnt(%d)" % min(15, 13 - kk))
        A("v_mfma_f32_16x16x32_bf16 v[24:27], v[%d:%d], v[%d:%d], %s" % (GA + 4 * kk, GA + 4 * kk + 3, HB + 4 * kk, HB + 4 * kk + 3, "0" if kk == 0 else "v[24:27]"))
        A("\n".join(side[kk * per:(kk + 1) * per]))
    A.nop(max(2, 8 - len(side[13 * per:])))
    for k in range(4):
        A("v_fmac_f32_dpp v%d, v%d, v34 quad_perm:[1,1,3,3] %s" % (24 + k, 24 + k, DPP))
    for k in range(4):
        A("v_mul_f32 v%d, v%d, v35" % (24 + k, 24 + k))
    A("v_cvt_pk_bf16_f32 v32, v24, v25\nv_cvt_pk_bf16_f32 v33, v26, v27\nv_mov_b32 v34, v32\nv_mov_b32 v35, v33")
    A.nop(2)
    A("v_permlane32_swap_b32 v32, v34\nv_permlane32_swap_b32 v33, v35")
    A("v_lshlrev_b32 v24, 16, v32\nv_and_b32 v25, 0xffff0000, v32\nv_lshlrev_b32 v26, 16, v33\nv_and_b32 v27, 0xffff0000, v33")
    ga = 2 * math.sqrt(2 / math.pi) * math.log2(math.e); gb = ga * 0.044715
    A("v_mov_b32 v36, %s\ns_mov_b32 s56, %s" % (f32(-ga), f32(-gb)))
    for k in range(4): A("v_mul_f32 v%d, v%d, v%d" % (28 + k, 24 + k, 24 + k))
    for k in range(4): A("v_fma_f32 v%d, v%d, s56, v36" % (28 + k, 28 + k))
    for k in range(4): A("v_mul_f32 v%d, v%d, v%d" % (28 + k, 28 + k, 24 + k))
    for k in range(4): A("v_exp_f32 v%d, v%d" % (28 + k, 28 + k))
    for k in range(4): A("v_add_f32 v%d, 1.0, v%d" % (28 + k, 28 + k))
    for k in range(4): A("v_rcp_f32 v%d, v%d" % (28 + k, 28 + k))
    for k in range(4): A("v_mul_f32 v%d, v%d, v%d" % (28 + k, 28 + k, 24 + k))
    A("v_cvt_pk_bf16_f32 v32, v28, v29\nv_cvt_pk_bf16_f32 v33, v30, v31")
    A("v_lshlrev_b32 v24, 16, v34\nv_and_b32 v25, 0xffff0000, v34\nv_lshlrev_b32 v26, 16, v35\nv_and_b32 v27, 0xffff0000, v35")
    A("v_lshlrev_b32 v28, 16, v32\nv_and_b32 v29, 0xffff0000, v32\nv_lshlrev_b32 v30, 16, v33\nv_and_b32 v31, 0xffff0000, v33")
    for k in range(4): A("v_mul_f32 v%d, v%d, v%d" % (28 + k, 28 + k, 24 + k))
    A("v_cvt_pk_bf16_f32 v32, v28, v29\nv_cvt_pk_bf16_f32 v33, v30, v31")
    A("s_mov_b64 exec, 0x00010001\nds_write_b64 v18, v[32:33] offset:%d\ns_mov_b64 exec, -1" % L_ACT)
    A("s_waitcnt lgkmcnt(0)\ns_barrier")
    A.stamp(19)
    A("s_cmp_eq_u32 s3, 7\ns_cbranch_scc1 L_final")
    A("ds_read_b128 v[24:27], v22 offset:%d\nds_read_b128 v[28:31], v22 offset:%d" % (L_ACT, L_ACT + 64))
    for kk in range(2):
        A("s_waitcnt lgkmcnt(%d)" % (1 - kk))
        for t in range(4):
            r = DA + 8 * t + 4 * kk
            A("v_mfma_f32_16x16x32_bf16 v[%d:%d], v[%d:%d], v[%d:%d], %s" % (96 + 4 * t, 99 + 4 * t, r, r + 3, 24 + 4 * kk, 27 + 4 * kk, "0" if kk == 0 else "v[%d:%d]" % (96 + 4 * t, 99 + 4 * t)))
    A.nop(4)
    for t in range(1, 4):
        A.mask(0x00010001 << t)
        for k in range(4):
            A("v_cndmask_b32 v%d, v%d, v%d, s[56:57]" % (96 + k, 96 + k, 96 + 4 * t + k))
    A.tag4(96, 96)
    A.mask(0x000f000f, "exec")
    A("buffer_store_dwordx4 v[96:99], v19, s[52:55], s62 offen sc1")
    if stamps:
        A.stamp(15)
        A("s_cmp_lg_u32 s3, 0\ns_cbranch_scc1 L_end")
        A.stamp_flush([0, 5, 6, 7, 17, 14, 18, 19, 15])
    A("s_endpgm")
    A("L_final:")
    A("s_mul_i32 s45, s34, %d\ns_lshl_b32 s56, s65, 6\ns_add_u32 s45, s45, s56\ns_add_u32 s45, s45, %d" % (28 * 1792, WS_FP))
    A("v_lshrrev_b32 v10, 2, v0\nv_and_b32 v15, 3, v0\nv_mul_u32_u24 v8, 1792, v10\nv_lshl_add_u32 v8, v15, 4, v8")
    A("v_add_u32 v9, %d, v8\nv_cmp_gt_u32 vcc, 12, v10" % (16 * 1792))
    A("v_lshlrev_b32 v16, 3, v15\nv_lshl_add_u32 v16, v%d, 1, v16\ns_lshl_b32 s56, s65, 5\nv_add3_u32 v17, v16, s56, v%d" % (V_G, V_MISC))
    A("v_cndmask_b32 v9, v8, v9, vcc\nv_cndmask_b32 v11, 0, 1.0, vcc")
    A("v_mov_b32 v18, 0\nds_read_u16_d16_hi v18, v17 offset:%d" % L_H)
    A("s_mul_i32 s57, s34, 896\ns_add_u32 s46, s56, s57\ns_mov_b32 s40, s22\ns_mov_b32 s41, s23")
    A.gather([(8, 0), (9, 0)], 24, 20, "s45", sleep=0)
    for k in range(4):
        A("v_fmac_f32 v%d, v%d, v11" % (24 + k, 28 + k))
    A.swapreduce(24)
    for r in (4, 8):
        A.nop(2)
        A("v_add_f32_dpp v24, v24, v24 row_ror:%d %s" % (r, DPP))
    A("s_waitcnt lgkmcnt(0)")
    A("v_cvt_pk_bf16_f32 v24, v24, v24\nv_lshlrev_b32 v24, 16, v24\nv_add_f32 v24, v18, v24\nv_cvt_pk_bf16_f32 v24, v24, v24")
    A.mask(0x000f000f, "exec")
    A("buffer_store_short v24, v16, s[40:43], s46 offen")
    if stamps:
        A.stamp(20)
        A("s_waitcnt vmcnt(0)")
        A.stamp(16)
        A.stamp_flush([20, 16])
    A("L_end:\ns_endpgm")
    A.L.append('.section .rodata,"a"\n.p2align 6\n.amdhsa_kernel %s_kernel' % NAME)
    A.L.append("  .amdhsa_next_free_vgpr 256\n  .amdhsa_next_free_sgpr 100\n  .amdhsa_accum_offset 256")
    A.L.append("  .amdhsa_group_segment_fixed_size 0\n  .amdhsa_kernarg_size 96\n  .amdhsa_user_sgpr_count 2\n  .amdhsa_user_sgpr_kernarg_segment_ptr 1\n  .amdhsa_system_sgpr_workgroup_id_x 1\n  .amdhsa_float_denorm_mode_32 3\n.end_amdhsa_kernel")
    return "\n".join(A.L) + "\n"

if __name__ == "__main__":
    out = sys.argv[1]
    kw = {}
    for a in sys.argv[2:]:
        k, v = a.split("="); kw[k] = int(v)
    open(out, "w").write(build(**kw))
```

```python
import sys, math, struct
NAME = "sequential_preLN__gqa_block_cached__geglu_ffn__decode"
HEADER = open("cdna_kernels/%s.s.ref" % NAME).read().split("; Override launch")[0]

NA = 12
NSL = 22
WS_E = 0
WS_Q = 0x1000
WS_ML = 0x9000
WS_AP = 0xA000
WS_OP = 0x20000
WS_FP = 0xA0000
WS_END = 0xC0000
STAMP_OFF = 128 << 20
RING = 8
MISC = RING * 16384
L_Q = 0; L_P = 1024; PSTR = 1536; L_O = 4096; L_LSUM = 4608; L_MX = 4736; L_W = 4752
L_LAND = 4816; L_QF = 4820; L_C1 = 4824; L_C2 = 4828; L_WF = 4832; L_C3 = 4836
L_PROG = 4848
R_A = 0; R_B = 57344
L_LN = 0; L_H = 2048; L_ONES = 3072; L_ACT = 4096; L_SO = 4352; L_SW = 5376
LDS_TOTAL = MISC + 8192
TAGM = 0x3ff
SPIN = 1 << 17
V_G = 1; V_N = 2; V_MISC = 3; V_TAG = 4
DPP = "row_mask:0xf bank_mask:0xf"
C1 = 0.0625 * math.log2(math.e)

def f32(x): return "0x%08x" % struct.unpack("<I", struct.pack("<f", x))[0]

class Gen:
    def __init__(self, stamps):
        self.L = []; self.uid = 0; self.stamps = stamps
    def __call__(self, s):
        for line in s.split("\n"):
            line = line.strip()
            if line: self.L.append(("" if line.endswith(":") else "    ") + line)
    def lab(self, p="L"):
        self.uid += 1
        return "%s_%d" % (p, self.uid)
    def nop(self, n):
        while n > 0:
            k = min(n, 16); self("s_nop %d" % (k - 1)); n -= k
    def mask(self, m32, dst="s[56:57]"):
        self("s_mov_b32 s56, 0x%08x\ns_mov_b32 s57, s56" % m32)
        if dst == "exec": self("s_mov_b64 exec, s[56:57]")
    def stamp(self, idx):
        if not self.stamps: return
        self("s_memrealtime s[%d:%d]\ns_waitcnt lgkmcnt(0)" % (68 + 2 * (idx % 16), 69 + 2 * (idx % 16)))
    def stamp_flush(self, idxs):
        if not self.stamps: return
        if self.stamps == 2:
            DBGMAP = {0: 0, 1: 1, 4: 2, 5: 3, 6: 4, 7: 5, 8: 6, 10: 7, 11: 8, 12: 9, 13: 10, 14: 11, 19: 12, 15: 13, 16: 14, 17: 15}
            self("s_mov_b64 exec, 1\nv_mov_b32 v255, 0")
            for idx in idxs:
                if idx not in DBGMAP: continue
                if idx == 0: self("s_not_b32 s68, s68")
                self("v_mov_b32 v250, s%d" % (68 + 2 * (idx % 16)))
                self("global_atomic_umax v255, v250, s[24:25] offset:%d\ns_nop 1" % (DBGMAP[idx] * 4))
            self("s_mov_b64 exec, -1")
            return
        self("s_mov_b64 exec, 1\ns_mul_i32 s60, s2, 256\ns_add_u32 s60, s60, %d\nv_mov_b32 v255, s60" % STAMP_OFF)
        for idx in idxs:
            self("v_mov_b32 v250, s%d\nv_mov_b32 v251, s%d" % (68 + 2 * (idx % 16), 69 + 2 * (idx % 16)))
            self("global_store_dwordx2 v255, v[250:251], s[26:27] offset:%d\ns_nop 1" % (idx * 8))
        self("s_mov_b64 exec, -1")
    def lds_wait_ge(self, off, sreg, target, vt, cached=True, sleep=1):
        d = self.lab("Lw"); l = self.lab("Lw")
        if cached:
            self("s_cmp_ge_u32 s%d, %s\ns_cbranch_scc1 %s" % (sreg, target, d))
        self("%s:" % l)
        self("ds_read_b32 v%d, v%d offset:%d\ns_waitcnt lgkmcnt(0)" % (vt, V_MISC, off))
        self("v_readfirstlane_b32 s%d, v%d\ns_cmp_ge_u32 s%d, %s\ns_cbranch_scc1 %s" % (sreg, vt, sreg, target, d))
        if sleep: self("s_sleep %d" % sleep)
        self("s_sub_u32 s64, s64, 1\ns_cbranch_scc0 %s\ns_mov_b32 s64, 0" % l)
        self("%s:" % d)
    def lds_signal_add(self, off, vt):
        self("s_mov_b64 exec, 1\nv_mov_b32 v%d, 1\nds_add_u32 v%d, v%d offset:%d\ns_mov_b64 exec, -1" % (vt, V_MISC, vt, off))
    def gather(self, offs, vd, vt, soff, sleep=2):
        l = self.lab("Lg"); d = self.lab("Lg")
        self("s_mov_b32 s58, 0\n%s:" % l)
        for i, (va, oo) in enumerate(offs):
            self("buffer_load_dwordx4 v[%d:%d], v%d, s[52:55], %s offen offset:%d sc1" % (vd + 4 * i, vd + 4 * i + 3, va, soff, oo))
        for i in range(len(offs)):
            self("s_waitcnt vmcnt(%d)" % (len(offs) - 1 - i))
            for k in range(4):
                self("v_xor_b32 v%d, s%d, v%d" % (vd + 4 * i + k, 28 + k, vd + 4 * i + k))
            if i == 0:
                self("v_or3_b32 v%d, v%d, v%d, v%d\nv_or_b32 v%d, v%d, v%d" % (vt, vd, vd + 1, vd + 2, vt, vt, vd + 3))
            else:
                self("v_or3_b32 v%d, v%d, v%d, v%d" % (vt, vt, vd + 4 * i, vd + 4 * i + 1))
                self("v_or3_b32 v%d, v%d, v%d, v%d" % (vt, vt, vd + 4 * i + 2, vd + 4 * i + 3))
        self("v_and_b32 v%d, %d, v%d\nv_cmp_ne_u32 vcc, 0, v%d\ns_cbranch_vccz %s" % (vt, TAGM, vt, vt, d))
        if sleep: self("s_sleep %d" % sleep)
        self("s_add_u32 s58, s58, 1\ns_cmp_lt_u32 s58, %d\ns_cbranch_scc1 %s\n%s:" % (SPIN, l, d))
    def tag4(self, vs, vd):
        for k in range(4):
            self("v_and_or_b32 v%d, v%d, s59, v%d" % (vd + k, vs + k, V_TAG + k))
    def swapreduce(self, v):
        self.nop(2)
        self("v_permlane16_swap_b32 v%d, v%d\nv_permlane16_swap_b32 v%d, v%d" % (v, v + 1, v + 2, v + 3))
        self("v_add_f32 v%d, v%d, v%d\nv_add_f32 v%d, v%d, v%d" % (v, v, v + 1, v + 2, v + 2, v + 3))
        self.nop(2)
        self("v_permlane32_swap_b32 v%d, v%d" % (v, v + 2))
        self("v_add_f32 v%d, v%d, v%d" % (v, v, v + 2))
    def ln_stats_list(self, vs, vq, vm, vr, t):
        return ["v_mul_f32 v%d, %s, v%d" % (vs, f32(1.0 / 448), vs), "v_mul_f32 v%d, %s, v%d" % (vq, f32(1.0 / 448), vq),
                "v_fma_f32 v%d, -v%d, v%d, v%d" % (vq, vs, vs, vq), "v_max_f32 v%d, 0, v%d" % (vq, vq),
                "v_cvt_pk_bf16_f32 v%d, v%d, v%d" % (t, vs, vq),
                "v_and_b32 v%d, 0xffff0000, v%d" % (vq, t), "v_lshlrev_b32 v%d, 16, v%d" % (vm, t),
                "v_add_f32 v%d, %s, v%d" % (vq, f32(1e-5), vq), "v_cvt_pk_bf16_f32 v%d, v%d, v%d" % (t, vq, vq),
                "v_lshlrev_b32 v%d, 16, v%d" % (vq, t), "v_sqrt_f32 v%d, v%d" % (vq, vq), "s_nop 0",
                "v_cvt_pk_bf16_f32 v%d, v%d, v%d" % (t, vq, vq), "v_lshlrev_b32 v%d, 16, v%d" % (vq, t),
                "v_rcp_f32 v%d, v%d" % (vr, vq), "s_nop 0"]
    def tags_setup(self):
        for k in range(4):
            self("s_add_u32 s%d, s%d, 1\ns_and_b32 s%d, s%d, %d\nv_mov_b32 v%d, s%d" % (28 + k, 28 + k, 28 + k, 28 + k, TAGM, V_TAG + k, 28 + k))

def build(stamps=0, win=48, qp=8, qslp=16, fast=1):
    A = Gen(stamps)
    A.L.append(HEADER.rstrip())
    A.L.append("; @launch grid=(256,1,1) block=(512,1,1) lds=%d" % LDS_TOTAL)
    A.L.append('.amdgcn_target "amdgcn-amd-amdhsa--gfx950"')
    A.L.append(".text\n.globl %s_kernel\n.p2align 8\n.type %s_kernel,@function\n%s_kernel:" % (NAME, NAME, NAME))
    A("s_cmp_ge_u32 s2, 256\ns_cbranch_scc1 L_end")
    A("s_load_dwordx16 s[4:19], s[0:1], 0\ns_load_dwordx8 s[20:27], s[0:1], 64")
    A.stamp(0)
    A("v_lshrrev_b32 v1, 6, v0\nv_and_b32 v0, 63, v0\nv_readfirstlane_b32 s3, v1")
    A("s_and_b32 s32, s2, 15\ns_lshr_b32 s33, s2, 4\ns_lshr_b32 s34, s32, 3\ns_and_b32 s35, s32, 7")
    A("v_mov_b32 v%d, %d\ns_mov_b32 s64, %d" % (V_MISC, MISC, 1 << 20))
    A("s_cmp_ge_u32 s33, %d\ns_cbranch_scc1 L_service" % NA)
    A("s_mul_i32 s65, s33, 43691\ns_add_u32 s66, s65, 43691\ns_lshr_b32 s65, s65, 6\ns_lshr_b32 s66, s66, 6")
    for a in range(NA + 1): assert (a * 43691) >> 6 == a * 8192 // NA
    A("s_cmp_lg_u32 s3, 1\ns_cbranch_scc1 L_notloader")
    A("s_setprio 3")
    A("v_lshrrev_b32 v1, 5, v0\nv_and_b32 v2, 31, v0\nv_xor_b32 v4, v2, v1\nv_lshlrev_b32 v4, 4, v4\nv_lshl_or_b32 v8, v1, 9, v4")
    for j in range(1, 8):
        A("v_xor_b32 v%d, %d, v8" % (8 + j, 32 * j))
    A("s_lshl_b32 s45, s32, 22\ns_lshl_b32 s44, s65, 9\ns_add_u32 s44, s44, s45\ns_lshl_b32 s38, s66, 9\ns_add_u32 s38, s38, s45")
    A("s_mov_b32 s45, s44\ns_mov_b32 s46, 0\ns_mov_b32 s47, 0\ns_mov_b32 s48, 0\ns_mov_b32 s50, 3\ns_mov_b32 m0, 0")
    A("s_mov_b32 s39, 0x20000")
    A("s_waitcnt lgkmcnt(0)")
    A("s_mov_b32 s36, s6\ns_mov_b32 s37, s7")
    W = win
    lag = W // 16 - 1
    def land(k):
        A("s_sub_i32 s56, s46, %d\ns_max_i32 s48, s48, s56\nv_mov_b32 v20, s48\nds_write_b32 v%d, v20 offset:%d" % (k, V_MISC, L_LAND))
    A("L_slot:")
    A("s_add_u32 s56, s47, %d\ns_cmp_lt_u32 s46, s56\ns_cbranch_scc0 L_waitfree" % RING)
    A("L_go:")
    A("s_waitcnt vmcnt(%d)" % (W - 8))
    for j in range(16):
        if j == 8:
            A("s_waitcnt vmcnt(%d)" % (W - 8))
            land(lag)
        A("buffer_load_dwordx4 v%d, s[36:39], s45 offen nt lds" % (8 + j % 8))
        A("s_add_u32 m0, m0, 1024\ns_add_u32 s45, s45, 1024")
    A("s_and_b32 m0, m0, %d" % (MISC - 1))
    A("s_add_u32 s46, s46, 1\ns_cmp_lg_u32 s46, s50\ns_cbranch_scc1 L_slot")
    A("s_cmp_lg_u32 s46, 3\ns_cbranch_scc1 L_evV")
    A("s_barrier\ns_mov_b32 s50, %d\ns_branch L_slot" % NSL)
    A("L_evV:\ns_cmp_lg_u32 s46, %d\ns_cbranch_scc1 L_ldone" % NSL)
    A.stamp(1)
    A("v_lshlrev_b32 v4, 1, v1\nv_xor_b32 v4, v2, v4\nv_lshlrev_b32 v4, 4, v4\nv_lshl_or_b32 v8, v1, 9, v4")
    for j in range(1, 8):
        A("v_xor_b32 v%d, %d, v8" % (8 + j, 64 * (j & 3)))
    A("s_mov_b32 s36, s8\ns_mov_b32 s37, s9\ns_mov_b32 s45, s44\ns_mov_b32 s50, %d\ns_branch L_slot" % (2 * NSL))
    A("L_ldone:")
    A.stamp(3)
    for k in range(lag, -1, -1):
        A("s_waitcnt vmcnt(%d)" % (16 * k))
        land(k)
    A.stamp(4)
    A.stamp_flush([0, 1, 3, 4])
    A("s_endpgm")
    A("L_waitfree:")
    def prog_check():
        A("ds_read_b128 v[20:23], v%d offset:%d\ns_waitcnt lgkmcnt(0)" % (V_MISC, L_PROG))
        A("v_min3_u32 v20, v20, v21, v22\nv_min_u32 v20, v20, v23\ns_nop 0\nv_readfirstlane_b32 s47, v20")
        A("s_add_u32 s56, s47, %d\ns_cmp_lt_u32 s46, s56\ns_cbranch_scc1 L_go" % RING)
    for k in range(lag, -1, -1):
        prog_check()
        A("s_waitcnt vmcnt(%d)" % (16 * k))
        land(k)
    A("L_wf2:")
    prog_check()
    A("s_sleep 1\ns_sub_u32 s64, s64, 1\ns_cbranch_scc0 L_wf2\ns_mov_b32 s64, 0\ns_branch L_go")

    def common_setup():
        A("v_lshrrev_b32 v%d, 4, v0\nv_and_b32 v%d, 15, v0" % (V_G, V_N))
        A("s_waitcnt lgkmcnt(0)")
        A("s_load_dwordx4 s[28:31], s[26:27], %d" % WS_E)
        A("s_mov_b32 s52, s26\ns_mov_b32 s53, s27\ns_mov_b32 s54, %d\ns_mov_b32 s55, 0x20000" % WS_END)
        A("s_mov_b32 s59, %d" % (0xffffffff & ~TAGM))
    A("L_notloader:")
    common_setup()
    A("s_cmp_lg_u32 s3, 3\ns_cbranch_scc1 L_noinit")
    A("v_mov_b32 v8, 0\nv_lshl_add_u32 v9, v0, 2, v%d" % V_MISC)
    A("s_mov_b64 exec, 0xff\nds_write_b32 v9, v8 offset:%d" % L_LAND)
    A("s_mov_b64 exec, 0xf\nds_write_b32 v9, v0 offset:%d" % L_PROG)
    A("s_mov_b64 exec, 0x3\nv_mov_b32 v10, 0xff800000\nds_write_b32 v9, v10 offset:%d" % L_MX)
    A("s_waitcnt lgkmcnt(0)\ns_barrier\ns_endpgm")
    A("L_noinit:")
    A("s_sub_u32 s61, s3, 4")
    A("s_waitcnt lgkmcnt(0)")
    A.tags_setup()
    A("s_mov_b32 s48, 0\ns_barrier")
    A("s_cmp_ge_u32 s3, 4\ns_cbranch_scc1 L_cons")
    A("s_cmp_eq_u32 s3, 2\ns_cbranch_scc1 L_end")
    A("s_lshl_b32 s45, s34, 14\ns_lshl_b32 s46, s35, 11\ns_add_u32 s45, s45, s46\ns_add_u32 s45, s45, %d" % WS_Q)
    A("v_lshlrev_b32 v16, 4, v0")
    A.lds_wait_ge(L_LAND, 48, str(qp), 17)
    A.stamp(7)
    A.gather([(16, 0), (16, 1024)], 20, 17, "s45", sleep=qslp)
    A("s_mov_b32 s56, 0x07060302")
    for i in range(4):
        A("v_perm_b32 v%d, v%d, v%d, s56" % (28 + i, 21 + 2 * i, 20 + 2 * i))
    A("v_lshl_add_u32 v16, v0, 3, v%d" % V_MISC)
    A("ds_write_b64 v16, v[28:29] offset:%d\nds_write_b64 v16, v[30:31] offset:%d" % (L_Q, L_Q + 512))
    A("s_getreg_b32 s56, hwreg(HW_REG_XCC_ID)\ns_and_b32 s56, s56, 15\nv_bfe_u32 v18, v20, 10, 4\nv_bfe_u32 v19, v24, 10, 4")
    A("v_cmp_ne_u32 vcc, s56, v18\nv_cmp_ne_u32 s[44:45], s56, v19\ns_nop 0\ns_or_b64 vcc, vcc, s[44:45]\ns_cselect_b32 s56, 1, %d" % (2 if fast else 1))
    A("v_mov_b32 v17, s56\nds_write_b32 v%d, v17 offset:%d" % (V_MISC, L_QF))
    A.stamp(8)
    A.lds_wait_ge(L_C2, 47, "4", 8, cached=False, sleep=4)
    A("v_and_b32 v9, 31, v0\nv_lshl_add_u32 v9, v9, 2, v%d" % V_MISC)
    A("ds_read_b32 v10, v9 offset:%d\nds_read_b64 v[12:13], v%d offset:%d\ns_waitcnt lgkmcnt(0)" % (L_LSUM, V_MISC, L_MX))
    for r in (1, 2, 4, 8):
        A("v_add_f32_dpp v10, v10, v10 row_ror:%d %s" % (r, DPP))
        A.nop(2)
    A("v_readlane_b32 s56, v10, 0\nv_readlane_b32 s57, v10, 16")
    A.nop(2)
    A("v_mov_b32 v14, s56\nv_mov_b32 v15, s57")
    A.tag4(12, 12)
    A("s_lshl_b32 s45, s32, 8\ns_add_u32 s45, s45, %d\ns_lshl_b32 s46, s33, 4\nv_mov_b32 v9, s46" % WS_ML)
    A("s_mov_b64 exec, 1\nbuffer_store_dwordx4 v[12:15], v9, s[52:55], s45 offen sc1\ns_mov_b64 exec, -1")
    A.stamp_flush([7, 8])
    A("s_endpgm")

    A("L_cons:")
    KA = 8; KT = 244; KD = [16, 80, 144, 16, 80, 144]; QB = 208; AC = 240; S0 = 248; S1 = 252
    A("v_xor_b32 v12, v%d, v%d\nv_lshlrev_b32 v12, 4, v12\nv_lshl_or_b32 v12, v%d, 9, v12" % (V_G, V_N, V_N))
    A("s_lshl_b32 s56, s61, 14\nv_add_u32 v%d, s56, v12" % KA)
    for k in range(1, 4):
        A("v_xor_b32 v%d, %d, v%d" % (KA + k, 64 * k, KA))
    A("s_add_u32 s46, s61, 1")
    A("s_lshl_b32 s62, s61, 2\nv_add_u32 v13, s62, v%d" % V_MISC)
    def kread(i):
        A.lds_wait_ge(L_LAND, 48, "s46", 12)
        for tt in range(2):
            for kk in range(8):
                r = KD[i] + 32 * tt + 4 * kk
                A("ds_read_b128 v[%d:%d], v%d offset:%d" % (r, r + 3, KA + (kk & 3), tt * 8192 + (kk >> 2) * 256))
        A("s_add_u32 s56, s46, 3\ns_min_u32 s56, s56, %d\nv_mov_b32 v12, s56\ns_add_u32 s46, s46, 4" % NSL)
        for k in range(4):
            A("v_xor_b32 v%d, 0x10000, v%d" % (KA + k, KA + k))
        A("s_waitcnt lgkmcnt(0)")
        A("ds_write_b32 v13, v12 offset:%d" % L_PROG)
    def kcomp(i):
        S = S0 if i < 4 else S1
        for kk in range(8):
            for tt in range(2):
                r = KD[i] + 32 * tt + 4 * kk
                A("v_mfma_f32_16x16x32_bf16 v[%d:%d], v[%d:%d], v[%d:%d], %s" % (AC + 4 * tt, AC + 4 * tt + 3, r, r + 3, QB + 4 * kk, QB + 4 * kk + 3, "0" if kk == 0 else "v[%d:%d]" % (AC + 4 * tt, AC + 4 * tt + 3)))
        A.mask(0x00030003 << (4 * (i & 3)))
        A.nop(5)
        for k in range(4):
            A("v_cndmask_b32 v%d, v%d, v%d, s[56:57]" % (S + k, S + k, AC + k))
        A("s_lshl_b64 s[56:57], s[56:57], 2")
        for k in range(4):
            A("v_cndmask_b32 v%d, v%d, v%d, s[56:57]" % (S + k, S + k, AC + 4 + k))
    for i in range(3):
        kread(i)
    A.lds_wait_ge(L_QF, 67, "1", 12, cached=False)
    A("v_and_b32 v12, 1, v%d\nv_lshlrev_b32 v12, 9, v12\nv_lshl_add_u32 v12, v%d, 4, v12\nv_add_u32 v12, v%d, v12" % (V_N, V_G, V_MISC))
    for kk in range(8):
        A("ds_read_b128 v[%d:%d], v12 offset:%d" % (QB + 4 * kk, QB + 4 * kk + 3, L_Q + kk * 64))
    A("s_waitcnt lgkmcnt(0)")
    for i in range(3):
        kcomp(i)
    kread(3); kcomp(3); kread(4); kcomp(4)
    A("s_cmp_gt_u32 s46, %d\ns_cbranch_scc1 L_kdone" % NSL)
    kread(5); kcomp(5)
    A("L_kdone:")
    A.stamp(9)
    A("v_lshrrev_b32 v16, 2, v%d\nv_lshlrev_b32 v16, 7, v16\nv_and_b32 v22, 2, v%d\nv_lshl_add_u32 v16, v22, 3, v16\nv_lshl_add_u32 v16, v%d, 2, v16" % (V_N, V_N, V_G))
    A("s_sub_u32 s44, s66, s65\ns_lshl_b32 s45, s61, 5\ns_sub_u32 s44, s44, s45\ns_sub_u32 s44, s44, 512\nv_mov_b32 v17, 0xff800000")
    for k in range(4):
        A("v_cmp_gt_u32 vcc, s44, v16\nv_add_u32 v16, 1, v16\ns_nop 0\nv_cndmask_b32 v%d, v17, v%d, vcc" % (S1 + k, S1 + k))
    for k in range(4):
        A("v_cvt_pk_bf16_f32 v%d, v%d, v%d" % (16 + k, S0 + 2 * k, S0 + 2 * k + 1))
    for k in range(4):
        A("v_lshlrev_b32 v%d, 16, v%d\nv_and_b32 v%d, 0xffff0000, v%d" % (S0 + 2 * k, 16 + k, S0 + 2 * k + 1, 16 + k))
    A("v_max3_f32 v16, v%d, v%d, v%d\nv_max3_f32 v16, v16, v%d, v%d\nv_max3_f32 v16, v16, v%d, v%d\nv_max_f32 v16, v16, v%d" % tuple(S0 + k for k in range(8)))
    for r in (2, 4, 8):
        A.nop(2)
        A("v_max_f32_dpp v16, v16, v16 row_ror:%d %s" % (r, DPP))
    A("v_and_b32 v17, 1, v%d\nv_lshl_add_u32 v18, v17, 2, v%d" % (V_N, V_MISC))
    A.mask(0x00030003, "exec")
    A("ds_max_f32 v18, v16 offset:%d" % L_MX)
    A.lds_signal_add(L_C1, 12)
    A.lds_wait_ge(L_C1, 47, "4", 12, cached=False)
    A("ds_read_b32 v16, v18 offset:%d\ns_waitcnt lgkmcnt(0)" % L_MX)
    for k in range(8):
        A("v_sub_f32 v%d, v%d, v16\nv_mul_f32 v%d, %s, v%d\nv_exp_f32 v%d, v%d" % (S0 + k, S0 + k, S0 + k, f32(C1), S0 + k, S0 + k, S0 + k))
    A("v_add_f32 v16, v%d, v%d" % (S0, S0 + 1))
    for k in range(2, 8):
        A("v_add_f32 v16, v16, v%d" % (S0 + k))
    for k in range(4):
        A("v_cvt_pk_bf16_f32 v%d, v%d, v%d" % (24 + k, S0 + 2 * k, S0 + 2 * k + 1))
    for r in (2, 4, 8):
        A("v_add_f32_dpp v16, v16, v16 row_ror:%d %s" % (r, DPP))
        A.nop(2)
    A("v_lshrrev_b32 v19, 2, v%d\nv_lshlrev_b32 v19, 8, v19\nv_mul_u32_u24 v14, %d, v17\nv_lshl_add_u32 v14, v%d, 4, v14\nv_add_u32 v14, v%d, v14" % (V_N, PSTR, V_G, V_MISC))
    A("v_lshl_add_u32 v19, v22, 2, v19\ns_lshl_b32 s62, s61, 6\nv_add3_u32 v19, v19, s62, v14")
    A("ds_write_b64 v19, v[24:25] offset:%d" % L_P)
    A("s_mov_b32 s44, 0x00ff00ff\ns_mov_b32 s45, s44\ns_mov_b64 exec, s[44:45]\nds_write_b64 v19, v[26:27] offset:%d\ns_mov_b64 exec, -1" % (L_P + 1024))
    A("v_lshlrev_b32 v19, 6, v17\nv_lshl_add_u32 v19, v%d, 2, v19\ns_lshl_b32 s62, s61, 4\nv_add3_u32 v19, v19, s62, v%d" % (V_G, V_MISC))
    A("s_mov_b64 exec, s[56:57]\nds_write_b32 v19, v16 offset:%d" % L_LSUM)
    A.lds_signal_add(L_C2, 12)
    VA = 8; VT = 16; VD = 24; PB = 40; OA = 96
    A("v_lshrrev_b32 v16, 2, v0\nv_and_b32 v18, 7, v16\ns_lshl_b32 s62, s61, 2\nv_xor_b32 v18, s62, v18\nv_lshlrev_b32 v18, 5, v18")
    A("v_lshl_or_b32 v18, v16, 9, v18\nv_and_b32 v16, 3, v0\nv_lshl_or_b32 v%d, v16, 3, v18" % VA)
    for tt in range(1, 4):
        A("v_xor_b32 v%d, %d, v%d" % (VA + tt, 32 * tt, VA))
    for k in range(16):
        A("v_mov_b32 v%d, 0" % (OA + k))
    A("v_and_b32 v17, 1, v%d\nv_lshlrev_b32 v112, 14, v17\nv_lshrrev_b32 v17, 1, v%d\nv_lshl_add_u32 v112, v17, 6, v112\nv_lshl_add_u32 v112, v%d, 4, v112" % (V_N, V_N, V_G))
    A("s_lshl_b32 s41, s32, 15\ns_lshl_b32 s56, s61, 8\ns_add_u32 s41, s41, s56\ns_add_u32 s41, s41, %d" % WS_OP)
    A("s_lshl_b32 s56, s33, 10\ns_add_u32 s40, s41, s56")
    A.lds_wait_ge(L_C2, 47, "4", 12, cached=False)
    A.stamp(10)
    A("s_mov_b32 s46, %d\ns_mov_b32 s44, %d" % (NSL + 1, (NSL % RING) * 16384))
    A("L_vloop:")
    A("ds_read_b128 v[%d:%d], v14 offset:%d" % (PB, PB + 3, L_P))
    for tt in range(4):
        A("v_add_u32 v%d, s44, v%d" % (VT + tt, VA + tt))
    A.lds_wait_ge(L_LAND, 48, "s46", 12, sleep=0)
    for tt in range(4):
        A("ds_read_b64_tr_b16 v[%d:%d], v%d" % (VD + 4 * tt, VD + 4 * tt + 1, VT + tt))
        A("ds_read_b64_tr_b16 v[%d:%d], v%d offset:8192" % (VD + 4 * tt + 2, VD + 4 * tt + 3, VT + tt))
    A("v_mov_b32 v12, s46\nv_add_u32 v14, 64, v14\ns_add_u32 s44, s44, 16384\ns_and_b32 s44, s44, %d" % (MISC - 1))
    for tt in range(4):
        A("s_waitcnt lgkmcnt(%d)" % (6 - 2 * tt))
        A("v_mfma_f32_16x16x32_bf16 v[%d:%d], v[%d:%d], v[%d:%d], v[%d:%d]" % (OA + 4 * tt, OA + 4 * tt + 3, VD + 4 * tt, VD + 4 * tt + 3, PB, PB + 3, OA + 4 * tt, OA + 4 * tt + 3))
    A("ds_write_b32 v13, v12 offset:%d" % L_PROG)
    A("s_add_u32 s46, s46, 1\ns_cmp_le_u32 s46, %d\ns_cbranch_scc1 L_vloop" % (2 * NSL))
    for tt in range(1, 4):
        A.mask(0x00030003 << (2 * tt))
        for k in range(4):
            A("v_cndmask_b32 v%d, v%d, v%d, s[56:57]" % (OA + k, OA + k, OA + 4 * tt + k))
    A.tag4(OA, OA)
    A.mask(0x00ff00ff, "exec")
    A("s_cmp_eq_u32 s67, 2\ns_cbranch_scc1 L_fastpub")
    A("buffer_store_dwordx4 v[%d:%d], v112, s[52:55], s40 offen sc1" % (OA, OA + 3))
    A("s_branch L_pubdone\nL_fastpub:")
    A("buffer_store_dwordx4 v[%d:%d], v112, s[52:55], s40 offen" % (OA, OA + 3))
    A("L_pubdone:")
    if stamps:
        A.stamp(11)
        A("s_cmp_lg_u32 s3, 4\ns_cbranch_scc1 L_end")
        A.stamp_flush([9, 10, 11])
    A("s_endpgm")

    A("L_service:")
    common_setup()
    A("s_sub_u32 s33, s2, %d\ns_lshr_b32 s33, s33, 3\ns_and_b32 s34, s33, 1" % (16 * NA))
    A("s_lshl_b32 s65, s35, 2\ns_lshr_b32 s56, s33, 1\ns_add_u32 s65, s65, s56")
    A("s_mov_b32 s40, s4\ns_mov_b32 s41, s5\ns_mov_b32 s42, 1792\ns_mov_b32 s43, 0x20000")
    A("s_cmp_lg_u32 s3, 0\ns_cbranch_scc1 L_s1")
    A("v_lshrrev_b32 v8, 5, v0\nv_and_b32 v9, 31, v0\nv_mul_u32_u24 v10, 896, v8\nv_lshl_add_u32 v10, v9, 4, v10")
    A("v_cmp_gt_u32 vcc, 28, v9\nv_mov_b32 v11, 0x1000\ns_nop 0\nv_cndmask_b32 v11, v11, v10, vcc")
    A("buffer_load_dwordx4 v[16:19], v11, s[40:43], 0 offen\nbuffer_load_dwordx4 v[20:23], v11, s[40:43], 0 offen offset:448")
    A("L_s1:")
    def dma7(vaddr, gstep, lds):
        A("s_mul_i32 s56, s3, 7168\ns_add_u32 m0, s56, %d" % lds)
        for j in range(7):
            if j: A("s_add_u32 m0, m0, 1024\ns_add_u32 s45, s45, %d" % gstep)
            else: A("s_nop 0")
            A("buffer_load_dwordx4 v%d, s[36:39], s45 offen nt lds" % vaddr)
    A("v_lshrrev_b32 v12, 3, v0\nv_and_b32 v13, 7, v0\nv_lshlrev_b32 v13, 4, v13\nv_lshl_add_u32 v14, v12, 13, v13\nv_mul_u32_u24 v12, 3584, v12\nv_add_u32 v15, v12, v13")
    A("s_mov_b32 s36, s10\ns_mov_b32 s37, s11\ns_mov_b32 s38, %d\ns_mov_b32 s39, 0x20000" % (448 * 8192))
    A("s_lshl_b32 s44, s35, 3\ns_add_u32 s44, s44, s33\ns_lshl_b32 s45, s44, 7\ns_mul_i32 s56, s3, %d\ns_add_u32 s45, s45, s56" % (56 * 8192))
    dma7(14, 8 * 8192, R_A)
    A("s_lshl_b32 s56, s3, 7\ns_mul_i32 s57, s34, 896\ns_add_u32 s56, s56, s57")
    A("v_lshlrev_b32 v252, 3, v%d\nv_lshl_add_u32 v252, v%d, 1, v252\nv_mov_b32 v253, 0" % (V_N, V_G))
    A("buffer_load_short_d16_hi v253, v252, s[40:43], s56 offen")
    A("s_waitcnt lgkmcnt(0)")
    A.tags_setup()
    A("s_cmp_lg_u32 s3, 1\ns_cbranch_scc1 L_s2")
    A("v_lshl_add_u32 v9, v0, 4, v%d\nv_mov_b32 v24, 0x3f803f80\nv_mov_b32 v25, v24\nv_mov_b32 v26, v24\nv_mov_b32 v27, v24" % V_MISC)
    A("ds_write_b128 v9, v[24:27] offset:%d" % L_ONES)
    A("v_mov_b32 v28, 0\nv_mov_b32 v29, 0\nv_mov_b32 v30, 0\nv_mov_b32 v31, 0\nds_write_b128 v9, v[28:31] offset:%d" % L_H)
    A("L_s2:")
    A("s_cmp_lg_u32 s3, 0\ns_cbranch_scc1 L_s3")
    A("s_waitcnt vmcnt(8)")
    A.stamp(5)
    X = 24
    for i in range(8):
        A("v_lshlrev_b32 v%d, 16, v%d\nv_and_b32 v%d, 0xffff0000, v%d" % (X + 2 * i, 16 + i, X + 2 * i + 1, 16 + i))
    A("v_add_f32 v40, v%d, v%d\nv_mul_f32 v41, v%d, v%d\nv_fmac_f32 v41, v%d, v%d" % (X, X + 1, X, X, X + 1, X + 1))
    for i in range(2, 16):
        A("v_add_f32 v40, v40, v%d\nv_fmac_f32 v41, v%d, v%d" % (X + i, X + i, X + i))
    for r in (1, 2, 4, 8):
        A.nop(1)
        A("v_add_f32_dpp v40, v40, v40 row_ror:%d %s\nv_add_f32_dpp v41, v41, v41 row_ror:%d %s" % (r, DPP, r, DPP))
    A("v_mov_b32 v42, v40\nv_mov_b32 v43, v41")
    A.nop(2)
    A("v_permlane16_swap_b32 v40, v42\nv_permlane16_swap_b32 v41, v43")
    A("v_add_f32 v40, v40, v42\nv_add_f32 v41, v41, v43")
    A("\n".join(A.ln_stats_list(40, 41, 42, 43, 44)))
    for i in range(8):
        a, b = X + 2 * i, X + 2 * i + 1
        A("v_sub_f32 v%d, v%d, v42\nv_sub_f32 v%d, v%d, v42\nv_cvt_pk_bf16_f32 v44, v%d, v%d" % (a, a, b, b, a, b))
        A("v_lshlrev_b32 v%d, 16, v44\nv_and_b32 v%d, 0xffff0000, v44" % (a, b))
        A("v_mul_f32 v%d, v%d, v43\nv_mul_f32 v%d, v%d, v43\nv_cvt_pk_bf16_f32 v%d, v%d, v%d" % (a, a, b, b, 16 + i, a, b))
    A("v_add_u32 v10, v%d, v10" % V_MISC)
    A.mask(0x0fffffff, "exec")
    A("ds_write_b128 v10, v[16:19] offset:%d\nds_write_b128 v10, v[20:23] offset:%d" % (L_LN, L_LN + 448))
    A("s_mov_b64 exec, -1")
    A("L_s3:")
    A("v_lshrrev_b32 v9, 2, v%d\nv_lshl_add_u32 v9, v%d, 3, v9\nv_lshlrev_b32 v11, 7, v9\nv_and_b32 v10, 3, v0" % (V_N, V_G))
    A("s_waitcnt vmcnt(1) lgkmcnt(0)\ns_barrier")
    A.stamp(6)
    A("s_cmp_ge_u32 s3, 4\ns_cbranch_scc1 L_s4")
    BQ = 16; AQ = 72
    A("v_and_b32 v8, 1, v%d\nv_mul_u32_u24 v8, 896, v8\nv_lshl_add_u32 v8, v%d, 4, v8\nv_add_u32 v8, v%d, v8" % (V_N, V_G, V_MISC))
    A("v_lshl_add_u32 v12, v10, 3, v11\ns_lshl_b32 s56, s3, 5\nv_add_u32 v12, s56, v12")
    for kk in range(14):
        A("ds_read_b128 v[%d:%d], v8 offset:%d" % (BQ + 4 * kk, BQ + 4 * kk + 3, L_LN + kk * 64))
        A("ds_read_b64_tr_b16 v[%d:%d], v12 offset:%d" % (AQ + 4 * kk, AQ + 4 * kk + 1, R_A + kk * 4096))
        A("ds_read_b64_tr_b16 v[%d:%d], v12 offset:%d" % (AQ + 4 * kk + 2, AQ + 4 * kk + 3, R_A + kk * 4096 + 512))
    A("s_waitcnt lgkmcnt(0)")
    for kk in range(14):
        A("v_mfma_f32_16x16x32_bf16 v[128:131], v[%d:%d], v[%d:%d], %s" % (AQ + 4 * kk, AQ + 4 * kk + 3, BQ + 4 * kk, BQ + 4 * kk + 3, "0" if kk == 0 else "v[128:131]"))
    A("v_and_b32 v16, 1, v%d\nv_lshlrev_b32 v16, 14, v16\nv_lshl_add_u32 v16, v%d, 4, v16" % (V_N, V_G))
    A("s_lshl_b32 s45, s44, 8\ns_lshl_b32 s56, s3, 6\ns_add_u32 s45, s45, s56\ns_add_u32 s45, s45, %d" % WS_Q)
    A("s_getreg_b32 s46, hwreg(HW_REG_XCC_ID)\ns_and_b32 s46, s46, 15\ns_lshl_b32 s46, s46, 10")
    A("v_cvt_pk_bf16_f32 v12, v128, v129\nv_cvt_pk_bf16_f32 v13, v130, v131")
    A("v_lshl_or_b32 v128, v12, 16, v%d\nv_and_b32 v129, 0xffff0000, v12\nv_or_b32 v129, v129, v%d" % (V_TAG, V_TAG + 1))
    A("v_lshl_or_b32 v130, v13, 16, v%d\nv_and_b32 v131, 0xffff0000, v13\nv_or_b32 v131, v131, v%d" % (V_TAG + 2, V_TAG + 3))
    A("v_or_b32 v128, s46, v128")
    A.mask(0x00030003, "exec")
    A("buffer_store_dwordx4 v[128:131], v16, s[52:55], s45 offen sc1")
    A("s_mov_b64 exec, -1")
    A.stamp(7)
    A("L_s4:")
    A("s_cmp_lt_u32 s35, 7\ns_cselect_b32 s38, %d, 0\ns_mov_b32 s36, s16\ns_mov_b32 s37, s17" % (448 * 3584))
    A("s_lshl_b32 s66, s65, 7\ns_mul_i32 s56, s3, %d\ns_add_u32 s66, s66, s56\ns_mov_b32 s45, s66" % (56 * 3584))
    dma7(15, 8 * 3584, R_B)
    A("s_barrier")
    A("s_mov_b32 s36, s18\ns_mov_b32 s37, s19\ns_mov_b32 s45, s66")
    dma7(15, 8 * 3584, R_A)
    A("v_and_b32 v12, 1, v0\nv_lshl_add_u32 v12, v12, 3, v11\ns_lshl_b32 s56, s3, 5\nv_add_u32 v12, s56, v12\nv_add_u32 v13, %d, v12" % R_B)
    A("v_cmp_gt_u32 vcc, 2, v10")
    A.nop(2)
    A("v_cndmask_b32 v12, v12, v13, vcc")
    A("s_waitcnt vmcnt(0)\ns_barrier")
    GA = 136
    A("s_cmp_ge_u32 s3, 4\ns_cbranch_scc1 L_s5")
    for T in range(2):
        for kk in range(14):
            r = GA + 56 * T + 4 * kk
            A("ds_read_b64_tr_b16 v[%d:%d], v12 offset:%d" % (r, r + 1, kk * 4096 + 16 * T))
            A("ds_read_b64_tr_b16 v[%d:%d], v12 offset:%d" % (r + 2, r + 3, kk * 4096 + 512 + 16 * T))
    A("L_s5:")
    A("s_waitcnt lgkmcnt(0)\ns_barrier")
    A("s_lshr_b32 s67, s33, 2\ns_lshl_b32 s63, s35, 1\ns_add_u32 s63, s63, s67\ns_and_b32 s61, s33, 3")
    A("s_mov_b32 s36, s12\ns_mov_b32 s37, s13\ns_mov_b32 s38, %d" % (4096 * 896))
    A("s_mul_i32 s45, s63, %d\ns_mul_i32 s56, s3, %d\ns_add_u32 s45, s45, s56\ns_mul_i32 s56, s61, 224\ns_add_u32 s45, s45, s56" % (256 * 896, 32 * 896))
    A("s_mul_i32 s56, s3, 7168\ns_add_u32 m0, s56, %d" % R_B)
    for j in range(7):
        for l in range(64): assert ((64 * j + l) * 2341) >> 15 == (64 * j + l) // 14
        A("v_add_u32 v14, %d, v0\nv_mul_u32_u24 v13, 2341, v14\nv_lshrrev_b32 v13, 15, v13\nv_mul_u32_u24 v13, %d, v13\nv_lshl_add_u32 v14, v14, 4, v13" % (64 * j, 896 - 224))
        A("buffer_load_dwordx4 v14, s[36:39], s45 offen nt lds\ns_add_u32 m0, m0, 1024")
    A("s_cmp_lt_u32 s35, 7\ns_cselect_b32 s38, %d, 0\ns_mov_b32 s36, s20\ns_mov_b32 s37, s21" % (1792 * 896))
    A("s_mul_i32 s45, s65, 57344\ns_mul_i32 s56, s3, 7168\ns_add_u32 s45, s45, s56\nv_lshlrev_b32 v14, 4, v0")
    dma7(14, 1024, R_A)
    A("v_mul_u32_u24 v12, 896, v9\nv_lshl_add_u32 v12, v10, 3, v12\ns_lshl_b32 s56, s3, 7\nv_add_u32 v12, s56, v12")
    A("v_mul_u32_u24 v13, 224, v9\nv_lshl_add_u32 v13, v10, 3, v13\ns_lshl_b32 s56, s3, 5\ns_add_u32 s56, s56, %d\nv_add_u32 v13, s56, v13" % R_B)
    A("s_waitcnt vmcnt(0)\ns_barrier")
    DA = 104; WA = 40
    A("s_cmp_eq_u32 s3, 7\ns_cbranch_scc1 L_s6")
    for t in range(4):
        for kk in range(2):
            r = DA + 8 * t + 4 * kk
            A("ds_read_b64_tr_b16 v[%d:%d], v12 offset:%d" % (r, r + 1, t * 32 + kk * 32 * 896))
            A("ds_read_b64_tr_b16 v[%d:%d], v12 offset:%d" % (r + 2, r + 3, t * 32 + kk * 32 * 896 + 4 * 896))
    for kk in range(8):
        A("ds_read_b64_tr_b16 v[%d:%d], v13 offset:%d" % (WA + 4 * kk, WA + 4 * kk + 1, kk * 32 * 224))
        A("ds_read_b64_tr_b16 v[%d:%d], v13 offset:%d" % (WA + 4 * kk + 2, WA + 4 * kk + 3, kk * 32 * 224 + 4 * 224))
    A("s_branch L_s7")
    A("L_s6:")
    A("s_lshl_b32 s45, s35, 8\ns_add_u32 s45, s45, %d" % WS_ML)
    A("v_min_u32 v9, %d, v%d\nv_lshlrev_b32 v9, 4, v9\nv_and_b32 v11, 1, v%d\nv_lshl_add_u32 v9, v11, 11, v9" % (NA - 1, V_N, V_G))
    A.gather([(9, 0)], 16, 10, "s45", sleep=16)
    A("s_cmp_eq_u32 s67, 1\ns_cselect_b64 vcc, -1, 0")
    A.nop(2)
    A("v_cndmask_b32 v16, v16, v17, vcc\nv_cndmask_b32 v18, v18, v19, vcc\nv_cmp_gt_u32 vcc, %d, v%d\nv_mov_b32 v20, v16" % (NA, V_N))
    A.nop(1)
    A("v_cndmask_b32 v18, 0, v18, vcc")
    for r in (1, 2, 4, 8):
        A("v_max_f32_dpp v20, v20, v20 row_ror:%d %s" % (r, DPP))
        A.nop(2)
    A("v_sub_f32 v16, v16, v20\nv_mul_f32 v16, %s, v16\nv_exp_f32 v16, v16\ns_nop 0\nv_mul_f32 v18, v16, v18" % f32(C1))
    for r in (1, 2, 4, 8):
        A.nop(2)
        A("v_add_f32_dpp v18, v18, v18 row_ror:%d %s" % (r, DPP))
    A("v_rcp_f32 v18, v18\ns_nop 0\nv_mul_f32 v16, v16, v18")
    A("v_mul_u32_u24 v9, 43, v%d\nv_lshrrev_b32 v9, 7, v9\nv_add_u32 v9, v9, v%d\nv_lshl_add_u32 v9, v11, 4, v9\nv_lshl_add_u32 v9, v9, 2, v%d" % (V_N, V_N, V_MISC))
    A("s_mov_b64 exec, 0x%x\nds_write_b32 v9, v16 offset:%d\ns_mov_b64 exec, -1" % (((1 << NA) - 1) * 0x10001, L_SW))
    A("L_s7:")
    A("s_lshr_b32 s56, s3, 2\ns_lshl_b32 s47, s56, 3\ns_add_u32 s47, s47, s35\ns_lshl_b32 s47, s47, 15\ns_lshl_b32 s57, s67, 14\ns_add_u32 s47, s47, s57")
    A("s_and_b32 s57, s3, 3\ns_lshl_b32 s57, s57, 8\ns_add_u32 s47, s47, s57\ns_add_u32 s47, s47, %d" % WS_OP)
    A("v_mul_u32_u24 v8, 3072, v%d\nv_lshl_add_u32 v8, v%d, 4, v8" % (V_G, V_N))
    A("s_lshl_b32 s56, s56, 6\nv_lshlrev_b32 v21, 4, v%d\nv_add_u32 v22, v21, v%d\nv_add_u32 v9, s56, v22" % (V_G, V_MISC))
    A("s_lshl_b32 s56, s3, 7\nv_add3_u32 v13, v252, s56, v%d" % V_MISC)
    A("v_and_b32 v10, 1, v%d\nv_lshl_add_u32 v11, v10, 9, v22" % V_N)
    A("s_mul_i32 s48, s63, 1792\ns_mul_i32 s56, s61, 448\ns_add_u32 s48, s48, s56\ns_lshl_b32 s56, s3, 6\ns_add_u32 s48, s48, s56\ns_add_u32 s48, s48, %d" % WS_AP)
    A("v_mul_u32_u24 v12, 28672, v10\nv_add_u32 v12, v12, v21")
    A("s_mul_i32 s45, s34, 28672\ns_lshl_b32 s56, s3, 8\ns_add_u32 s45, s45, s56\ns_add_u32 s45, s45, %d" % WS_AP)
    A("v_mul_u32_u24 v16, 7168, v%d\nv_lshl_add_u32 v16, v%d, 4, v16\nv_add_u32 v17, 3584, v16" % (V_G, V_N))
    A("v_cmp_eq_u32 vcc, 1, v10\nv_mov_b32 v15, %d\nv_add_u32 v15, v15, v%d\nv_cndmask_b32 v14, v22, v15, vcc" % (L_ONES - L_H, V_MISC))
    A("v_lshl_add_u32 v15, v0, 4, v%d" % V_MISC)
    A("v_and_b32 v18, 8, v%d\nv_lshlrev_b32 v18, 1, v18\nv_and_b32 v19, 6, v%d\nv_add_u32 v18, v18, v19\nv_lshl_add_u32 v18, v%d, 3, v18\ns_lshl_b32 s56, s3, 5\nv_add3_u32 v18, v18, s56, v%d" % (V_N, V_N, V_G, V_MISC))
    A("s_mul_i32 s62, s34, 28\ns_add_u32 s62, s62, s65\ns_mul_i32 s62, s62, 1792\ns_lshl_b32 s56, s3, 8\ns_add_u32 s62, s62, s56\ns_add_u32 s62, s62, %d" % WS_FP)
    A("v_lshl_add_u32 v19, v%d, 6, v21" % V_N)
    A("s_mov_b32 s36, 0xcccccccc\ns_mov_b32 s37, s36\ns_mov_b32 s38, 0xf0f0f0f0\ns_mov_b32 s39, s38\ns_mov_b32 s50, 0xff00ff00\ns_mov_b32 s51, s50\ns_mov_b32 s44, 0x3f803f80")
    A("s_waitcnt lgkmcnt(0)\ns_barrier")
    A("ds_read_b128 v[36:39], v9 offset:%d" % L_SW)
    A.stamp(17)
    A.mask(0x00010001, "exec")
    A.gather([(8, 0)], 24, 20, "s47", sleep=8)
    A("s_mov_b64 exec, -1")
    A.gather([(8, 0), (8, 1024), (8, 2048)], 24, 20, "s47", sleep=1)
    A.stamp(12)
    A("s_waitcnt lgkmcnt(0)")
    for k in range(4):
        A("v_mul_f32 v%d, v36, v%d" % (24 + k, 24 + k))
    for i in range(1, 3):
        for k in range(4):
            A("v_fmac_f32 v%d, v%d, v%d" % (24 + k, 36 + i, 24 + 4 * i + k))
    A.swapreduce(24)
    A("v_cvt_pk_bf16_f32 v24, v24, v24\nds_write_b16 v13, v24 offset:%d" % L_SO)
    A("s_waitcnt lgkmcnt(0)\ns_barrier")
    A("s_cmp_eq_u32 s3, 7\ns_cbranch_scc1 L_s8")
    for kk in range(8):
        A("ds_read_b128 v[%d:%d], v11 offset:%d" % (72 + 4 * kk, 75 + 4 * kk, L_SO + kk * 64))
    for kk in range(8):
        A("s_waitcnt lgkmcnt(%d)" % (7 - kk))
        A("v_mfma_f32_16x16x32_bf16 v[24:27], v[%d:%d], v[%d:%d], %s" % (WA + 4 * kk, WA + 4 * kk + 3, 72 + 4 * kk, 75 + 4 * kk, "0" if kk == 0 else "v[24:27]"))
    A.mask(0x00030003)
    A.nop(6)
    A.tag4(24, 24)
    A("s_mov_b64 exec, s[56:57]")
    A("buffer_store_dwordx4 v[24:27], v12, s[52:55], s48 offen sc1")
    A("s_mov_b64 exec, -1")
    A.stamp(13)
    A("s_cmp_lt_u32 s35, 7\ns_cbranch_scc1 L_s9")
    if stamps:
        A("s_cmp_lg_u32 s3, 0\ns_cbranch_scc1 L_end")
        A.stamp_flush([0, 5, 6, 7, 17, 12, 13])
    A("s_cmp_lg_u32 s2, 255\ns_cbranch_scc1 L_end\ns_cmp_lg_u32 s3, 0\ns_cbranch_scc1 L_end")
    A("v_and_b32 v8, 1, v0\nv_mul_u32_u24 v8, %d, v8\ns_mov_b32 s45, %d" % (28 * 1792, WS_FP))
    A.gather([(8, 0)], 28, 10, "s45", sleep=8)
    A("s_mov_b64 exec, 1\nv_mov_b32 v8, 0\nbuffer_store_dwordx4 v[%d:%d], v8, s[52:55], 0 offen offset:%d" % (V_TAG, V_TAG + 3, WS_E))
    A("s_endpgm")
    A("L_s9:")
    A.gather([(16, 0), (16, 1792), (17, 0), (17, 1792)], 28, 20, "s45", sleep=1)
    A.stamp(14)
    for k in range(4):
        A("v_add_f32 v%d, v%d, v%d\nv_add_f32 v%d, v%d, v%d" % (28 + k, 28 + k, 32 + k, 36 + k, 36 + k, 40 + k))
    for k in range(4):
        A("v_add_f32 v%d, v%d, v%d" % (28 + k, 28 + k, 36 + k))
    A.swapreduce(28)
    A("v_cvt_pk_bf16_f32 v28, v28, v28\nv_lshlrev_b32 v28, 16, v28\nv_add_f32 v28, v253, v28\nv_cvt_pk_bf16_f32 v28, v28, v28")
    A("ds_write_b16 v13, v28 offset:%d" % L_H)
    A("s_waitcnt lgkmcnt(0)\ns_barrier")
    A.stamp(18)
    A("s_cmp_ge_u32 s3, 4\ns_cbranch_scc1 L_s10")
    HB = 44
    A("ds_read_b128 v[32:35], v15 offset:%d" % L_H)
    for kk in range(14):
        A("ds_read_b128 v[%d:%d], v14 offset:%d" % (HB + 4 * kk, HB + 4 * kk + 3, L_H + kk * 64))
    side = ["v_dot2_f32_bf16 v36, v32, s44, 0", "v_dot2_f32_bf16 v37, v32, v32, 0"]
    for k in range(1, 4):
        side += ["v_dot2_f32_bf16 v36, v%d, s44, v36" % (32 + k), "v_dot2_f32_bf16 v37, v%d, v%d, v37" % (32 + k, 32 + k)]
    side += ["s_nop 2"]
    for r in (1, 2, 4, 8):
        side += ["v_add_f32_dpp v36, v36, v36 row_ror:%d %s" % (r, DPP), "v_add_f32_dpp v37, v37, v37 row_ror:%d %s" % (r, DPP), "s_nop 0"]
    side += ["v_mov_b32 v38, v36", "v_mov_b32 v39, v37", "s_nop 1", "v_permlane16_swap_b32 v36, v38", "v_permlane16_swap_b32 v37, v39",
             "v_add_f32 v36, v36, v38", "v_add_f32 v37, v37, v39", "v_mov_b32 v38, v36", "v_mov_b32 v39, v37", "s_nop 1",
             "v_permlane32_swap_b32 v36, v38", "v_permlane32_swap_b32 v37, v39", "v_add_f32 v36, v36, v38", "v_add_f32 v37, v37, v39"]
    side += A.ln_stats_list(36, 37, 38, 39, 40) + ["v_sub_f32 v38, 0, v38"]
    ga = 2 * math.sqrt(2 / math.pi) * math.log2(math.e); gb = ga * 0.044715
    side += ["v_mov_b32 v41, %s" % f32(-ga), "s_mov_b32 s56, %s" % f32(-gb)]
    per = -(-len(side) // 27)
    n = 0
    for kk in range(14):
        A("s_waitcnt lgkmcnt(%d)" % (13 - kk))
        for T in range(2):
            r = GA + 56 * T + 4 * kk
            A("v_mfma_f32_16x16x32_bf16 v[%d:%d], v[%d:%d], v[%d:%d], %s" % (24 + 4 * T, 27 + 4 * T, r, r + 3, HB + 4 * kk, HB + 4 * kk + 3, "0" if kk == 0 else "v[%d:%d]" % (24 + 4 * T, 27 + 4 * T)))
            A("\n".join(side[n * per:(n + 1) * per])); n += 1
    assert 27 * per >= len(side)
    A.nop(7)
    A("v_cndmask_b32 v24, v24, v25, s[36:37]\nv_cndmask_b32 v26, v26, v27, s[36:37]\nv_cndmask_b32 v28, v28, v29, s[36:37]\nv_cndmask_b32 v30, v30, v31, s[36:37]")
    A("v_cndmask_b32 v24, v24, v26, s[38:39]\nv_cndmask_b32 v28, v28, v30, s[38:39]\nv_cndmask_b32 v24, v24, v28, s[50:51]")
    A.nop(2)
    A("v_fmac_f32_dpp v24, v24, v38 quad_perm:[1,1,3,3] %s" % DPP)
    A("v_mul_f32 v24, v24, v39\nv_cvt_pk_bf16_f32 v24, v24, v24\nv_lshlrev_b32 v24, 16, v24\nv_mov_b32 v25, v24")
    A.nop(2)
    A("v_permlane32_swap_b32 v24, v25")
    A("v_mul_f32 v26, v24, v24\nv_fma_f32 v26, v26, s56, v41\nv_mul_f32 v26, v26, v24\nv_exp_f32 v26, v26\ns_nop 0\nv_add_f32 v26, 1.0, v26\nv_rcp_f32 v26, v26\ns_nop 0")
    A("v_mul_f32 v26, v26, v24\nv_cvt_pk_bf16_f32 v26, v26, v26\nv_lshlrev_b32 v26, 16, v26\nv_mul_f32 v26, v26, v25\nv_cvt_pk_bf16_f32 v26, v26, v26")
    A("s_mov_b64 exec, 0x55555555\nds_write_b16 v18, v26 offset:%d\ns_mov_b64 exec, -1" % L_ACT)
    A("L_s10:")
    A("s_waitcnt lgkmcnt(0)\ns_barrier")
    A.stamp(19)
    A("ds_read_b128 v[24:27], v22 offset:%d\nds_read_b128 v[28:31], v22 offset:%d" % (L_ACT, L_ACT + 64))
    for kk in range(2):
        A("s_waitcnt lgkmcnt(%d)" % (1 - kk))
        for t in range(4):
            r = DA + 8 * t + 4 * kk
            A("v_mfma_f32_16x16x32_bf16 v[%d:%d], v[%d:%d], v[%d:%d], %s" % (44 + 4 * t, 47 + 4 * t, r, r + 3, 24 + 4 * kk, 27 + 4 * kk, "0" if kk == 0 else "v[%d:%d]" % (44 + 4 * t, 47 + 4 * t)))
    A.nop(4)
    for t in range(1, 4):
        A.mask(0x00010001 << t)
        for k in range(4):
            A("v_cndmask_b32 v%d, v%d, v%d, s[56:57]" % (44 + k, 44 + k, 44 + 4 * t + k))
    A.tag4(44, 44)
    A.mask(0x000f000f, "exec")
    A("buffer_store_dwordx4 v[44:47], v19, s[52:55], s62 offen sc1")
    if stamps:
        A.stamp(15)
        A("s_cmp_lg_u32 s3, 0\ns_cbranch_scc1 L_end")
        A.stamp_flush([0, 5, 6, 7, 17, 12, 13, 14, 18, 19, 15])
    A("s_endpgm")
    A("L_s8:")
    A("s_cmp_ge_u32 s35, 7\ns_cbranch_scc1 L_end")
    A("s_mul_i32 s45, s34, %d\ns_lshl_b32 s56, s65, 6\ns_add_u32 s45, s45, s56\ns_add_u32 s45, s45, %d" % (28 * 1792, WS_FP))
    A("v_lshrrev_b32 v10, 2, v0\nv_and_b32 v15, 3, v0\nv_mul_u32_u24 v8, 1792, v10\nv_lshl_add_u32 v8, v15, 4, v8")
    A("v_add_u32 v9, %d, v8\nv_cmp_gt_u32 vcc, 12, v10" % (16 * 1792))
    A("v_lshlrev_b32 v16, 3, v15\nv_lshl_add_u32 v16, v%d, 1, v16\ns_lshl_b32 s56, s65, 5\nv_add3_u32 v17, v16, s56, v%d" % (V_G, V_MISC))
    A("v_cndmask_b32 v9, v8, v9, vcc\nv_cndmask_b32 v11, 0, 1.0, vcc\nv_mov_b32 v18, 0")
    A("s_mul_i32 s57, s34, 896\ns_add_u32 s46, s56, s57\ns_mov_b32 s40, s22\ns_mov_b32 s41, s23")
    A("s_barrier")
    A("ds_read_u16_d16_hi v18, v17 offset:%d" % L_H)
    A("s_barrier")
    A.gather([(8, 0), (9, 0)], 24, 20, "s45", sleep=0)
    for k in range(4):
        A("v_fmac_f32 v%d, v%d, v11" % (24 + k, 28 + k))
    A.swapreduce(24)
    for r in (4, 8):
        A.nop(2)
        A("v_add_f32_dpp v24, v24, v24 row_ror:%d %s" % (r, DPP))
    A("s_waitcnt lgkmcnt(0)")
    A("v_cvt_pk_bf16_f32 v24, v24, v24\nv_lshlrev_b32 v24, 16, v24\nv_add_f32 v24, v18, v24\nv_cvt_pk_bf16_f32 v24, v24, v24")
    A.mask(0x000f000f, "exec")
    A("buffer_store_short v24, v16, s[40:43], s46 offen")
    if stamps:
        A.stamp(20)
        A("s_waitcnt vmcnt(0)")
        A.stamp(16)
        A.stamp_flush([20, 16])
    A("L_end:\ns_endpgm")
    A.L.append('.section .rodata,"a"\n.p2align 6\n.amdhsa_kernel %s_kernel' % NAME)
    A.L.append("  .amdhsa_next_free_vgpr 256\n  .amdhsa_next_free_sgpr 100\n  .amdhsa_accum_offset 256")
    A.L.append("  .amdhsa_group_segment_fixed_size 0\n  .amdhsa_kernarg_size 96\n  .amdhsa_user_sgpr_count 2\n  .amdhsa_user_sgpr_kernarg_segment_ptr 1\n  .amdhsa_system_sgpr_workgroup_id_x 1\n  .amdhsa_float_denorm_mode_32 3\n.end_amdhsa_kernel")
    return "\n".join(A.L) + "\n"

if __name__ == "__main__":
    out = sys.argv[1]
    kw = {}
    for a in sys.argv[2:]:
        k, v = a.split("="); kw[k] = int(v)
    open(out, "w").write(build(**kw))
```

```python
import sys, math, struct
NAME = "sequential_preLN__gqa_block_cached__geglu_ffn__decode"
HEADER = open("cdna_kernels/%s.s.ref" % NAME).read().split("; Override launch")[0]

NA = 12
NSL = 22
WS_E = 0
WS_Q = 0x1000
WS_ML = 0x9000
WS_AP = 0xA000
WS_OP = 0x20000
WS_FP = 0xA0000
WS_END = 0x800000
STAMP_OFF = 128 << 20
RING = 8
MISC = RING * 16384
L_Q = 0; L_P = 1024; PSTR = 1536; L_O = 4096; L_LSUM = 4608; L_MX = 4736; L_W = 4752
L_LAND = 4816; L_QF = 4820; L_C1 = 4824; L_C2 = 4828; L_WF = 4832; L_C3 = 4836
L_PROG = 4848
R_A = 0; R_B = 57344
L_LN = 0; L_H = 2048; L_ONES = 3072; L_ACT = 4096; L_SO = 4352; L_SW = 5376
LDS_TOTAL = MISC + 8192
TAGM = 0x3ff
SPIN = 1 << 17
V_G = 1; V_N = 2; V_MISC = 3; V_TAG = 4
DPP = "row_mask:0xf bank_mask:0xf"
C1 = 0.0625 * math.log2(math.e)

def f32(x): return "0x%08x" % struct.unpack("<I", struct.pack("<f", x))[0]

class Gen:
    def __init__(self, stamps):
        self.L = []; self.uid = 0; self.stamps = stamps
    def __call__(self, s):
        for line in s.split("\n"):
            line = line.strip()
            if line: self.L.append(("" if line.endswith(":") else "    ") + line)
    def lab(self, p="L"):
        self.uid += 1
        return "%s_%d" % (p, self.uid)
    def nop(self, n):
        while n > 0:
            k = min(n, 16); self("s_nop %d" % (k - 1)); n -= k
    def mask(self, m32, dst="s[56:57]"):
        self("s_mov_b32 s56, 0x%08x\ns_mov_b32 s57, s56" % m32)
        if dst == "exec": self("s_mov_b64 exec, s[56:57]")
    def stamp(self, idx):
        if not self.stamps: return
        self("s_memrealtime s[%d:%d]\ns_waitcnt lgkmcnt(0)" % (68 + 2 * (idx % 16), 69 + 2 * (idx % 16)))
    def stamp_flush(self, idxs):
        if not self.stamps: return
        if self.stamps == 2:
            DBGMAP = {0: 0, 1: 1, 4: 2, 5: 3, 6: 4, 7: 5, 8: 6, 10: 7, 11: 8, 12: 9, 13: 10, 14: 11, 19: 12, 15: 13, 16: 14, 17: 15}
            self("s_mov_b64 exec, 1\nv_mov_b32 v255, 0")
            for idx in idxs:
                if idx not in DBGMAP: continue
                if idx == 0: self("s_not_b32 s68, s68")
                self("v_mov_b32 v250, s%d" % (68 + 2 * (idx % 16)))
                self("global_atomic_umax v255, v250, s[24:25] offset:%d\ns_nop 1" % (DBGMAP[idx] * 4))
            self("s_mov_b64 exec, -1")
            return
        self("s_mov_b64 exec, 1\ns_mul_i32 s60, s2, 256\ns_add_u32 s60, s60, %d\nv_mov_b32 v255, s60" % STAMP_OFF)
        for idx in idxs:
            self("v_mov_b32 v250, s%d\nv_mov_b32 v251, s%d" % (68 + 2 * (idx % 16), 69 + 2 * (idx % 16)))
            self("global_store_dwordx2 v255, v[250:251], s[26:27] offset:%d\ns_nop 1" % (idx * 8))
        self("s_mov_b64 exec, -1")
    def lds_wait_ge(self, off, sreg, target, vt, cached=True, sleep=1):
        d = self.lab("Lw"); l = self.lab("Lw")
        if cached:
            self("s_cmp_ge_u32 s%d, %s\ns_cbranch_scc1 %s" % (sreg, target, d))
        self("%s:" % l)
        self("ds_read_b32 v%d, v%d offset:%d\ns_waitcnt lgkmcnt(0)" % (vt, V_MISC, off))
        self("v_readfirstlane_b32 s%d, v%d\ns_cmp_ge_u32 s%d, %s\ns_cbranch_scc1 %s" % (sreg, vt, sreg, target, d))
        if sleep: self("s_sleep %d" % sleep)
        self("s_sub_u32 s64, s64, 1\ns_cbranch_scc0 %s\ns_mov_b32 s64, 0" % l)
        self("%s:" % d)
    def lds_signal_add(self, off, vt):
        self("s_mov_b64 exec, 1\nv_mov_b32 v%d, 1\nds_add_u32 v%d, v%d offset:%d\ns_mov_b64 exec, -1" % (vt, V_MISC, vt, off))
    def gather(self, offs, vd, vt, soff, sleep=2):
        l = self.lab("Lg"); d = self.lab("Lg")
        self("s_mov_b32 s58, 0\n%s:" % l)
        for i, (va, oo) in enumerate(offs):
            self("buffer_load_dwordx4 v[%d:%d], v%d, s[52:55], %s offen offset:%d sc1" % (vd + 4 * i, vd + 4 * i + 3, va, soff, oo))
        for i in range(len(offs)):
            self("s_waitcnt vmcnt(%d)" % (len(offs) - 1 - i))
            for k in range(4):
                self("v_xor_b32 v%d, s%d, v%d" % (vd + 4 * i + k, 28 + k, vd + 4 * i + k))
            if i == 0:
                self("v_or3_b32 v%d, v%d, v%d, v%d\nv_or_b32 v%d, v%d, v%d" % (vt, vd, vd + 1, vd + 2, vt, vt, vd + 3))
            else:
                self("v_or3_b32 v%d, v%d, v%d, v%d" % (vt, vt, vd + 4 * i, vd + 4 * i + 1))
                self("v_or3_b32 v%d, v%d, v%d, v%d" % (vt, vt, vd + 4 * i + 2, vd + 4 * i + 3))
        self("v_and_b32 v%d, %d, v%d\nv_cmp_ne_u32 vcc, 0, v%d\ns_cbranch_vccz %s" % (vt, TAGM, vt, vt, d))
        if sleep: self("s_sleep %d" % sleep)
        self("s_add_u32 s58, s58, 1\ns_cmp_lt_u32 s58, %d\ns_cbranch_scc1 %s\n%s:" % (SPIN, l, d))
    def gather2(self, offs, vd, vt, soff, sleep=0, sentinel=None, MS=(4, 6, 8, 10)):
        n = len(offs)
        def load(i):
            va, oo = offs[i]
            self("buffer_load_dwordx4 v[%d:%d], v%d, s[52:55], %s offen offset:%d sc1" % (vd + 4 * i, vd + 4 * i + 3, va, soff, oo))
        def check(i, dst):
            r = vd + 4 * i
            for k in range(4):
                self("v_xor_b32 v%d, s%d, v%d" % (r + k, 28 + k, r + k))
            self("v_or3_b32 v%d, v%d, v%d, v%d\nv_bitop3_b32 v%d, v%d, v%d, s12 bitop3:0xa8" % (vt, r, r + 1, r + 2, vt, vt, r + 3))
            self("v_cmp_ne_u32 %s, 0, v%d" % (dst, vt))
        self("s_mov_b32 s58, 0")
        if sentinel is not None:
            l = self.lab("Ls"); d = self.lab("Ls")
            self.mask(sentinel, "exec")
            self("%s:" % l)
            load(0)
            self("s_waitcnt vmcnt(0)")
            check(0, "vcc")
            self("s_cmp_lg_u64 vcc, exec\ns_cbranch_scc1 %s\ns_sleep 6" % d)
            self("s_add_u32 s58, s58, 1\ns_cmp_lt_u32 s58, %d\ns_cbranch_scc1 %s\n%s:" % (SPIN, l, d))
        for i in range(n):
            self("s_mov_b64 s[%d:%d], -1" % (MS[i], MS[i] + 1))
        l = self.lab("Lg"); d = self.lab("Lg")
        self("%s:" % l)
        for i in range(n):
            k = self.lab("Lk")
            self("s_mov_b64 exec, s[%d:%d]\ns_cbranch_execz %s" % (MS[i], MS[i] + 1, k))
            load(i)
            self("%s:" % k)
        self("s_waitcnt vmcnt(0)")
        for i in range(n):
            k = self.lab("Lk")
            self("s_mov_b64 exec, s[%d:%d]\ns_cbranch_execz %s" % (MS[i], MS[i] + 1, k))
            check(i, "s[%d:%d]" % (MS[i], MS[i] + 1))
            self("%s:" % k)
        self("s_or_b64 s[14:15], s[%d:%d], s[%d:%d]" % (MS[0], MS[0] + 1, MS[1], MS[1] + 1))
        for i in range(2, n):
            self("s_or_b64 s[14:15], s[14:15], s[%d:%d]" % (MS[i], MS[i] + 1))
        self("s_cbranch_scc0 %s" % d)
        if sleep: self("s_sleep %d" % sleep)
        self("s_add_u32 s58, s58, 1\ns_cmp_lt_u32 s58, %d\ns_cbranch_scc1 %s\n%s:" % (SPIN, l, d))
        self("s_mov_b64 exec, -1")
    def tag4(self, vs, vd):
        for k in range(4):
            self("v_and_or_b32 v%d, v%d, s59, v%d" % (vd + k, vs + k, V_TAG + k))
    def swapreduce(self, v):
        self.nop(2)
        self("v_permlane16_swap_b32 v%d, v%d\nv_permlane16_swap_b32 v%d, v%d" % (v, v + 1, v + 2, v + 3))
        self("v_add_f32 v%d, v%d, v%d\nv_add_f32 v%d, v%d, v%d" % (v, v, v + 1, v + 2, v + 2, v + 3))
        self.nop(2)
        self("v_permlane32_swap_b32 v%d, v%d" % (v, v + 2))
        self("v_add_f32 v%d, v%d, v%d" % (v, v, v + 2))
    def ln_stats_list(self, vs, vq, vm, vr, t):
        return ["v_mul_f32 v%d, %s, v%d" % (vs, f32(1.0 / 448), vs), "v_mul_f32 v%d, %s, v%d" % (vq, f32(1.0 / 448), vq),
                "v_fma_f32 v%d, -v%d, v%d, v%d" % (vq, vs, vs, vq), "v_max_f32 v%d, 0, v%d" % (vq, vq),
                "v_cvt_pk_bf16_f32 v%d, v%d, v%d" % (t, vs, vq),
                "v_and_b32 v%d, 0xffff0000, v%d" % (vq, t), "v_lshlrev_b32 v%d, 16, v%d" % (vm, t),
                "v_add_f32 v%d, %s, v%d" % (vq, f32(1e-5), vq), "v_cvt_pk_bf16_f32 v%d, v%d, v%d" % (t, vq, vq),
                "v_lshlrev_b32 v%d, 16, v%d" % (vq, t), "v_sqrt_f32 v%d, v%d" % (vq, vq), "s_nop 0",
                "v_cvt_pk_bf16_f32 v%d, v%d, v%d" % (t, vq, vq), "v_lshlrev_b32 v%d, 16, v%d" % (vq, t),
                "v_rcp_f32 v%d, v%d" % (vr, vq), "s_nop 0"]
    def tags_setup(self):
        for k in range(4):
            self("s_add_u32 s%d, s%d, 1\ns_and_b32 s%d, s%d, %d\nv_mov_b32 v%d, s%d" % (28 + k, 28 + k, 28 + k, 28 + k, TAGM, V_TAG + k, 28 + k))

def build(stamps=0, win=48, qp=8, qslp=16, fast=1, ps1=1, ps2=0, ps3=0, astr=256, fstr=256, cpf=0, pw=0, pret=0, bar=0):
    global WS_AP, WS_FP
    if astr != 256: WS_AP = 0x100000
    if fstr != 256: WS_FP = 0x200000
    A = Gen(stamps)
    A.L.append(HEADER.rstrip())
    A.L.append("; @launch grid=(256,1,1) block=(512,1,1) lds=%d" % LDS_TOTAL)
    A.L.append('.amdgcn_target "amdgcn-amd-amdhsa--gfx950"')
    A.L.append(".text\n.globl %s_kernel\n.p2align 8\n.type %s_kernel,@function\n%s_kernel:" % (NAME, NAME, NAME))
    A("s_cmp_ge_u32 s2, 256\ns_cbranch_scc1 L_end")
    A("s_load_dwordx16 s[4:19], s[0:1], 0\ns_load_dwordx8 s[20:27], s[0:1], 64")
    A.stamp(0)
    A("v_lshrrev_b32 v1, 6, v0\nv_and_b32 v0, 63, v0\nv_readfirstlane_b32 s3, v1")
    A("s_and_b32 s32, s2, 15\ns_lshr_b32 s33, s2, 4\ns_lshr_b32 s34, s32, 3\ns_and_b32 s35, s32, 7")
    A("v_mov_b32 v%d, %d\ns_mov_b32 s64, %d" % (V_MISC, MISC, 1 << 20))
    A("s_cmp_ge_u32 s33, %d\ns_cbranch_scc1 L_service" % NA)
    A("s_mul_i32 s65, s33, 43691\ns_add_u32 s66, s65, 43691\ns_lshr_b32 s65, s65, 6\ns_lshr_b32 s66, s66, 6")
    for a in range(NA + 1): assert (a * 43691) >> 6 == a * 8192 // NA
    A("s_cmp_lg_u32 s3, 1\ns_cbranch_scc1 L_notloader")
    A("s_setprio 3")
    A("v_lshrrev_b32 v1, 5, v0\nv_and_b32 v2, 31, v0\nv_xor_b32 v4, v2, v1\nv_lshlrev_b32 v4, 4, v4\nv_lshl_or_b32 v8, v1, 9, v4")
    for j in range(1, 8):
        A("v_xor_b32 v%d, %d, v8" % (8 + j, 32 * j))
    A("s_lshl_b32 s45, s32, 22\ns_lshl_b32 s44, s65, 9\ns_add_u32 s44, s44, s45\ns_lshl_b32 s38, s66, 9\ns_add_u32 s38, s38, s45")
    A("s_mov_b32 s45, s44\ns_mov_b32 s46, 0\ns_mov_b32 s47, 0\ns_mov_b32 s48, 0\ns_mov_b32 s50, 3\ns_mov_b32 m0, 0")
    A("s_mov_b32 s39, 0x20000")
    A("s_waitcnt lgkmcnt(0)")
    A("s_mov_b32 s36, s6\ns_mov_b32 s37, s7")
    W = win
    lag = W // 16 - 1
    def land(k):
        A("s_sub_i32 s56, s46, %d\ns_max_i32 s48, s48, s56\nv_mov_b32 v20, s48\nds_write_b32 v%d, v20 offset:%d" % (k, V_MISC, L_LAND))
    A("L_slot:")
    A("s_add_u32 s56, s47, %d\ns_cmp_lt_u32 s46, s56\ns_cbranch_scc0 L_waitfree" % RING)
    A("L_go:")
    A("s_waitcnt vmcnt(%d)" % (W - 8))
    for j in range(16):
        if j == 8:
            A("s_waitcnt vmcnt(%d)" % (W - 8))
            land(lag)
        A("buffer_load_dwordx4 v%d, s[36:39], s45 offen nt lds" % (8 + j % 8))
        A("s_add_u32 m0, m0, 1024\ns_add_u32 s45, s45, 1024")
    A("s_and_b32 m0, m0, %d" % (MISC - 1))
    A("s_add_u32 s46, s46, 1\ns_cmp_lg_u32 s46, s50\ns_cbranch_scc1 L_slot")
    A("s_cmp_lg_u32 s46, 3\ns_cbranch_scc1 L_evV")
    A("s_barrier\ns_mov_b32 s50, %d\ns_branch L_slot" % NSL)
    A("L_evV:\ns_cmp_lg_u32 s46, %d\ns_cbranch_scc1 L_ldone" % NSL)
    A.stamp(1)
    A("v_lshlrev_b32 v4, 1, v1\nv_xor_b32 v4, v2, v4\nv_lshlrev_b32 v4, 4, v4\nv_lshl_or_b32 v8, v1, 9, v4")
    for j in range(1, 8):
        A("v_xor_b32 v%d, %d, v8" % (8 + j, 64 * (j & 3)))
    A("s_mov_b32 s36, s8\ns_mov_b32 s37, s9\ns_mov_b32 s45, s44\ns_mov_b32 s50, %d\ns_branch L_slot" % (2 * NSL))
    A("L_ldone:")
    A.stamp(3)
    for k in range(lag, -1, -1):
        A("s_waitcnt vmcnt(%d)" % (16 * k))
        land(k)
    A.stamp(4)
    A.stamp_flush([0, 1, 3, 4])
    A("s_endpgm")
    A("L_waitfree:")
    def prog_check():
        A("ds_read_b128 v[20:23], v%d offset:%d\ns_waitcnt lgkmcnt(0)" % (V_MISC, L_PROG))
        A("v_min3_u32 v20, v20, v21, v22\nv_min_u32 v20, v20, v23\ns_nop 0\nv_readfirstlane_b32 s47, v20")
        A("s_add_u32 s56, s47, %d\ns_cmp_lt_u32 s46, s56\ns_cbranch_scc1 L_go" % RING)
    for k in range(lag, -1, -1):
        prog_check()
        A("s_waitcnt vmcnt(%d)" % (16 * k))
        land(k)
    A("L_wf2:")
    prog_check()
    A("s_sleep 1\ns_sub_u32 s64, s64, 1\ns_cbranch_scc0 L_wf2\ns_mov_b32 s64, 0\ns_branch L_go")

    def common_setup():
        A("v_lshrrev_b32 v%d, 4, v0\nv_and_b32 v%d, 15, v0" % (V_G, V_N))
        A("s_waitcnt lgkmcnt(0)")
        A("s_load_dwordx4 s[28:31], s[26:27], %d" % WS_E)
        A("s_mov_b32 s52, s26\ns_mov_b32 s53, s27\ns_mov_b32 s54, %d\ns_mov_b32 s55, 0x20000" % WS_END)
        A("s_mov_b32 s59, %d" % (0xffffffff & ~TAGM))
    A("L_notloader:")
    common_setup()
    A("s_cmp_lg_u32 s3, 3\ns_cbranch_scc1 L_noinit")
    A("v_mov_b32 v8, 0\nv_lshl_add_u32 v9, v0, 2, v%d" % V_MISC)
    A("s_mov_b64 exec, 0xff\nds_write_b32 v9, v8 offset:%d" % L_LAND)
    A("s_mov_b64 exec, 0xf\nds_write_b32 v9, v0 offset:%d" % L_PROG)
    A("s_mov_b64 exec, 0x3\nv_mov_b32 v10, 0xff800000\nds_write_b32 v9, v10 offset:%d" % L_MX)
    A("s_waitcnt lgkmcnt(0)\ns_barrier\ns_endpgm")
    A("L_noinit:")
    A("s_sub_u32 s61, s3, 4")
    A("s_waitcnt lgkmcnt(0)")
    A.tags_setup()
    A("s_mov_b32 s48, 0\ns_barrier")
    A("s_cmp_ge_u32 s3, 4\ns_cbranch_scc1 L_cons")
    A("s_cmp_eq_u32 s3, 2\ns_cbranch_scc1 L_end")
    A("s_lshl_b32 s45, s34, 14\ns_lshl_b32 s46, s35, 11\ns_add_u32 s45, s45, s46\ns_add_u32 s45, s45, %d" % WS_Q)
    A("v_lshlrev_b32 v16, 4, v0")
    A.lds_wait_ge(L_LAND, 48, str(qp), 17)
    A.stamp(7)
    A.gather([(16, 0), (16, 1024)], 20, 17, "s45", sleep=qslp)
    A("s_mov_b32 s56, 0x07060302")
    for i in range(4):
        A("v_perm_b32 v%d, v%d, v%d, s56" % (28 + i, 21 + 2 * i, 20 + 2 * i))
    A("v_lshl_add_u32 v16, v0, 3, v%d" % V_MISC)
    A("ds_write_b64 v16, v[28:29] offset:%d\nds_write_b64 v16, v[30:31] offset:%d" % (L_Q, L_Q + 512))
    A("s_getreg_b32 s56, hwreg(HW_REG_XCC_ID)\ns_and_b32 s56, s56, 15\nv_bfe_u32 v18, v20, 10, 4\nv_bfe_u32 v19, v24, 10, 4")
    A("v_cmp_ne_u32 vcc, s56, v18\nv_cmp_ne_u32 s[44:45], s56, v19\ns_nop 0\ns_or_b64 vcc, vcc, s[44:45]\ns_cselect_b32 s56, 1, %d" % (2 if fast else 1))
    A("v_mov_b32 v17, s56\nds_write_b32 v%d, v17 offset:%d" % (V_MISC, L_QF))
    A.stamp(8)
    A.lds_wait_ge(L_C2, 47, "4", 8, cached=False, sleep=4)
    A("v_and_b32 v9, 31, v0\nv_lshl_add_u32 v9, v9, 2, v%d" % V_MISC)
    A("ds_read_b32 v10, v9 offset:%d\nds_read_b64 v[12:13], v%d offset:%d\ns_waitcnt lgkmcnt(0)" % (L_LSUM, V_MISC, L_MX))
    for r in (1, 2, 4, 8):
        A("v_add_f32_dpp v10, v10, v10 row_ror:%d %s" % (r, DPP))
        A.nop(2)
    A("v_readlane_b32 s56, v10, 0\nv_readlane_b32 s57, v10, 16")
    A.nop(2)
    A("v_mov_b32 v14, s56\nv_mov_b32 v15, s57")
    A.tag4(12, 12)
    A("s_lshl_b32 s45, s32, 8\ns_add_u32 s45, s45, %d\ns_lshl_b32 s46, s33, 4\nv_mov_b32 v9, s46" % WS_ML)
    A("s_mov_b64 exec, 1\nbuffer_store_dwordx4 v[12:15], v9, s[52:55], s45 offen sc1\ns_mov_b64 exec, -1")
    A.stamp_flush([7, 8])
    A("s_endpgm")

    A("L_cons:")
    KA = 8; KT = 244; KD = [16, 80, 144, 16, 80, 144]; QB = 208; AC = 240; S0 = 248; S1 = 252
    A("v_xor_b32 v12, v%d, v%d\nv_lshlrev_b32 v12, 4, v12\nv_lshl_or_b32 v12, v%d, 9, v12" % (V_G, V_N, V_N))
    A("s_lshl_b32 s56, s61, 14\nv_add_u32 v%d, s56, v12" % KA)
    for k in range(1, 4):
        A("v_xor_b32 v%d, %d, v%d" % (KA + k, 64 * k, KA))
    A("s_add_u32 s46, s61, 1")
    A("s_lshl_b32 s62, s61, 2\nv_add_u32 v13, s62, v%d" % V_MISC)
    def kread(i):
        A.lds_wait_ge(L_LAND, 48, "s46", 12)
        for tt in range(2):
            for kk in range(8):
                r = KD[i] + 32 * tt + 4 * kk
                A("ds_read_b128 v[%d:%d], v%d offset:%d" % (r, r + 3, KA + (kk & 3), tt * 8192 + (kk >> 2) * 256))
        A("s_add_u32 s56, s46, 3\ns_min_u32 s56, s56, %d\nv_mov_b32 v12, s56\ns_add_u32 s46, s46, 4" % NSL)
        for k in range(4):
            A("v_xor_b32 v%d, 0x10000, v%d" % (KA + k, KA + k))
        A("s_waitcnt lgkmcnt(0)")
        A("ds_write_b32 v13, v12 offset:%d" % L_PROG)
    def kcomp(i):
        S = S0 if i < 4 else S1
        for kk in range(8):
            for tt in range(2):
                r = KD[i] + 32 * tt + 4 * kk
                A("v_mfma_f32_16x16x32_bf16 v[%d:%d], v[%d:%d], v[%d:%d], %s" % (AC + 4 * tt, AC + 4 * tt + 3, r, r + 3, QB + 4 * kk, QB + 4 * kk + 3, "0" if kk == 0 else "v[%d:%d]" % (AC + 4 * tt, AC + 4 * tt + 3)))
        A.mask(0x00030003 << (4 * (i & 3)))
        A.nop(5)
        for k in range(4):
            A("v_cndmask_b32 v%d, v%d, v%d, s[56:57]" % (S + k, S + k, AC + k))
        A("s_lshl_b64 s[56:57], s[56:57], 2")
        for k in range(4):
            A("v_cndmask_b32 v%d, v%d, v%d, s[56:57]" % (S + k, S + k, AC + 4 + k))
    for i in range(3):
        kread(i)
    A.lds_wait_ge(L_QF, 67, "1", 12, cached=False)
    A("v_and_b32 v12, 1, v%d\nv_lshlrev_b32 v12, 9, v12\nv_lshl_add_u32 v12, v%d, 4, v12\nv_add_u32 v12, v%d, v12" % (V_N, V_G, V_MISC))
    for kk in range(8):
        A("ds_read_b128 v[%d:%d], v12 offset:%d" % (QB + 4 * kk, QB + 4 * kk + 3, L_Q + kk * 64))
    A("s_waitcnt lgkmcnt(0)")
    for i in range(3):
        kcomp(i)
    kread(3); kcomp(3); kread(4); kcomp(4)
    A("s_cmp_gt_u32 s46, %d\ns_cbranch_scc1 L_kdone" % NSL)
    kread(5); kcomp(5)
    A("L_kdone:")
    A.stamp(9)
    A("v_lshrrev_b32 v16, 2, v%d\nv_lshlrev_b32 v16, 7, v16\nv_and_b32 v22, 2, v%d\nv_lshl_add_u32 v16, v22, 3, v16\nv_lshl_add_u32 v16, v%d, 2, v16" % (V_N, V_N, V_G))
    A("s_sub_u32 s44, s66, s65\ns_lshl_b32 s45, s61, 5\ns_sub_u32 s44, s44, s45\ns_sub_u32 s44, s44, 512\nv_mov_b32 v17, 0xff800000")
    for k in range(4):
        A("v_cmp_gt_u32 vcc, s44, v16\nv_add_u32 v16, 1, v16\ns_nop 0\nv_cndmask_b32 v%d, v17, v%d, vcc" % (S1 + k, S1 + k))
    for k in range(4):
        A("v_cvt_pk_bf16_f32 v%d, v%d, v%d" % (16 + k, S0 + 2 * k, S0 + 2 * k + 1))
    for k in range(4):
        A("v_lshlrev_b32 v%d, 16, v%d\nv_and_b32 v%d, 0xffff0000, v%d" % (S0 + 2 * k, 16 + k, S0 + 2 * k + 1, 16 + k))
    A("v_max3_f32 v16, v%d, v%d, v%d\nv_max3_f32 v16, v16, v%d, v%d\nv_max3_f32 v16, v16, v%d, v%d\nv_max_f32 v16, v16, v%d" % tuple(S0 + k for k in range(8)))
    for r in (2, 4, 8):
        A.nop(2)
        A("v_max_f32_dpp v16, v16, v16 row_ror:%d %s" % (r, DPP))
    A("v_and_b32 v17, 1, v%d\nv_lshl_add_u32 v18, v17, 2, v%d" % (V_N, V_MISC))
    A.mask(0x00030003, "exec")
    A("ds_max_f32 v18, v16 offset:%d" % L_MX)
    A.lds_signal_add(L_C1, 12)
    A.lds_wait_ge(L_C1, 47, "4", 12, cached=False)
    A("ds_read_b32 v16, v18 offset:%d\ns_waitcnt lgkmcnt(0)" % L_MX)
    for k in range(8):
        A("v_sub_f32 v%d, v%d, v16\nv_mul_f32 v%d, %s, v%d\nv_exp_f32 v%d, v%d" % (S0 + k, S0 + k, S0 + k, f32(C1), S0 + k, S0 + k, S0 + k))
    A("v_add_f32 v16, v%d, v%d" % (S0, S0 + 1))
    for k in range(2, 8):
        A("v_add_f32 v16, v16, v%d" % (S0 + k))
    for k in range(4):
        A("v_cvt_pk_bf16_f32 v%d, v%d, v%d" % (24 + k, S0 + 2 * k, S0 + 2 * k + 1))
    for r in (2, 4, 8):
        A("v_add_f32_dpp v16, v16, v16 row_ror:%d %s" % (r, DPP))
        A.nop(2)
    A("v_lshrrev_b32 v19, 2, v%d\nv_lshlrev_b32 v19, 8, v19\nv_mul_u32_u24 v14, %d, v17\nv_lshl_add_u32 v14, v%d, 4, v14\nv_add_u32 v14, v%d, v14" % (V_N, PSTR, V_G, V_MISC))
    A("v_lshl_add_u32 v19, v22, 2, v19\ns_lshl_b32 s62, s61, 6\nv_add3_u32 v19, v19, s62, v14")
    A("ds_write_b64 v19, v[24:25] offset:%d" % L_P)
    A("s_mov_b32 s44, 0x00ff00ff\ns_mov_b32 s45, s44\ns_mov_b64 exec, s[44:45]\nds_write_b64 v19, v[26:27] offset:%d\ns_mov_b64 exec, -1" % (L_P + 1024))
    A("v_lshlrev_b32 v19, 6, v17\nv_lshl_add_u32 v19, v%d, 2, v19\ns_lshl_b32 s62, s61, 4\nv_add3_u32 v19, v19, s62, v%d" % (V_G, V_MISC))
    A("s_mov_b64 exec, s[56:57]\nds_write_b32 v19, v16 offset:%d" % L_LSUM)
    A.lds_signal_add(L_C2, 12)
    VA = 8; VT = 16; VD = 24; PB = 40; OA = 96
    A("v_lshrrev_b32 v16, 2, v0\nv_and_b32 v18, 7, v16\ns_lshl_b32 s62, s61, 2\nv_xor_b32 v18, s62, v18\nv_lshlrev_b32 v18, 5, v18")
    A("v_lshl_or_b32 v18, v16, 9, v18\nv_and_b32 v16, 3, v0\nv_lshl_or_b32 v%d, v16, 3, v18" % VA)
    for tt in range(1, 4):
        A("v_xor_b32 v%d, %d, v%d" % (VA + tt, 32 * tt, VA))
    for k in range(16):
        A("v_mov_b32 v%d, 0" % (OA + k))
    A("v_and_b32 v17, 1, v%d\nv_lshlrev_b32 v112, 14, v17\nv_lshrrev_b32 v17, 1, v%d\nv_lshl_add_u32 v112, v17, 6, v112\nv_lshl_add_u32 v112, v%d, 4, v112" % (V_N, V_N, V_G))
    A("s_lshl_b32 s41, s32, 15\ns_lshl_b32 s56, s61, 8\ns_add_u32 s41, s41, s56\ns_add_u32 s41, s41, %d" % WS_OP)
    A("s_lshl_b32 s56, s33, 10\ns_add_u32 s40, s41, s56")
    A.lds_wait_ge(L_C2, 47, "4", 12, cached=False)
    A.stamp(10)
    A("s_mov_b32 s46, %d\ns_mov_b32 s44, %d" % (NSL + 1, (NSL % RING) * 16384))
    A("L_vloop:")
    A("ds_read_b128 v[%d:%d], v14 offset:%d" % (PB, PB + 3, L_P))
    for tt in range(4):
        A("v_add_u32 v%d, s44, v%d" % (VT + tt, VA + tt))
    A.lds_wait_ge(L_LAND, 48, "s46", 12, sleep=0)
    for tt in range(4):
        A("ds_read_b64_tr_b16 v[%d:%d], v%d" % (VD + 4 * tt, VD + 4 * tt + 1, VT + tt))
        A("ds_read_b64_tr_b16 v[%d:%d], v%d offset:8192" % (VD + 4 * tt + 2, VD + 4 * tt + 3, VT + tt))
    A("v_mov_b32 v12, s46\nv_add_u32 v14, 64, v14\ns_add_u32 s44, s44, 16384\ns_and_b32 s44, s44, %d" % (MISC - 1))
    for tt in range(4):
        A("s_waitcnt lgkmcnt(%d)" % (6 - 2 * tt))
        A("v_mfma_f32_16x16x32_bf16 v[%d:%d], v[%d:%d], v[%d:%d], v[%d:%d]" % (OA + 4 * tt, OA + 4 * tt + 3, VD + 4 * tt, VD + 4 * tt + 3, PB, PB + 3, OA + 4 * tt, OA + 4 * tt + 3))
    A("ds_write_b32 v13, v12 offset:%d" % L_PROG)
    A("s_add_u32 s46, s46, 1\ns_cmp_le_u32 s46, %d\ns_cbranch_scc1 L_vloop" % (2 * NSL))
    for tt in range(1, 4):
        A.mask(0x00030003 << (2 * tt))
        for k in range(4):
            A("v_cndmask_b32 v%d, v%d, v%d, s[56:57]" % (OA + k, OA + k, OA + 4 * tt + k))
    A.tag4(OA, OA)
    A.mask(0x00ff00ff, "exec")
    A("s_cmp_eq_u32 s67, 2\ns_cbranch_scc1 L_fastpub")
    A("buffer_store_dwordx4 v[%d:%d], v112, s[52:55], s40 offen sc1" % (OA, OA + 3))
    A("s_branch L_pubdone\nL_fastpub:")
    A("buffer_store_dwordx4 v[%d:%d], v112, s[52:55], s40 offen" % (OA, OA + 3))
    A("L_pubdone:")
    if stamps:
        A.stamp(11)
        A("s_cmp_lg_u32 s3, 4\ns_cbranch_scc1 L_end")
        A.stamp_flush([9, 10, 11])
    A("s_endpgm")

    A("L_service:")
    common_setup()
    A("s_sub_u32 s33, s2, %d\ns_lshr_b32 s33, s33, 3\ns_and_b32 s34, s33, 1" % (16 * NA))
    A("s_lshl_b32 s65, s35, 2\ns_lshr_b32 s56, s33, 1\ns_add_u32 s65, s65, s56")
    A("s_mov_b32 s40, s4\ns_mov_b32 s41, s5\ns_mov_b32 s42, 1792\ns_mov_b32 s43, 0x20000")
    A("s_cmp_lg_u32 s3, 0\ns_cbranch_scc1 L_s1")
    A("v_lshrrev_b32 v8, 5, v0\nv_and_b32 v9, 31, v0\nv_mul_u32_u24 v10, 896, v8\nv_lshl_add_u32 v10, v9, 4, v10")
    A("v_cmp_gt_u32 vcc, 28, v9\nv_mov_b32 v11, 0x1000\ns_nop 0\nv_cndmask_b32 v11, v11, v10, vcc")
    A("buffer_load_dwordx4 v[16:19], v11, s[40:43], 0 offen\nbuffer_load_dwordx4 v[20:23], v11, s[40:43], 0 offen offset:448")
    A("L_s1:")
    def dma7(vaddr, gstep, lds):
        A("s_mul_i32 s56, s3, 7168\ns_add_u32 m0, s56, %d" % lds)
        for j in range(7):
            if j: A("s_add_u32 m0, m0, 1024\ns_add_u32 s45, s45, %d" % gstep)
            else: A("s_nop 0")
            A("buffer_load_dwordx4 v%d, s[36:39], s45 offen nt lds" % vaddr)
    A("v_lshrrev_b32 v12, 3, v0\nv_and_b32 v13, 7, v0\nv_lshlrev_b32 v13, 4, v13\nv_lshl_add_u32 v14, v12, 13, v13\nv_mul_u32_u24 v12, 3584, v12\nv_add_u32 v15, v12, v13")
    A("s_mov_b32 s36, s10\ns_mov_b32 s37, s11\ns_mov_b32 s38, %d\ns_mov_b32 s39, 0x20000" % (448 * 8192))
    A("s_lshl_b32 s44, s35, 3\ns_add_u32 s44, s44, s33\ns_lshl_b32 s45, s44, 7\ns_mul_i32 s56, s3, %d\ns_add_u32 s45, s45, s56" % (56 * 8192))
    dma7(14, 8 * 8192, R_A)
    A("s_lshl_b32 s56, s3, 7\ns_mul_i32 s57, s34, 896\ns_add_u32 s56, s56, s57")
    A("v_lshlrev_b32 v252, 3, v%d\nv_lshl_add_u32 v252, v%d, 1, v252\nv_mov_b32 v253, 0" % (V_N, V_G))
    A("buffer_load_short_d16_hi v253, v252, s[40:43], s56 offen")
    A("s_waitcnt lgkmcnt(0)")
    A.tags_setup()
    A("s_cmp_lg_u32 s3, 1\ns_cbranch_scc1 L_s2")
    A("v_lshl_add_u32 v9, v0, 4, v%d\nv_mov_b32 v24, 0x3f803f80\nv_mov_b32 v25, v24\nv_mov_b32 v26, v24\nv_mov_b32 v27, v24" % V_MISC)
    A("ds_write_b128 v9, v[24:27] offset:%d" % L_ONES)
    A("v_mov_b32 v28, 0\nv_mov_b32 v29, 0\nv_mov_b32 v30, 0\nv_mov_b32 v31, 0\nds_write_b128 v9, v[28:31] offset:%d" % L_H)
    A("L_s2:")
    A("s_cmp_lg_u32 s3, 0\ns_cbranch_scc1 L_s3")
    A("s_waitcnt vmcnt(8)")
    A.stamp(5)
    X = 24
    for i in range(8):
        A("v_lshlrev_b32 v%d, 16, v%d\nv_and_b32 v%d, 0xffff0000, v%d" % (X + 2 * i, 16 + i, X + 2 * i + 1, 16 + i))
    A("v_add_f32 v40, v%d, v%d\nv_mul_f32 v41, v%d, v%d\nv_fmac_f32 v41, v%d, v%d" % (X, X + 1, X, X, X + 1, X + 1))
    for i in range(2, 16):
        A("v_add_f32 v40, v40, v%d\nv_fmac_f32 v41, v%d, v%d" % (X + i, X + i, X + i))
    for r in (1, 2, 4, 8):
        A.nop(1)
        A("v_add_f32_dpp v40, v40, v40 row_ror:%d %s\nv_add_f32_dpp v41, v41, v41 row_ror:%d %s" % (r, DPP, r, DPP))
    A("v_mov_b32 v42, v40\nv_mov_b32 v43, v41")
    A.nop(2)
    A("v_permlane16_swap_b32 v40, v42\nv_permlane16_swap_b32 v41, v43")
    A("v_add_f32 v40, v40, v42\nv_add_f32 v41, v41, v43")
    A("\n".join(A.ln_stats_list(40, 41, 42, 43, 44)))
    for i in range(8):
        a, b = X + 2 * i, X + 2 * i + 1
        A("v_sub_f32 v%d, v%d, v42\nv_sub_f32 v%d, v%d, v42\nv_cvt_pk_bf16_f32 v44, v%d, v%d" % (a, a, b, b, a, b))
        A("v_lshlrev_b32 v%d, 16, v44\nv_and_b32 v%d, 0xffff0000, v44" % (a, b))
        A("v_mul_f32 v%d, v%d, v43\nv_mul_f32 v%d, v%d, v43\nv_cvt_pk_bf16_f32 v%d, v%d, v%d" % (a, a, b, b, 16 + i, a, b))
    A("v_add_u32 v10, v%d, v10" % V_MISC)
    A.mask(0x0fffffff, "exec")
    A("ds_write_b128 v10, v[16:19] offset:%d\nds_write_b128 v10, v[20:23] offset:%d" % (L_LN, L_LN + 448))
    A("s_mov_b64 exec, -1")
    A("L_s3:")
    A("v_lshrrev_b32 v9, 2, v%d\nv_lshl_add_u32 v9, v%d, 3, v9\nv_lshlrev_b32 v11, 7, v9\nv_and_b32 v10, 3, v0" % (V_N, V_G))
    A("s_waitcnt vmcnt(1) lgkmcnt(0)\ns_barrier")
    A.stamp(6)
    A("s_cmp_ge_u32 s3, 4\ns_cbranch_scc1 L_s4")
    BQ = 16; AQ = 72
    A("v_and_b32 v8, 1, v%d\nv_mul_u32_u24 v8, 896, v8\nv_lshl_add_u32 v8, v%d, 4, v8\nv_add_u32 v8, v%d, v8" % (V_N, V_G, V_MISC))
    A("v_lshl_add_u32 v12, v10, 3, v11\ns_lshl_b32 s56, s3, 5\nv_add_u32 v12, s56, v12")
    for kk in range(14):
        A("ds_read_b128 v[%d:%d], v8 offset:%d" % (BQ + 4 * kk, BQ + 4 * kk + 3, L_LN + kk * 64))
        A("ds_read_b64_tr_b16 v[%d:%d], v12 offset:%d" % (AQ + 4 * kk, AQ + 4 * kk + 1, R_A + kk * 4096))
        A("ds_read_b64_tr_b16 v[%d:%d], v12 offset:%d" % (AQ + 4 * kk + 2, AQ + 4 * kk + 3, R_A + kk * 4096 + 512))
    A("s_waitcnt lgkmcnt(0)")
    for kk in range(14):
        A("v_mfma_f32_16x16x32_bf16 v[128:131], v[%d:%d], v[%d:%d], %s" % (AQ + 4 * kk, AQ + 4 * kk + 3, BQ + 4 * kk, BQ + 4 * kk + 3, "0" if kk == 0 else "v[128:131]"))
    A("v_and_b32 v16, 1, v%d\nv_lshlrev_b32 v16, 14, v16\nv_lshl_add_u32 v16, v%d, 4, v16" % (V_N, V_G))
    A("s_lshl_b32 s45, s44, 8\ns_lshl_b32 s56, s3, 6\ns_add_u32 s45, s45, s56\ns_add_u32 s45, s45, %d" % WS_Q)
    A("s_getreg_b32 s46, hwreg(HW_REG_XCC_ID)\ns_and_b32 s46, s46, 15\ns_lshl_b32 s46, s46, 10")
    A("v_cvt_pk_bf16_f32 v12, v128, v129\nv_cvt_pk_bf16_f32 v13, v130, v131")
    A("v_lshl_or_b32 v128, v12, 16, v%d\nv_and_b32 v129, 0xffff0000, v12\nv_or_b32 v129, v129, v%d" % (V_TAG, V_TAG + 1))
    A("v_lshl_or_b32 v130, v13, 16, v%d\nv_and_b32 v131, 0xffff0000, v13\nv_or_b32 v131, v131, v%d" % (V_TAG + 2, V_TAG + 3))
    A("v_or_b32 v128, s46, v128")
    A.mask(0x00030003, "exec")
    A("buffer_store_dwordx4 v[128:131], v16, s[52:55], s45 offen sc1")
    A("s_mov_b64 exec, -1")
    A.stamp(7)
    A("L_s4:")
    A("s_cmp_lt_u32 s35, 7\ns_cselect_b32 s38, %d, 0\ns_mov_b32 s36, s16\ns_mov_b32 s37, s17" % (448 * 3584))
    A("s_lshl_b32 s66, s65, 7\ns_mul_i32 s56, s3, %d\ns_add_u32 s66, s66, s56\ns_mov_b32 s45, s66" % (56 * 3584))
    dma7(15, 8 * 3584, R_B)
    A("s_barrier")
    A("s_mov_b32 s36, s18\ns_mov_b32 s37, s19\ns_mov_b32 s45, s66")
    dma7(15, 8 * 3584, R_A)
    A("v_and_b32 v12, 1, v0\nv_lshl_add_u32 v12, v12, 3, v11\ns_lshl_b32 s56, s3, 5\nv_add_u32 v12, s56, v12\nv_add_u32 v13, %d, v12" % R_B)
    A("v_cmp_gt_u32 vcc, 2, v10")
    A.nop(2)
    A("v_cndmask_b32 v12, v12, v13, vcc")
    A("s_waitcnt vmcnt(0)\ns_barrier")
    GA = 136
    A("s_cmp_ge_u32 s3, 4\ns_cbranch_scc1 L_s5")
    for T in range(2):
        for kk in range(14):
            r = GA + 56 * T + 4 * kk
            A("ds_read_b64_tr_b16 v[%d:%d], v12 offset:%d" % (r, r + 1, kk * 4096 + 16 * T))
            A("ds_read_b64_tr_b16 v[%d:%d], v12 offset:%d" % (r + 2, r + 3, kk * 4096 + 512 + 16 * T))
    A("L_s5:")
    if cpf:
        A("s_getpc_b64 s[56:57]\nL_pc:\nv_lshlrev_b32 v14, 4, v0\ns_lshl_b32 s46, s3, 10\nv_add_u32 v14, s46, v14\nv_min_u32 v14, L_end-L_pc-12, v14")
        A("global_load_dwordx4 v[28:31], v14, s[56:57]")
    A("s_waitcnt lgkmcnt(0)\ns_barrier")
    A("s_lshr_b32 s67, s33, 2\ns_lshl_b32 s63, s35, 1\ns_add_u32 s63, s63, s67\ns_and_b32 s61, s33, 3")
    A("s_mov_b32 s36, s12\ns_mov_b32 s37, s13\ns_mov_b32 s38, %d" % (4096 * 896))
    A("s_mul_i32 s45, s63, %d\ns_mul_i32 s56, s3, %d\ns_add_u32 s45, s45, s56\ns_mul_i32 s56, s61, 224\ns_add_u32 s45, s45, s56" % (256 * 896, 32 * 896))
    A("s_mul_i32 s56, s3, 7168\ns_add_u32 m0, s56, %d" % R_B)
    for j in range(7):
        for l in range(64): assert ((64 * j + l) * 2341) >> 15 == (64 * j + l) // 14
        A("v_add_u32 v14, %d, v0\nv_mul_u32_u24 v13, 2341, v14\nv_lshrrev_b32 v13, 15, v13\nv_mul_u32_u24 v13, %d, v13\nv_lshl_add_u32 v14, v14, 4, v13" % (64 * j, 896 - 224))
        A("buffer_load_dwordx4 v14, s[36:39], s45 offen nt lds\ns_add_u32 m0, m0, 1024")
    A("s_cmp_lt_u32 s35, 7\ns_cselect_b32 s38, %d, 0\ns_mov_b32 s36, s20\ns_mov_b32 s37, s21" % (1792 * 896))
    A("s_mul_i32 s45, s65, 57344\ns_mul_i32 s56, s3, 7168\ns_add_u32 s45, s45, s56\nv_lshlrev_b32 v14, 4, v0")
    dma7(14, 1024, R_A)
    A("v_mul_u32_u24 v12, 896, v9\nv_lshl_add_u32 v12, v10, 5, v12\ns_lshl_b32 s56, s3, 7\nv_add_u32 v12, s56, v12")
    A("v_mul_u32_u24 v13, 224, v9\nv_lshl_add_u32 v13, v10, 3, v13\ns_lshl_b32 s56, s3, 5\ns_add_u32 s56, s56, %d\nv_add_u32 v13, s56, v13" % R_B)
    A("s_waitcnt vmcnt(0)\ns_barrier")
    DA = 104; WA = 40
    A("s_cmp_eq_u32 s3, 7\ns_cbranch_scc1 L_s6")
    for t in range(4):
        for kk in range(2):
            r = DA + 8 * t + 4 * kk
            A("ds_read_b64_tr_b16 v[%d:%d], v12 offset:%d" % (r, r + 1, t * 8 + kk * 32 * 896))
            A("ds_read_b64_tr_b16 v[%d:%d], v12 offset:%d" % (r + 2, r + 3, t * 8 + kk * 32 * 896 + 4 * 896))
    for kk in range(8):
        A("ds_read_b64_tr_b16 v[%d:%d], v13 offset:%d" % (WA + 4 * kk, WA + 4 * kk + 1, kk * 32 * 224))
        A("ds_read_b64_tr_b16 v[%d:%d], v13 offset:%d" % (WA + 4 * kk + 2, WA + 4 * kk + 3, kk * 32 * 224 + 4 * 224))
    A("s_branch L_s7")
    A("L_s6:")
    A("s_lshl_b32 s45, s35, 8\ns_add_u32 s45, s45, %d" % WS_ML)
    A("v_min_u32 v9, %d, v%d\nv_lshlrev_b32 v9, 4, v9\nv_and_b32 v11, 1, v%d\nv_lshl_add_u32 v9, v11, 11, v9" % (NA - 1, V_N, V_G))
    A.gather([(9, 0)], 16, 10, "s45", sleep=16)
    A("s_cmp_eq_u32 s67, 1\ns_cselect_b64 vcc, -1, 0")
    A.nop(2)
    A("v_cndmask_b32 v16, v16, v17, vcc\nv_cndmask_b32 v18, v18, v19, vcc\nv_cmp_gt_u32 vcc, %d, v%d\nv_mov_b32 v20, v16" % (NA, V_N))
    A.nop(1)
    A("v_cndmask_b32 v18, 0, v18, vcc")
    for r in (1, 2, 4, 8):
        A("v_max_f32_dpp v20, v20, v20 row_ror:%d %s" % (r, DPP))
        A.nop(2)
    A("v_sub_f32 v16, v16, v20\nv_mul_f32 v16, %s, v16\nv_exp_f32 v16, v16\ns_nop 0\nv_mul_f32 v18, v16, v18" % f32(C1))
    for r in (1, 2, 4, 8):
        A.nop(2)
        A("v_add_f32_dpp v18, v18, v18 row_ror:%d %s" % (r, DPP))
    A("v_rcp_f32 v18, v18\ns_nop 0\nv_mul_f32 v16, v16, v18")
    A("v_mul_u32_u24 v9, 43, v%d\nv_lshrrev_b32 v9, 7, v9\nv_add_u32 v9, v9, v%d\nv_lshl_add_u32 v9, v11, 4, v9\nv_lshl_add_u32 v9, v9, 2, v%d" % (V_N, V_N, V_MISC))
    A("s_mov_b64 exec, 0x%x\nds_write_b32 v9, v16 offset:%d\ns_mov_b64 exec, -1" % (((1 << NA) - 1) * 0x10001, L_SW))
    A("L_s7:")
    A("s_lshr_b32 s56, s3, 2\ns_lshl_b32 s47, s56, 3\ns_add_u32 s47, s47, s35\ns_lshl_b32 s47, s47, 15\ns_lshl_b32 s57, s67, 14\ns_add_u32 s47, s47, s57")
    A("s_and_b32 s57, s3, 3\ns_lshl_b32 s57, s57, 8\ns_add_u32 s47, s47, s57\ns_add_u32 s47, s47, %d" % WS_OP)
    A("v_mul_u32_u24 v8, 3072, v%d\nv_lshl_add_u32 v8, v%d, 4, v8" % (V_G, V_N))
    A("s_lshl_b32 s56, s56, 6\nv_lshlrev_b32 v21, 4, v%d\nv_add_u32 v22, v21, v%d\nv_add_u32 v9, s56, v22" % (V_G, V_MISC))
    A("s_lshl_b32 s56, s3, 7\nv_add3_u32 v13, v252, s56, v%d" % V_MISC)
    A("v_and_b32 v10, 1, v%d\nv_lshl_add_u32 v11, v10, 9, v22" % V_N)
    A("s_mul_i32 s56, s61, 7\ns_add_u32 s56, s56, s3\ns_mul_i32 s48, s63, 28\ns_add_u32 s48, s48, s56\ns_lshl_b32 s48, s48, 7\ns_add_u32 s48, s48, %d" % WS_AP)
    A("v_lshl_add_u32 v12, v10, 6, v21")
    A("s_lshl_b32 s45, s34, 6\ns_lshl_b32 s56, s3, 9\ns_add_u32 s45, s45, s56\ns_add_u32 s45, s45, %d" % WS_AP)
    A("v_mul_u32_u24 v16, 14336, v%d\nv_and_b32 v17, 12, v%d\nv_lshl_add_u32 v16, v17, 5, v16\nv_and_b32 v17, 3, v%d\nv_lshl_add_u32 v16, v17, 4, v16\nv_add_u32 v17, 7168, v16" % (V_G, V_N, V_N))
    A("v_cmp_eq_u32 vcc, 1, v10\nv_mov_b32 v15, %d\nv_add_u32 v15, v15, v%d\nv_cndmask_b32 v14, v22, v15, vcc" % (L_ONES - L_H, V_MISC))
    A("v_lshl_add_u32 v15, v0, 4, v%d" % V_MISC)
    A("v_and_b32 v18, 8, v%d\nv_lshlrev_b32 v18, 1, v18\nv_and_b32 v19, 6, v%d\nv_add_u32 v18, v18, v19\nv_lshl_add_u32 v18, v%d, 3, v18\ns_lshl_b32 s56, s3, 5\nv_add3_u32 v18, v18, s56, v%d" % (V_N, V_N, V_G, V_MISC))
    A("s_mul_i32 s62, s34, 28\ns_add_u32 s62, s62, s65\ns_mul_i32 s62, s62, 7\ns_add_u32 s62, s62, s3\ns_mul_i32 s62, s62, %d\ns_add_u32 s62, s62, %d" % (fstr, WS_FP))
    A("v_lshlrev_b32 v19, 6, v%d\nv_lshl_add_u32 v19, v%d, 4, v19" % (V_G, V_N))
    A("s_mov_b32 s36, 0xcccccccc\ns_mov_b32 s37, s36\ns_mov_b32 s38, 0xf0f0f0f0\ns_mov_b32 s39, s38\ns_mov_b32 s50, 0xff00ff00\ns_mov_b32 s51, s50\ns_mov_b32 s44, 0x3f803f80\ns_mov_b32 s12, %d" % TAGM)
    A("s_waitcnt lgkmcnt(0)\ns_barrier")
    A("ds_read_b128 v[36:39], v9 offset:%d" % L_SW)
    if pret:
        for va in (16, 17):
            A("buffer_load_dwordx4 v[24:27], v%d, s[52:55], s45 offen sc1\nbuffer_load_dwordx4 v[24:27], v%d, s[52:55], s45 offen offset:3584 sc1" % (va, va))
    A.stamp(17)
    A.gather2([(8, 0), (8, 1024), (8, 2048)], 24, 20, "s47", sleep=ps1, sentinel=0x00010001)
    A.stamp(12)
    A("s_waitcnt lgkmcnt(0)")
    for k in range(4):
        A("v_mul_f32 v%d, v36, v%d" % (24 + k, 24 + k))
    for i in range(1, 3):
        for k in range(4):
            A("v_fmac_f32 v%d, v%d, v%d" % (24 + k, 36 + i, 24 + 4 * i + k))
    A.swapreduce(24)
    A("v_cvt_pk_bf16_f32 v24, v24, v24\nds_write_b16 v13, v24 offset:%d" % L_SO)
    A("s_waitcnt lgkmcnt(0)\ns_barrier")
    A("s_cmp_eq_u32 s3, 7\ns_cbranch_scc1 L_s8")
    for kk in range(8):
        A("ds_read_b128 v[%d:%d], v11 offset:%d" % (72 + 4 * kk, 75 + 4 * kk, L_SO + kk * 64))
    for kk in range(8):
        A("s_waitcnt lgkmcnt(%d)" % (7 - kk))
        A("v_mfma_f32_16x16x32_bf16 v[24:27], v[%d:%d], v[%d:%d], %s" % (WA + 4 * kk, WA + 4 * kk + 3, 72 + 4 * kk, 75 + 4 * kk, "0" if kk == 0 else "v[24:27]"))
    A.mask(0x00030003)
    A.nop(6)
    A.tag4(24, 24)
    A("s_mov_b64 exec, s[56:57]")
    A("buffer_store_dwordx4 v[24:27], v12, s[52:55], s48 offen sc1")
    A("s_mov_b64 exec, -1")
    A.stamp(13)
    A("s_cmp_lt_u32 s35, 7\ns_cbranch_scc1 L_s9")
    if stamps:
        A("s_cmp_lg_u32 s3, 0\ns_cbranch_scc1 L_end")
        A.stamp_flush([0, 5, 6, 7, 17, 12, 13])
    A("s_cmp_lg_u32 s2, 255\ns_cbranch_scc1 L_end\ns_cmp_lg_u32 s3, 0\ns_cbranch_scc1 L_end")
    A("v_and_b32 v8, 1, v0\nv_mul_u32_u24 v8, %d, v8\ns_mov_b32 s45, %d" % (196 * fstr, WS_FP))
    A.gather([(8, 0)], 28, 10, "s45", sleep=8)
    A("s_mov_b64 exec, 1\nv_mov_b32 v8, 0\nbuffer_store_dwordx4 v[%d:%d], v8, s[52:55], 0 offen offset:%d" % (V_TAG, V_TAG + 3, WS_E))
    A("s_endpgm")
    A("L_s9:")
    if bar & 1: A("s_barrier")
    if bar & 4: A("s_waitcnt vmcnt(0)")
    A.gather2([(16, 0), (16, 3584), (17, 0), (17, 3584)], 28, 20, "s45", sleep=ps2)
    A.stamp(14)
    for k in range(4):
        A("v_add_f32 v%d, v%d, v%d\nv_add_f32 v%d, v%d, v%d" % (28 + k, 28 + k, 32 + k, 36 + k, 36 + k, 40 + k))
    for k in range(4):
        A("v_add_f32 v%d, v%d, v%d" % (28 + k, 28 + k, 36 + k))
    A.swapreduce(28)
    A("v_cvt_pk_bf16_f32 v28, v28, v28\nv_lshlrev_b32 v28, 16, v28\nv_add_f32 v28, v253, v28\nv_cvt_pk_bf16_f32 v28, v28, v28")
    A("ds_write_b16 v13, v28 offset:%d" % L_H)
    A("s_waitcnt lgkmcnt(0)\ns_barrier")
    A.stamp(18)
    A("s_cmp_ge_u32 s3, 4\ns_cbranch_scc1 L_s10")
    HB = 44
    A("ds_read_b128 v[32:35], v15 offset:%d" % L_H)
    for kk in range(14):
        A("ds_read_b128 v[%d:%d], v14 offset:%d" % (HB + 4 * kk, HB + 4 * kk + 3, L_H + kk * 64))
    side = ["v_dot2_f32_bf16 v36, v32, s44, 0", "v_dot2_f32_bf16 v37, v32, v32, 0"]
    for k in range(1, 4):
        side += ["v_dot2_f32_bf16 v36, v%d, s44, v36" % (32 + k), "v_dot2_f32_bf16 v37, v%d, v%d, v37" % (32 + k, 32 + k)]
    side += ["s_nop 2"]
    for r in (1, 2, 4, 8):
        side += ["v_add_f32_dpp v36, v36, v36 row_ror:%d %s" % (r, DPP), "v_add_f32_dpp v37, v37, v37 row_ror:%d %s" % (r, DPP), "s_nop 0"]
    side += ["v_mov_b32 v38, v36", "v_mov_b32 v39, v37", "s_nop 1", "v_permlane16_swap_b32 v36, v38", "v_permlane16_swap_b32 v37, v39",
             "v_add_f32 v36, v36, v38", "v_add_f32 v37, v37, v39", "v_mov_b32 v38, v36", "v_mov_b32 v39, v37", "s_nop 1",
             "v_permlane32_swap_b32 v36, v38", "v_permlane32_swap_b32 v37, v39", "v_add_f32 v36, v36, v38", "v_add_f32 v37, v37, v39"]
    side += A.ln_stats_list(36, 37, 38, 39, 40) + ["v_sub_f32 v38, 0, v38"]
    ga = 2 * math.sqrt(2 / math.pi) * math.log2(math.e); gb = ga * 0.044715
    side += ["v_mov_b32 v41, %s" % f32(-ga), "s_mov_b32 s56, %s" % f32(-gb)]
    per = -(-len(side) // 27)
    n = 0
    for kk in range(14):
        A("s_waitcnt lgkmcnt(%d)" % (13 - kk))
        for T in range(2):
            r = GA + 56 * T + 4 * kk
            A("v_mfma_f32_16x16x32_bf16 v[%d:%d], v[%d:%d], v[%d:%d], %s" % (24 + 4 * T, 27 + 4 * T, r, r + 3, HB + 4 * kk, HB + 4 * kk + 3, "0" if kk == 0 else "v[%d:%d]" % (24 + 4 * T, 27 + 4 * T)))
            A("\n".join(side[n * per:(n + 1) * per])); n += 1
    assert 27 * per >= len(side)
    A.nop(7)
    A("v_cndmask_b32 v24, v24, v25, s[36:37]\nv_cndmask_b32 v26, v26, v27, s[36:37]\nv_cndmask_b32 v28, v28, v29, s[36:37]\nv_cndmask_b32 v30, v30, v31, s[36:37]")
    A("v_cndmask_b32 v24, v24, v26, s[38:39]\nv_cndmask_b32 v28, v28, v30, s[38:39]\nv_cndmask_b32 v24, v24, v28, s[50:51]")
    A.nop(2)
    A("v_fmac_f32_dpp v24, v24, v38 quad_perm:[1,1,3,3] %s" % DPP)
    A("v_mul_f32 v24, v24, v39\nv_cvt_pk_bf16_f32 v24, v24, v24\nv_lshlrev_b32 v24, 16, v24\nv_mov_b32 v25, v24")
    A.nop(2)
    A("v_permlane32_swap_b32 v24, v25")
    A("v_mul_f32 v26, v24, v24\nv_fma_f32 v26, v26, s56, v41\nv_mul_f32 v26, v26, v24\nv_exp_f32 v26, v26\ns_nop 0\nv_add_f32 v26, 1.0, v26\nv_rcp_f32 v26, v26\ns_nop 0")
    A("v_mul_f32 v26, v26, v24\nv_cvt_pk_bf16_f32 v26, v26, v26\nv_lshlrev_b32 v26, 16, v26\nv_mul_f32 v26, v26, v25\nv_cvt_pk_bf16_f32 v26, v26, v26")
    A("s_mov_b64 exec, 0x55555555\nds_write_b16 v18, v26 offset:%d\ns_mov_b64 exec, -1" % L_ACT)
    A("L_s10:")
    A("s_waitcnt lgkmcnt(0)\ns_barrier")
    A.stamp(19)
    A("ds_read_b128 v[24:27], v22 offset:%d\nds_read_b128 v[28:31], v22 offset:%d" % (L_ACT, L_ACT + 64))
    for kk in range(2):
        A("s_waitcnt lgkmcnt(%d)" % (1 - kk))
        for t in range(4):
            r = DA + 8 * t + 4 * kk
            A("v_mfma_f32_16x16x32_bf16 v[%d:%d], v[%d:%d], v[%d:%d], %s" % (44 + 4 * t, 47 + 4 * t, r, r + 3, 24 + 4 * kk, 27 + 4 * kk, "0" if kk == 0 else "v[%d:%d]" % (44 + 4 * t, 47 + 4 * t)))
    A.nop(4)
    for t in range(1, 4):
        A.mask(0x00010001 << t)
        for k in range(4):
            A("v_cndmask_b32 v%d, v%d, v%d, s[56:57]" % (44 + k, 44 + k, 44 + 4 * t + k))
    A.tag4(44, 44)
    A.mask(0x000f000f, "exec")
    A("buffer_store_dwordx4 v[44:47], v19, s[52:55], s62 offen sc1")
    if bar & 8:
        A.stamp(15)
        A("s_waitcnt vmcnt(0)")
        A.stamp(21)
    if bar & 2: A("s_barrier")
    if stamps:
        if not bar & 8: A.stamp(15)
        if pw:
            A("s_mov_b64 exec, 1\ns_mul_i32 s60, s2, 256\ns_lshl_b32 s56, s3, 3\ns_add_u32 s60, s60, s56\ns_add_u32 s60, s60, %d\nv_mov_b32 v255, s60" % (STAMP_OFF + 22 * 8))
            A("v_mov_b32 v250, s%d\nv_mov_b32 v251, s%d\nglobal_store_dwordx2 v255, v[250:251], s[26:27]\ns_nop 1" % (68 + 2 * (pw % 16), 69 + 2 * (pw % 16)))
        A("s_cmp_lg_u32 s3, 0\ns_cbranch_scc1 L_end")
        A.stamp_flush([0, 6, 7, 17, 12, 13, 14, 18, 19, 15, 21])
    A("s_endpgm")
    A("L_s8:")
    A("s_cmp_ge_u32 s35, 7\ns_cbranch_scc1 L_end")
    A("s_mul_i32 s45, s34, 196\ns_lshr_b32 s56, s65, 2\ns_add_u32 s45, s45, s56\ns_mul_i32 s45, s45, %d\ns_and_b32 s56, s65, 3\ns_lshl_b32 s56, s56, 6\ns_add_u32 s45, s45, s56\ns_add_u32 s45, s45, %d" % (fstr, WS_FP))
    A("v_lshrrev_b32 v10, 2, v0\nv_and_b32 v15, 3, v0\nv_mul_u32_u24 v8, %d, v10\nv_lshl_add_u32 v8, v15, 4, v8" % (7 * fstr))
    A("v_add_u32 v9, %d, v8\nv_cmp_gt_u32 vcc, 12, v10" % (112 * fstr))
    A("v_lshlrev_b32 v16, 3, v15\nv_lshl_add_u32 v16, v%d, 1, v16\ns_lshl_b32 s56, s65, 5\nv_add3_u32 v17, v16, s56, v%d" % (V_G, V_MISC))
    A("v_cndmask_b32 v9, v8, v9, vcc\nv_cndmask_b32 v11, 0, 1.0, vcc\nv_mov_b32 v18, 0")
    A("s_mul_i32 s57, s34, 896\ns_add_u32 s46, s56, s57\ns_mov_b32 s40, s22\ns_mov_b32 s41, s23")
    if pret:
        A("buffer_load_dwordx4 v[24:27], v8, s[52:55], s45 offen sc1\nbuffer_load_dwordx4 v[28:31], v9, s[52:55], s45 offen sc1")
    if bar & 1: A("s_barrier")
    A("s_barrier")
    A("ds_read_u16_d16_hi v18, v17 offset:%d" % L_H)
    A("s_barrier")
    if bar & 2: A("s_barrier")
    A.gather2([(8, 0), (9, 0)], 24, 20, "s45", sleep=ps3)
    for k in range(4):
        A("v_fmac_f32 v%d, v%d, v11" % (24 + k, 28 + k))
    A.swapreduce(24)
    for r in (4, 8):
        A.nop(2)
        A("v_add_f32_dpp v24, v24, v24 row_ror:%d %s" % (r, DPP))
    A("s_waitcnt lgkmcnt(0)")
    A("v_cvt_pk_bf16_f32 v24, v24, v24\nv_lshlrev_b32 v24, 16, v24\nv_add_f32 v24, v18, v24\nv_cvt_pk_bf16_f32 v24, v24, v24")
    A.mask(0x000f000f, "exec")
    A("buffer_store_short v24, v16, s[40:43], s46 offen")
    if stamps:
        A.stamp(20)
        A("s_waitcnt vmcnt(0)")
        A.stamp(16)
        A.stamp_flush([20, 16])
    A("L_end:\ns_endpgm")
    A.L.append('.section .rodata,"a"\n.p2align 6\n.amdhsa_kernel %s_kernel' % NAME)
    A.L.append("  .amdhsa_next_free_vgpr 256\n  .amdhsa_next_free_sgpr 100\n  .amdhsa_accum_offset 256")
    A.L.append("  .amdhsa_group_segment_fixed_size 0\n  .amdhsa_kernarg_size 96\n  .amdhsa_user_sgpr_count 2\n  .amdhsa_user_sgpr_kernarg_segment_ptr 1\n  .amdhsa_system_sgpr_workgroup_id_x 1\n  .amdhsa_float_denorm_mode_32 3\n.end_amdhsa_kernel")
    return "\n".join(A.L) + "\n"

if __name__ == "__main__":
    out = sys.argv[1]
    kw = {}
    for a in sys.argv[2:]:
        k, v = a.split("="); kw[k] = int(v)
    open(out, "w").write(build(**kw))
```

```python
import sys, math, struct
NAME = "sequential_preLN__gqa_block_cached__geglu_ffn__decode"
HEADER = open("cdna_kernels/%s.s.ref" % NAME).read().split("; Override launch")[0]

NA = 12
NSL = 22
WS_E = 0
WS_Q = 0x1000
WS_ML = 0x9000
WS_AP = 0xA000
WS_OP = 0x20000
WS_FP = 0xA0000
WS_END = 0x100000
STAMP_OFF = 128 << 20
RING = 8
MISC = RING * 16384
L_Q = 0; L_P = 1024; PSTR = 1536; L_LSUM = 4096; L_MX = 4736
L_LAND = 4816; L_QF = 4820; L_C1 = 4824; L_C2 = 4828; L_WF = 4832; L_C3 = 4836
L_PROG = 4848
R_A = 0; R_G = 65536; R_U = R_G + 28672; R_D = R_U + 28672; SMISC = R_D + 28672
L_LN = 0; L_SO = 0; L_H = 2048; L_ONES = 4096; L_ACT = 5120; L_ST = 5248
LDS_TOTAL = SMISC + 5760
assert MISC + 8192 <= LDS_TOTAL <= 163840
TAGM = 0x3ff
SPIN = 1 << 17
V_G = 1; V_N = 2; V_MISC = 3; V_TAG = 4
DPP = "row_mask:0xf bank_mask:0xf"
C1 = 0.0625 * math.log2(math.e)

def f32(x): return "0x%08x" % struct.unpack("<I", struct.pack("<f", x))[0]

class Gen:
    def __init__(self, stamps):
        self.L = []; self.uid = 0; self.stamps = stamps
    def __call__(self, s):
        for line in s.split("\n"):
            line = line.strip()
            if line: self.L.append(("" if line.endswith(":") else "    ") + line)
    def lab(self, p="L"):
        self.uid += 1
        return "%s_%d" % (p, self.uid)
    def nop(self, n):
        while n > 0:
            k = min(n, 16); self("s_nop %d" % (k - 1)); n -= k
    def mask(self, m32, dst="s[56:57]"):
        self("s_mov_b32 s56, 0x%08x\ns_mov_b32 s57, s56" % m32)
        if dst == "exec": self("s_mov_b64 exec, s[56:57]")
    def stamp(self, idx):
        if not self.stamps: return
        self("s_memrealtime s[%d:%d]\ns_waitcnt lgkmcnt(0)" % (68 + 2 * (idx % 16), 69 + 2 * (idx % 16)))
    def stamp_flush(self, idxs):
        if not self.stamps: return
        if self.stamps == 2:
            DBGMAP = {0: 0, 1: 1, 4: 2, 5: 3, 6: 4, 7: 5, 8: 6, 10: 7, 11: 8, 12: 9, 13: 10, 14: 11, 19: 12, 15: 13, 16: 14, 17: 15}
            self("s_mov_b64 exec, 1\nv_mov_b32 v255, 0")
            for idx in idxs:
                if idx not in DBGMAP: continue
                if idx == 0: self("s_not_b32 s68, s68")
                self("v_mov_b32 v250, s%d" % (68 + 2 * (idx % 16)))
                self("global_atomic_umax v255, v250, s[24:25] offset:%d\ns_nop 1" % (DBGMAP[idx] * 4))
            self("s_mov_b64 exec, -1")
            return
        self("s_mov_b64 exec, 1\ns_mul_i32 s60, s2, 256\ns_add_u32 s60, s60, %d\nv_mov_b32 v255, s60" % STAMP_OFF)
        for idx in idxs:
            self("v_mov_b32 v250, s%d\nv_mov_b32 v251, s%d" % (68 + 2 * (idx % 16), 69 + 2 * (idx % 16)))
            self("global_store_dwordx2 v255, v[250:251], s[26:27] offset:%d\ns_nop 1" % (idx * 8))
        self("s_mov_b64 exec, -1")
    def lds_wait_ge(self, off, sreg, target, vt, cached=True, sleep=1):
        d = self.lab("Lw"); l = self.lab("Lw")
        if cached:
            self("s_cmp_ge_u32 s%d, %s\ns_cbranch_scc1 %s" % (sreg, target, d))
        self("%s:" % l)
        self("ds_read_b32 v%d, v%d offset:%d\ns_waitcnt lgkmcnt(0)" % (vt, V_MISC, off))
        self("v_readfirstlane_b32 s%d, v%d\ns_cmp_ge_u32 s%d, %s\ns_cbranch_scc1 %s" % (sreg, vt, sreg, target, d))
        if sleep: self("s_sleep %d" % sleep)
        self("s_sub_u32 s64, s64, 1\ns_cbranch_scc0 %s\ns_mov_b32 s64, 0" % l)
        self("%s:" % d)
    def lds_signal_add(self, off, vt):
        self("s_mov_b64 exec, 1\nv_mov_b32 v%d, 1\nds_add_u32 v%d, v%d offset:%d\ns_mov_b64 exec, -1" % (vt, V_MISC, vt, off))
    def gather(self, offs, vd, vt, soff, sleep=2, reh=False):
        l = self.lab("Lg"); d = self.lab("Lg")
        self("s_mov_b32 s58, 0\n%s:" % l)
        for i, (va, oo) in enumerate(offs):
            self("buffer_load_dwordx4 v[%d:%d], v%d, s[52:55], %s offen offset:%d sc1" % (vd + 4 * i, vd + 4 * i + 3, va, soff, oo))
        for i in range(len(offs)):
            self("s_waitcnt vmcnt(%d)" % (len(offs) - 1 - i))
            for k in range(4):
                self("v_xor_b32 v%d, s%d, v%d" % (vd + 4 * i + k, 28 + k, vd + 4 * i + k))
            if i == 0:
                self("v_or3_b32 v%d, v%d, v%d, v%d\nv_or_b32 v%d, v%d, v%d" % (vt, vd, vd + 1, vd + 2, vt, vt, vd + 3))
            else:
                self("v_or3_b32 v%d, v%d, v%d, v%d" % (vt, vt, vd + 4 * i, vd + 4 * i + 1))
                self("v_or3_b32 v%d, v%d, v%d, v%d" % (vt, vt, vd + 4 * i + 2, vd + 4 * i + 3))
        self("v_and_b32 v%d, %d, v%d\nv_cmp_ne_u32 vcc, 0, v%d" % (vt, TAGM, vt, vt))
        if reh: self("s_and_b64 vcc, vcc, s[20:21]\ns_cbranch_scc0 %s" % d)
        else: self("s_cbranch_vccz %s" % d)
        if sleep: self("s_sleep %d" % sleep)
        self("s_add_u32 s58, s58, 1\ns_cmp_lt_u32 s58, %d\ns_cbranch_scc1 %s\n%s:" % (SPIN, l, d))
    def gather2(self, groups, vd, vt, soff, sleep=0, sentinel=None, MS=(4, 6, 8, 10), between=None, hold=None):
        regs = []; r = vd
        for g in groups:
            regs.append([r + 4 * k for k in range(len(g))]); r += 4 * len(g)
        def load(i, only=None):
            for (va, oo), rr in list(zip(groups[i], regs[i]))[:only]:
                self("buffer_load_dwordx4 v[%d:%d], v%d, s[52:55], %s offen offset:%d sc1" % (rr, rr + 3, va, soff, oo))
        def check(i, dst, only=None):
            w = []
            for rr in regs[i][:only]:
                for k in range(4):
                    self("v_xor_b32 v%d, s%d, v%d" % (rr + k, 28 + k, rr + k)); w.append(rr + k)
            self("v_or3_b32 v%d, v%d, v%d, v%d" % (vt, w[0], w[1], w[2])); w = w[3:]
            while len(w) > 1:
                self("v_or3_b32 v%d, v%d, v%d, v%d" % (vt, vt, w[0], w[1])); w = w[2:]
            self("v_bitop3_b32 v%d, v%d, v%d, s12 bitop3:0xa8\nv_cmp_ne_u32 %s, 0, v%d" % (vt, vt, w[0], dst, vt))
        n = len(groups)
        self("s_mov_b32 s58, 0")
        if sentinel is not None:
            l = self.lab("Ls"); d = self.lab("Ls")
            self.mask(sentinel, "exec")
            self("%s:" % l)
            load(0, 1)
            self("s_waitcnt vmcnt(0)")
            check(0, "vcc", 1)
            self("s_cmp_lg_u64 vcc, exec\ns_cbranch_scc1 %s\ns_sleep 6" % d)
            self("s_add_u32 s58, s58, 1\ns_cmp_lt_u32 s58, %d\ns_cbranch_scc1 %s\n%s:" % (SPIN, l, d))
        if between:
            self("s_mov_b64 exec, -1")
            between()
            self("s_mov_b32 s58, 0")
        for i in range(n):
            if hold: self("s_not_b64 s[%d:%d], s[%d:%d]" % (MS[i], MS[i] + 1, hold[i], hold[i] + 1))
            else: self("s_mov_b64 s[%d:%d], -1" % (MS[i], MS[i] + 1))
        l = self.lab("Lg"); d = self.lab("Lg")
        self("%s:" % l)
        for i in range(n):
            k = self.lab("Lk")
            self("s_mov_b64 exec, s[%d:%d]\ns_cbranch_execz %s" % (MS[i], MS[i] + 1, k))
            load(i)
            self("%s:" % k)
        self("s_waitcnt vmcnt(0)")
        for i in range(n):
            k = self.lab("Lk")
            self("s_mov_b64 exec, s[%d:%d]\ns_cbranch_execz %s" % (MS[i], MS[i] + 1, k))
            check(i, "s[%d:%d]" % (MS[i], MS[i] + 1))
            self("%s:" % k)
        if hold:
            for i in range(n):
                self("s_or_b64 s[%d:%d], s[%d:%d], s[%d:%d]\ns_mov_b64 s[%d:%d], 0" % (MS[i], MS[i] + 1, MS[i], MS[i] + 1, hold[i], hold[i] + 1, hold[i], hold[i] + 1))
        self("s_or_b64 s[14:15], s[%d:%d], s[%d:%d]" % (MS[0], MS[0] + 1, MS[1], MS[1] + 1))
        for i in range(2, n):
            self("s_or_b64 s[14:15], s[14:15], s[%d:%d]" % (MS[i], MS[i] + 1))
        self("s_cbranch_scc0 %s" % d)
        if sleep: self("s_sleep %d" % sleep)
        self("s_add_u32 s58, s58, 1\ns_cmp_lt_u32 s58, %d\ns_cbranch_scc1 %s\n%s:" % (SPIN, l, d))
        self("s_mov_b64 exec, -1")
    def tag4(self, vs, vd):
        for k in range(4):
            self("v_and_or_b32 v%d, v%d, s59, v%d" % (vd + k, vs + k, V_TAG + k))
    def swapreduce(self, v):
        self.nop(2)
        self("v_permlane16_swap_b32 v%d, v%d\nv_permlane16_swap_b32 v%d, v%d" % (v, v + 1, v + 2, v + 3))
        self("v_add_f32 v%d, v%d, v%d\nv_add_f32 v%d, v%d, v%d" % (v, v, v + 1, v + 2, v + 2, v + 3))
        self.nop(2)
        self("v_permlane32_swap_b32 v%d, v%d" % (v, v + 2))
        self("v_add_f32 v%d, v%d, v%d" % (v, v, v + 2))
    def swapreduce2(self, v, u):
        self.nop(1)
        self("v_permlane16_swap_b32 v%d, v%d\nv_permlane16_swap_b32 v%d, v%d" % (v, v + 1, v + 2, v + 3))
        self("v_permlane16_swap_b32 v%d, v%d\nv_permlane16_swap_b32 v%d, v%d" % (u, u + 1, u + 2, u + 3))
        self("v_add_f32 v%d, v%d, v%d\nv_add_f32 v%d, v%d, v%d" % (v, v, v + 1, v + 2, v + 2, v + 3))
        self("v_add_f32 v%d, v%d, v%d\nv_add_f32 v%d, v%d, v%d" % (u, u, u + 1, u + 2, u + 2, u + 3))
        self("v_permlane32_swap_b32 v%d, v%d" % (v, v + 2))
        self.nop(1)
        self("v_permlane32_swap_b32 v%d, v%d" % (u, u + 2))
        self("v_add_f32 v%d, v%d, v%d\nv_add_f32 v%d, v%d, v%d" % (v, v, v + 2, u, u, u + 2))
    def ln_stats_list(self, vs, vq, vm, vr, t):
        return ["v_mul_f32 v%d, %s, v%d" % (vs, f32(1.0 / 448), vs), "v_mul_f32 v%d, %s, v%d" % (vq, f32(1.0 / 448), vq),
                "v_fma_f32 v%d, -v%d, v%d, v%d" % (vq, vs, vs, vq), "v_max_f32 v%d, 0, v%d" % (vq, vq),
                "v_cvt_pk_bf16_f32 v%d, v%d, v%d" % (t, vs, vq),
                "v_and_b32 v%d, 0xffff0000, v%d" % (vq, t), "v_lshlrev_b32 v%d, 16, v%d" % (vm, t),
                "v_add_f32 v%d, %s, v%d" % (vq, f32(1e-5), vq), "v_cvt_pk_bf16_f32 v%d, v%d, v%d" % (t, vq, vq),
                "v_lshlrev_b32 v%d, 16, v%d" % (vq, t), "v_sqrt_f32 v%d, v%d" % (vq, vq), "s_nop 0",
                "v_cvt_pk_bf16_f32 v%d, v%d, v%d" % (t, vq, vq), "v_lshlrev_b32 v%d, 16, v%d" % (vq, t),
                "v_rcp_f32 v%d, v%d" % (vr, vq), "s_nop 0"]
    def tags_setup(self):
        for k in range(4):
            self("s_add_u32 s%d, s%d, 1\ns_and_b32 s%d, s%d, %d\nv_mov_b32 v%d, s%d" % (28 + k, 28 + k, 28 + k, 28 + k, TAGM, V_TAG + k, 28 + k))

def build(stamps=0, win=48, qp=14, qslp=16, fast=1, ps1=0, ps2=0, ps3=0, cpf=1, ack=1, gate=1, pret=0, mls=32, prew=0, dlate=0, thr=0, off=0):
    A = Gen(stamps)
    A.L.append(HEADER.rstrip())
    A.L.append("; @launch grid=(256,1,1) block=(512,1,1) lds=%d" % LDS_TOTAL)
    A.L.append('.amdgcn_target "amdgcn-amd-amdhsa--gfx950"')
    A.L.append(".text\n.globl %s_kernel\n.p2align 8\n.type %s_kernel,@function\n%s_kernel:" % (NAME, NAME, NAME))
    A("s_cmp_ge_u32 s2, 256\ns_cbranch_scc1 L_end")
    A("s_load_dwordx16 s[4:19], s[0:1], 0\ns_load_dwordx8 s[20:27], s[0:1], 64")
    if stamps: A("s_memrealtime s[68:69]")
    A("v_lshrrev_b32 v1, 6, v0\nv_and_b32 v0, 63, v0\nv_readfirstlane_b32 s3, v1")
    A("s_and_b32 s32, s2, 15\ns_lshr_b32 s33, s2, 4\ns_lshr_b32 s34, s32, 3\ns_and_b32 s35, s32, 7")
    A("v_mov_b32 v%d, %d\ns_mov_b32 s64, %d" % (V_MISC, MISC, 1 << 20))
    A("s_cmp_ge_u32 s33, %d\ns_cbranch_scc1 L_service" % NA)
    A("s_mul_i32 s65, s33, 43691\ns_add_u32 s66, s65, 43691\ns_lshr_b32 s65, s65, 6\ns_lshr_b32 s66, s66, 6")
    for a in range(NA + 1): assert (a * 43691) >> 6 == a * 8192 // NA
    A("s_cmp_lg_u32 s3, 1\ns_cbranch_scc1 L_notloader")
    A("s_setprio 3")
    A("v_lshrrev_b32 v1, 5, v0\nv_and_b32 v2, 31, v0\nv_xor_b32 v4, v2, v1\nv_lshlrev_b32 v4, 4, v4\nv_lshl_or_b32 v8, v1, 9, v4")
    for j in range(1, 8):
        A("v_xor_b32 v%d, %d, v8" % (8 + j, 32 * j))
    A("s_lshl_b32 s45, s32, 22\ns_lshl_b32 s44, s65, 9\ns_add_u32 s44, s44, s45\ns_lshl_b32 s38, s66, 9\ns_add_u32 s38, s38, s45")
    A("s_mov_b32 s45, s44\ns_mov_b32 s46, 0\ns_mov_b32 s47, 0\ns_mov_b32 s48, 0\ns_mov_b32 s50, 3\ns_mov_b32 m0, 0")
    A("s_mov_b32 s39, 0x20000")
    A("s_waitcnt lgkmcnt(0)")
    A.stamp(2)
    A("s_mov_b32 s36, s6\ns_mov_b32 s37, s7")
    W = win
    lag = W // 16 - 1
    def land(k):
        A("s_sub_i32 s56, s46, %d\ns_max_i32 s48, s48, s56\nv_mov_b32 v20, s48\nds_write_b32 v%d, v20 offset:%d" % (k, V_MISC, L_LAND))
    A("L_slot:")
    A("s_add_u32 s56, s47, %d\ns_cmp_lt_u32 s46, s56\ns_cbranch_scc0 L_waitfree" % RING)
    A("L_go:")
    A("s_waitcnt vmcnt(%d)" % (W - 8))
    for j in range(16):
        if j == 8:
            A("s_waitcnt vmcnt(%d)" % (W - 8))
            land(lag)
        A("buffer_load_dwordx4 v%d, s[36:39], s45 offen nt lds" % (8 + j % 8))
        A("s_add_u32 m0, m0, 1024\ns_add_u32 s45, s45, 1024")
    A("s_and_b32 m0, m0, %d" % (MISC - 1))
    A("s_add_u32 s46, s46, 1\ns_cmp_lg_u32 s46, s50\ns_cbranch_scc1 L_slot")
    A("s_cmp_lg_u32 s46, 3\ns_cbranch_scc1 L_evV")
    A.stamp(29)
    A("s_barrier")
    A.stamp(30)
    if stamps:
        A("s_waitcnt vmcnt(40)")
        A.stamp(31)
    A("s_mov_b32 s50, %d\ns_branch L_slot" % NSL)
    A("L_evV:\ns_cmp_lg_u32 s46, %d\ns_cbranch_scc1 L_ldone" % NSL)
    A.stamp(1)
    A("v_lshlrev_b32 v4, 1, v1\nv_xor_b32 v4, v2, v4\nv_lshlrev_b32 v4, 4, v4\nv_lshl_or_b32 v8, v1, 9, v4")
    for j in range(1, 8):
        A("v_xor_b32 v%d, %d, v8" % (8 + j, 64 * (j & 3)))
    A("s_mov_b32 s36, s8\ns_mov_b32 s37, s9\ns_mov_b32 s45, s44\ns_mov_b32 s50, %d\ns_branch L_slot" % (2 * NSL))
    A("L_ldone:")
    A.stamp(3)
    for k in range(lag, -1, -1):
        A("s_waitcnt vmcnt(%d)" % (16 * k))
        land(k)
    A.stamp(4)
    A.stamp_flush([0, 1, 2, 3, 4, 29, 30, 31])
    A("s_endpgm")
    A("L_waitfree:")
    def prog_check():
        A("ds_read_b128 v[20:23], v%d offset:%d\nds_read_b64 v[24:25], v%d offset:%d\ns_waitcnt lgkmcnt(0)" % (V_MISC, L_PROG, V_MISC, L_PROG + 16))
        A("v_min3_u32 v20, v20, v21, v22\nv_min3_u32 v23, v23, v24, v25\nv_min_u32 v20, v20, v23\ns_nop 0\nv_readfirstlane_b32 s47, v20")
        A("s_add_u32 s56, s47, %d\ns_cmp_lt_u32 s46, s56\ns_cbranch_scc1 L_go" % RING)
    for k in range(lag, -1, -1):
        prog_check()
        A("s_waitcnt vmcnt(%d)" % (16 * k))
        land(k)
    A("L_wf2:")
    prog_check()
    A("s_sleep 1\ns_sub_u32 s64, s64, 1\ns_cbranch_scc0 L_wf2\ns_mov_b32 s64, 0\ns_branch L_go")

    def common_setup():
        A("v_lshrrev_b32 v%d, 4, v0\nv_and_b32 v%d, 15, v0" % (V_G, V_N))
        A("s_waitcnt lgkmcnt(0)")
        A("s_load_dwordx4 s[28:31], s[26:27], %d" % WS_E)
        A("s_mov_b32 s52, s26\ns_mov_b32 s53, s27\ns_mov_b32 s54, %d\ns_mov_b32 s55, 0x20000" % WS_END)
        A("s_mov_b32 s59, %d" % (0xffffffff & ~TAGM))
    A("L_notloader:")
    common_setup()
    A("s_cmp_lg_u32 s3, 0\ns_cbranch_scc1 L_noinit")
    A("v_mov_b32 v8, 0\nv_lshl_add_u32 v9, v0, 2, v%d\nds_write_b32 v9, v8 offset:%d" % (V_MISC, L_LSUM))
    A("s_mov_b64 exec, 0xff\nds_write_b32 v9, v8 offset:%d\nds_write_b32 v9, v0 offset:%d" % (L_LAND, L_PROG))
    A("s_mov_b64 exec, 0x3\nv_mov_b32 v10, 0xff800000\nds_write_b32 v9, v10 offset:%d\ns_mov_b64 exec, -1" % L_MX)
    A("L_noinit:")
    A("s_sub_u32 s61, s3, 2")
    A("s_waitcnt lgkmcnt(0)")
    A.tags_setup()
    A("s_mov_b32 s48, 0\ns_barrier")
    A("s_cmp_ge_u32 s3, 2\ns_cbranch_scc1 L_cons")
    A("s_lshl_b32 s45, s34, 14\ns_lshl_b32 s46, s35, 11\ns_add_u32 s45, s45, s46\ns_add_u32 s45, s45, %d" % WS_Q)
    A("v_lshlrev_b32 v16, 4, v0")
    A.lds_wait_ge(L_LAND, 48, str(qp), 17)
    A.stamp(7)
    A.gather([(16, 0), (16, 1024)], 20, 17, "s45", sleep=qslp)
    A("s_mov_b32 s56, 0x07060302")
    for i in range(4):
        A("v_perm_b32 v%d, v%d, v%d, s56" % (28 + i, 21 + 2 * i, 20 + 2 * i))
    A("v_lshl_add_u32 v16, v0, 3, v%d" % V_MISC)
    A("ds_write_b64 v16, v[28:29] offset:%d\nds_write_b64 v16, v[30:31] offset:%d" % (L_Q, L_Q + 512))
    A("s_getreg_b32 s56, hwreg(HW_REG_XCC_ID)\ns_and_b32 s56, s56, 15\nv_bfe_u32 v18, v20, 10, 4\nv_bfe_u32 v19, v24, 10, 4")
    A("v_cmp_ne_u32 vcc, s56, v18\nv_cmp_ne_u32 s[44:45], s56, v19\ns_nop 0\ns_or_b64 vcc, vcc, s[44:45]\ns_cselect_b32 s56, 1, %d" % (2 if fast else 1))
    A("s_mov_b32 s67, s56\nv_mov_b32 v17, s56\nds_write_b32 v%d, v17 offset:%d" % (V_MISC, L_QF))
    A.stamp(8)
    A.lds_wait_ge(L_C2, 47, "6", 8, cached=False, sleep=4)
    A("ds_read_b32 v10, v9 offset:%d\nds_read_b64 v[12:13], v%d offset:%d\ns_waitcnt lgkmcnt(0)" % (L_LSUM, V_MISC, L_MX))
    for r in (1, 2, 4, 8):
        A("v_add_f32_dpp v10, v10, v10 row_ror:%d %s" % (r, DPP))
        A.nop(2)
    A("v_readlane_b32 s56, v10, 16\nv_readlane_b32 s57, v10, 32\nv_readlane_b32 s58, v10, 48")
    A.nop(1)
    A("v_add_f32 v14, s56, v10\nv_mov_b32 v15, s57\nv_add_f32 v15, s58, v15")
    A.tag4(12, 12)
    A("s_lshl_b32 s45, s32, 8\ns_add_u32 s45, s45, %d\ns_lshl_b32 s46, s33, 4\nv_mov_b32 v9, s46" % WS_ML)
    A("s_mov_b64 exec, 1\ns_cmp_eq_u32 s67, 2\ns_cbranch_scc1 L_mlfast")
    A("buffer_store_dwordx4 v[12:15], v9, s[52:55], s45 offen sc1\ns_branch L_mldone\nL_mlfast:")
    A("buffer_store_dwordx4 v[12:15], v9, s[52:55], s45 offen\nL_mldone:")
    A.stamp_flush([7, 8])
    A("s_endpgm")

    A("L_cons:")
    KA = 8; KT = 244; KD = [16, 80, 144, 16]; QB = 208; AC = 240; S = 248
    A("v_xor_b32 v12, v%d, v%d\nv_lshlrev_b32 v12, 4, v12\nv_lshl_or_b32 v%d, v%d, 9, v12" % (V_G, V_N, KA, V_N))
    for k in range(1, 4):
        A("v_xor_b32 v%d, %d, v%d" % (KA + k, 64 * k, KA))
    A("s_add_u32 s46, s61, 1\ns_lshl_b32 s44, s61, 14")
    A("s_lshl_b32 s62, s61, 2\nv_add_u32 v13, s62, v%d" % V_MISC)
    def kread(i):
        for k in range(4):
            A("v_add_u32 v%d, s44, v%d" % (KT + k, KA + k))
        A.lds_wait_ge(L_LAND, 48, "s46", 12)
        for tt in range(2):
            for kk in range(8):
                r = KD[i] + 32 * tt + 4 * kk
                A("ds_read_b128 v[%d:%d], v%d offset:%d" % (r, r + 3, KT + (kk & 3), tt * 8192 + (kk >> 2) * 256))
        A("s_add_u32 s56, s46, 5\ns_min_u32 s56, s56, %d\nv_mov_b32 v12, s56\ns_add_u32 s46, s46, 6" % NSL)
        A("s_add_u32 s44, s44, %d\ns_and_b32 s44, s44, %d" % (6 * 16384, MISC - 1))
        A("s_waitcnt lgkmcnt(0)")
        A("ds_write_b32 v13, v12 offset:%d" % L_PROG)
    def kcomp(i):
        for kk in range(8):
            for tt in range(2):
                r = KD[i] + 32 * tt + 4 * kk
                A("v_mfma_f32_16x16x32_bf16 v[%d:%d], v[%d:%d], v[%d:%d], %s" % (AC + 4 * tt, AC + 4 * tt + 3, r, r + 3, QB + 4 * kk, QB + 4 * kk + 3, "0" if kk == 0 else "v[%d:%d]" % (AC + 4 * tt, AC + 4 * tt + 3)))
        A.mask(0x00030003 << (4 * i))
        A.nop(5)
        for k in range(4):
            A("v_cndmask_b32 v%d, v%d, v%d, s[56:57]" % (S + k, S + k, AC + k))
        A("s_lshl_b64 s[56:57], s[56:57], 2")
        for k in range(4):
            A("v_cndmask_b32 v%d, v%d, v%d, s[56:57]" % (S + k, S + k, AC + 4 + k))
    for i in range(3):
        kread(i)
    A.lds_wait_ge(L_QF, 67, "1", 12, cached=False)
    A("v_and_b32 v12, 1, v%d\nv_lshlrev_b32 v12, 9, v12\nv_lshl_add_u32 v12, v%d, 4, v12\nv_add_u32 v12, v%d, v12" % (V_N, V_G, V_MISC))
    for kk in range(8):
        A("ds_read_b128 v[%d:%d], v12 offset:%d" % (QB + 4 * kk, QB + 4 * kk + 3, L_Q + kk * 64))
    A("s_waitcnt lgkmcnt(0)")
    for i in range(3):
        kcomp(i)
    A("s_cmp_gt_u32 s46, %d\ns_cbranch_scc1 L_kdone" % NSL)
    kread(3); kcomp(3)
    A("L_kdone:")
    A.stamp(9)
    A("v_lshrrev_b32 v23, 2, v%d\nv_mul_u32_u24 v16, 192, v23\nv_and_b32 v22, 2, v%d\nv_lshl_add_u32 v16, v22, 3, v16\nv_lshl_add_u32 v16, v%d, 2, v16" % (V_N, V_N, V_G))
    A("s_sub_u32 s44, s66, s65\ns_lshl_b32 s45, s61, 5\ns_sub_u32 s44, s44, s45\nv_mov_b32 v17, 0xff800000")
    for k in range(4):
        A("v_cmp_gt_u32 vcc, s44, v16\nv_add_u32 v16, 1, v16\ns_nop 0\nv_cndmask_b32 v%d, v17, v%d, vcc" % (S + k, S + k))
    A("v_cvt_pk_bf16_f32 v16, v%d, v%d\nv_cvt_pk_bf16_f32 v17, v%d, v%d" % (S, S + 1, S + 2, S + 3))
    A("v_lshlrev_b32 v%d, 16, v16\nv_and_b32 v%d, 0xffff0000, v16\nv_lshlrev_b32 v%d, 16, v17\nv_and_b32 v%d, 0xffff0000, v17" % (S, S + 1, S + 2, S + 3))
    A("v_max3_f32 v16, v%d, v%d, v%d\nv_max_f32 v16, v16, v%d" % (S, S + 1, S + 2, S + 3))
    for r in (2, 4, 8):
        A.nop(2)
        A("v_max_f32_dpp v16, v16, v16 row_ror:%d %s" % (r, DPP))
    A("v_and_b32 v17, 1, v%d\nv_lshl_add_u32 v18, v17, 2, v%d" % (V_N, V_MISC))
    A.mask(0x00030003, "exec")
    A("ds_max_f32 v18, v16 offset:%d" % L_MX)
    A.lds_signal_add(L_C1, 12)
    A("v_mul_u32_u24 v19, 384, v23\nv_mul_u32_u24 v14, %d, v17\nv_lshl_add_u32 v14, v%d, 4, v14\nv_add_u32 v14, v%d, v14" % (PSTR, V_G, V_MISC))
    A("v_lshl_add_u32 v19, v22, 2, v19\ns_lshl_b32 s62, s61, 6\nv_add3_u32 v19, v19, s62, v14")
    A("v_lshlrev_b32 v20, 7, v17\nv_lshl_add_u32 v20, v%d, 2, v20\ns_lshl_b32 s62, s61, 4\nv_add3_u32 v20, v20, s62, v%d" % (V_G, V_MISC))
    A.lds_wait_ge(L_C1, 47, "6", 12, cached=False, sleep=0)
    A("ds_read_b32 v16, v18 offset:%d\ns_waitcnt lgkmcnt(0)" % L_MX)
    for k in range(4):
        A("v_sub_f32 v%d, v%d, v16\nv_mul_f32 v%d, %s, v%d\nv_exp_f32 v%d, v%d" % (S + k, S + k, S + k, f32(C1), S + k, S + k, S + k))
    A("v_add_f32 v16, v%d, v%d\nv_add_f32 v16, v16, v%d\nv_add_f32 v16, v16, v%d" % (S, S + 1, S + 2, S + 3))
    A("v_cvt_pk_bf16_f32 v24, v%d, v%d\nv_cvt_pk_bf16_f32 v25, v%d, v%d" % (S, S + 1, S + 2, S + 3))
    A("ds_write_b64 v19, v[24:25] offset:%d" % L_P)
    for r in (2, 4, 8):
        A("v_add_f32_dpp v16, v16, v16 row_ror:%d %s" % (r, DPP))
        A.nop(2)
    A("s_mov_b64 exec, s[56:57]\nds_write_b32 v20, v16 offset:%d" % L_LSUM)
    A.lds_signal_add(L_C2, 12)
    A("s_cmp_ge_u32 s3, 4\ns_cbranch_scc1 L_pv")
    A("v_mov_b32 v12, 0x7fff\nds_write_b32 v13, v12 offset:%d" % L_PROG)
    A("s_endpgm")
    A("L_pv:")
    A("s_sub_u32 s61, s3, 4")
    VA = 8; VT = 16; VD = 24; PB = 40; OA = 96
    A("v_lshrrev_b32 v16, 2, v0\nv_and_b32 v18, 7, v16\ns_lshl_b32 s62, s61, 2\nv_xor_b32 v18, s62, v18\nv_lshlrev_b32 v18, 5, v18")
    A("v_lshl_or_b32 v18, v16, 9, v18\nv_and_b32 v16, 3, v0\nv_lshl_or_b32 v%d, v16, 3, v18" % VA)
    for tt in range(1, 4):
        A("v_xor_b32 v%d, %d, v%d" % (VA + tt, 32 * tt, VA))
    for k in range(4):
        A("v_mov_b32 v%d, 0" % (OA + k))
    for k in range(16):
        A("v_mov_b32 v%d, 0" % (PB + k))
    A("v_lshlrev_b32 v112, 7, v%d\nv_lshl_add_u32 v112, v%d, 4, v112" % (V_G, V_N))
    A("s_lshl_b32 s41, s32, 15\ns_lshl_b32 s56, s61, 9\ns_add_u32 s41, s41, s56\ns_add_u32 s41, s41, %d" % WS_OP)
    A("s_lshl_b32 s56, s33, 11\ns_add_u32 s40, s41, s56")
    for tt in range(4):
        A("s_mov_b32 s%d, 0x%08x\ns_mov_b32 s%d, s%d" % (4 + 2 * tt, 0x00030003 << (2 * tt), 5 + 2 * tt, 4 + 2 * tt))
    A("s_mov_b32 s12, 0x00ff00ff\ns_mov_b32 s13, s12")
    if prew:
        A("s_cmp_lg_u32 s67, 2\ns_cbranch_scc1 L_noprew")
        for k in range(4):
            A("v_xor_b32 v%d, 1, v%d" % (100 + k, V_TAG + k))
        A("s_mov_b64 exec, s[12:13]\nbuffer_store_dwordx4 v[100:103], v112, s[52:55], s40 offen\ns_mov_b64 exec, -1\nL_noprew:")
    A.lds_wait_ge(L_C2, 47, "6", 12, cached=False, sleep=0)
    A.stamp(10)
    A("s_mov_b32 s46, %d\ns_mov_b32 s44, %d" % (NSL + 1, (NSL % RING) * 16384))
    A("L_vloop:")
    for tt in range(4):
        A("s_mov_b64 exec, s[%d:%d]\nds_read_b128 v[%d:%d], v14 offset:%d" % (4 + 2 * tt, 5 + 2 * tt, PB + 4 * tt, PB + 4 * tt + 3, L_P))
    A("s_mov_b64 exec, -1")
    for tt in range(4):
        A("v_add_u32 v%d, s44, v%d" % (VT + tt, VA + tt))
    A.lds_wait_ge(L_LAND, 48, "s46", 12, sleep=0)
    for tt in range(4):
        A("ds_read_b64_tr_b16 v[%d:%d], v%d" % (VD + 4 * tt, VD + 4 * tt + 1, VT + tt))
        A("ds_read_b64_tr_b16 v[%d:%d], v%d offset:8192" % (VD + 4 * tt + 2, VD + 4 * tt + 3, VT + tt))
    A("v_mov_b32 v12, s46\nv_add_u32 v14, 64, v14\ns_add_u32 s44, s44, 16384\ns_and_b32 s44, s44, %d" % (MISC - 1))
    A("s_add_u32 s46, s46, 1\ns_cmp_le_u32 s46, %d" % (2 * NSL))
    for tt in range(4):
        A("s_waitcnt lgkmcnt(%d)" % (6 - 2 * tt))
        A("v_mfma_f32_16x16x32_bf16 v[%d:%d], v[%d:%d], v[%d:%d], v[%d:%d]" % (OA, OA + 3, VD + 4 * tt, VD + 4 * tt + 3, PB + 4 * tt, PB + 4 * tt + 3, OA, OA + 3))
    A("ds_write_b32 v13, v12 offset:%d" % L_PROG)
    A("s_cbranch_scc1 L_vloop")
    A("s_mov_b64 exec, s[12:13]\ns_cmp_eq_u32 s67, 2")
    A.nop(4)
    A.tag4(OA, OA)
    A("s_cbranch_scc0 L_slowpub")
    A("buffer_store_dwordx4 v[%d:%d], v112, s[52:55], s40 offen" % (OA, OA + 3))
    A("s_branch L_pubdone\nL_slowpub:")
    A("buffer_store_dwordx4 v[%d:%d], v112, s[52:55], s40 offen sc1" % (OA, OA + 3))
    A("L_pubdone:")
    if stamps:
        A.stamp(11)
        A("s_cmp_lg_u32 s3, 4\ns_cbranch_scc1 L_end")
        A.stamp_flush([9, 10, 11])
    A("s_endpgm")

    A("L_service:")
    A("v_mov_b32 v%d, %d" % (V_MISC, SMISC))
    common_setup()
    A("s_sub_u32 s33, s2, %d\ns_lshr_b32 s33, s33, 3" % (16 * NA))
    A("s_mov_b32 s40, s4\ns_mov_b32 s41, s5\ns_mov_b32 s42, 1792\ns_mov_b32 s43, 0x20000")
    A("s_cmp_lg_u32 s3, 0\ns_cbranch_scc1 L_s1")
    A("v_lshrrev_b32 v8, 5, v0\nv_and_b32 v9, 31, v0\nv_mul_u32_u24 v10, 896, v8\nv_lshl_add_u32 v10, v9, 4, v10")
    A("v_cmp_gt_u32 vcc, 28, v9\nv_mov_b32 v11, 0x1000\ns_nop 0\nv_cndmask_b32 v11, v11, v10, vcc")
    A("buffer_load_dwordx4 v[16:19], v11, s[40:43], 0 offen\nbuffer_load_dwordx4 v[20:23], v11, s[40:43], 0 offen offset:448")
    A("L_s1:")
    def dma7(vaddr, gstep, lds, t=0):
        A("s_mul_i32 s56, s3, 7168\ns_add_u32 m0, s56, %d" % lds)
        for j in range(7):
            if j: A("s_add_u32 m0, m0, 1024\ns_add_u32 s45, s45, %d" % gstep)
            else: A("s_nop 0")
            A("buffer_load_dwordx4 v%d, s[36:39], s45 offen nt lds" % vaddr)
            if t: A("s_waitcnt vmcnt(%d)" % (t - 1))
    A("v_lshrrev_b32 v12, 3, v0\nv_and_b32 v13, 7, v0\nv_lshlrev_b32 v13, 4, v13\nv_lshl_add_u32 v14, v12, 13, v13\nv_mul_u32_u24 v12, 896, v12\nv_add_u32 v15, v12, v13")
    A("s_mov_b32 s36, s10\ns_mov_b32 s37, s11\ns_mov_b32 s38, %d\ns_mov_b32 s39, 0x20000" % (0 if off & 1 else 448 * 8192))
    A("s_lshl_b32 s44, s35, 3\ns_add_u32 s44, s44, s33\ns_lshl_b32 s45, s44, 7\ns_mul_i32 s56, s3, %d\ns_add_u32 s45, s45, s56" % (56 * 8192))
    dma7(14, 8 * 8192, R_A)
    A("s_waitcnt lgkmcnt(0)")
    A.tags_setup()
    A("s_cmp_lg_u32 s3, 1\ns_cbranch_scc1 L_s2")
    A("v_lshl_add_u32 v9, v0, 4, v%d\nv_mov_b32 v24, 0x3f803f80\nv_mov_b32 v25, v24\nv_mov_b32 v26, v24\nv_mov_b32 v27, v24" % V_MISC)
    A("ds_write_b128 v9, v[24:27] offset:%d" % L_ONES)
    A("v_mov_b32 v28, 0\nv_mov_b32 v29, 0\nv_mov_b32 v30, 0\nv_mov_b32 v31, 0\ns_mov_b64 exec, 0xffffffff\nds_write_b128 v9, v[28:31] offset:%d\ns_mov_b64 exec, -1" % L_ST)
    A("L_s2:")
    A("s_cmp_lg_u32 s3, 0\ns_cbranch_scc1 L_s3")
    A("s_waitcnt vmcnt(7)")
    A.stamp(5)
    X = 24
    for i in range(8):
        A("v_lshlrev_b32 v%d, 16, v%d\nv_and_b32 v%d, 0xffff0000, v%d" % (X + 2 * i, 16 + i, X + 2 * i + 1, 16 + i))
    A("v_add_f32 v40, v%d, v%d\nv_mul_f32 v41, v%d, v%d\nv_fmac_f32 v41, v%d, v%d" % (X, X + 1, X, X, X + 1, X + 1))
    for i in range(2, 16):
        A("v_add_f32 v40, v40, v%d\nv_fmac_f32 v41, v%d, v%d" % (X + i, X + i, X + i))
    for r in (1, 2, 4, 8):
        A.nop(1)
        A("v_add_f32_dpp v40, v40, v40 row_ror:%d %s\nv_add_f32_dpp v41, v41, v41 row_ror:%d %s" % (r, DPP, r, DPP))
    A("v_mov_b32 v42, v40\nv_mov_b32 v43, v41")
    A.nop(2)
    A("v_permlane16_swap_b32 v40, v42\nv_permlane16_swap_b32 v41, v43")
    A("v_add_f32 v40, v40, v42\nv_add_f32 v41, v41, v43")
    A("\n".join(A.ln_stats_list(40, 41, 42, 43, 44)))
    for i in range(8):
        a, b = X + 2 * i, X + 2 * i + 1
        A("v_sub_f32 v%d, v%d, v42\nv_sub_f32 v%d, v%d, v42\nv_cvt_pk_bf16_f32 v44, v%d, v%d" % (a, a, b, b, a, b))
        A("v_lshlrev_b32 v%d, 16, v44\nv_and_b32 v%d, 0xffff0000, v44" % (a, b))
        A("v_mul_f32 v%d, v%d, v43\nv_mul_f32 v%d, v%d, v43\nv_cvt_pk_bf16_f32 v%d, v%d, v%d" % (a, a, b, b, 16 + i, a, b))
    A("v_add_u32 v10, v%d, v10" % V_MISC)
    A.mask(0x0fffffff, "exec")
    A("ds_write_b128 v10, v[16:19] offset:%d\nds_write_b128 v10, v[20:23] offset:%d" % (L_LN, L_LN + 448))
    A("s_mov_b64 exec, -1")
    A("L_s3:")
    A("v_lshrrev_b32 v9, 2, v%d\nv_lshl_add_u32 v9, v%d, 3, v9\nv_lshlrev_b32 v11, 7, v9\nv_and_b32 v10, 3, v0" % (V_N, V_G))
    A("s_waitcnt vmcnt(0) lgkmcnt(0)\ns_barrier")
    A.stamp(6)
    A("s_cmp_ge_u32 s3, 4\ns_cbranch_scc1 L_s4")
    BQ = 16; AQ = 72
    A("v_and_b32 v8, 1, v%d\nv_mul_u32_u24 v8, 896, v8\nv_lshl_add_u32 v8, v%d, 4, v8\nv_add_u32 v8, v%d, v8" % (V_N, V_G, V_MISC))
    A("v_lshl_add_u32 v12, v10, 3, v11\ns_lshl_b32 s56, s3, 5\nv_add_u32 v12, s56, v12")
    for kk in range(14):
        A("ds_read_b128 v[%d:%d], v8 offset:%d" % (BQ + 4 * kk, BQ + 4 * kk + 3, L_LN + kk * 64))
        A("ds_read_b64_tr_b16 v[%d:%d], v12 offset:%d" % (AQ + 4 * kk, AQ + 4 * kk + 1, R_A + kk * 4096))
        A("ds_read_b64_tr_b16 v[%d:%d], v12 offset:%d" % (AQ + 4 * kk + 2, AQ + 4 * kk + 3, R_A + kk * 4096 + 512))
    A("s_waitcnt lgkmcnt(0)")
    for kk in range(14):
        A("v_mfma_f32_16x16x32_bf16 v[128:131], v[%d:%d], v[%d:%d], %s" % (AQ + 4 * kk, AQ + 4 * kk + 3, BQ + 4 * kk, BQ + 4 * kk + 3, "0" if kk == 0 else "v[128:131]"))
    A("v_and_b32 v16, 1, v%d\nv_lshlrev_b32 v16, 14, v16\nv_lshl_add_u32 v16, v%d, 4, v16" % (V_N, V_G))
    A("s_lshl_b32 s45, s44, 8\ns_lshl_b32 s56, s3, 6\ns_add_u32 s45, s45, s56\ns_add_u32 s45, s45, %d" % WS_Q)
    A("s_getreg_b32 s46, hwreg(HW_REG_XCC_ID)\ns_and_b32 s46, s46, 15\ns_lshl_b32 s46, s46, 10")
    A("v_cvt_pk_bf16_f32 v12, v128, v129\nv_cvt_pk_bf16_f32 v13, v130, v131")
    A("v_lshl_or_b32 v128, v12, 16, v%d\nv_and_b32 v129, 0xffff0000, v12\nv_or_b32 v129, v129, v%d" % (V_TAG, V_TAG + 1))
    A("v_lshl_or_b32 v130, v13, 16, v%d\nv_and_b32 v131, 0xffff0000, v13\nv_or_b32 v131, v131, v%d" % (V_TAG + 2, V_TAG + 3))
    A("v_or_b32 v128, s46, v128")
    A.mask(0x00030003, "exec")
    A("buffer_store_dwordx4 v[128:131], v16, s[52:55], s45 offen sc1")
    A("s_mov_b64 exec, -1")
    A.stamp(7)
    A("L_s4:")
    A("s_cmp_ge_u32 s33, 7\ns_cbranch_scc1 L_end")
    A("s_mul_i32 s65, s35, 7\ns_add_u32 s65, s65, s33")
    A("s_cmp_lt_u32 s3, 4\ns_cselect_b32 s36, s16, s18\ns_cselect_b32 s37, s17, s19\ns_mov_b32 s38, %d" % (0 if off & 2 else 448 * 3584))
    A("s_and_b32 s56, s3, 3\ns_mul_i32 s45, s56, %d\ns_lshl_b32 s56, s65, 6\ns_add_u32 s45, s45, s56" % (112 * 3584))
    A("v_lshrrev_b32 v14, 2, v0\nv_mul_u32_u24 v14, 3584, v14\nv_lshl_add_u32 v14, v10, 4, v14")
    dma7(14, 16 * 3584, R_G, thr)
    def down_dma(sreg, lab):
        A("s_cmp_eq_u32 s3, 7\ns_cbranch_scc1 %s" % lab)
        for j in range(4):
            A("buffer_load_dwordx4 v246, s[36:39], s%d offen offset:%d nt lds" % (sreg, j * 1024))
            if thr: A("s_waitcnt vmcnt(%d)" % (thr - 1))
        A("%s:" % lab)
    def down_setup():
        A("s_mul_i32 s60, s65, 28672\ns_add_u32 s38, s60, 28672\ns_mov_b32 s36, s20\ns_mov_b32 s37, s21\ns_lshl_b32 s56, s3, 12\ns_add_u32 s60, s60, s56\ns_add_u32 m0, s56, %d" % R_D)
        if off & 8: A("s_mov_b32 s38, 0")
    A("v_lshlrev_b32 v14, 4, v0\nv_lshlrev_b32 v246, 4, v0")
    if not dlate:
        down_setup(); down_dma(60, "L_s5a")
    A("L_s5:")
    A("s_barrier")
    A("s_mov_b32 s36, s12\ns_mov_b32 s37, s13\ns_mov_b32 s38, %d" % (0 if off & 4 else 4096 * 896))
    A("s_mul_i32 s45, s35, %d\ns_mul_i32 s56, s3, %d\ns_add_u32 s45, s45, s56\ns_lshl_b32 s56, s33, 7\ns_add_u32 s45, s45, s56" % (512 * 896, 64 * 896))
    A("s_lshl_b32 s56, s3, 13\ns_mov_b32 m0, s56")
    for j in range(8):
        if j: A("s_add_u32 m0, m0, 1024\ns_add_u32 s45, s45, %d" % (8 * 896))
        else: A("s_nop 0")
        A("buffer_load_dwordx4 v15, s[36:39], s45 offen nt lds")
        if thr: A("s_waitcnt vmcnt(%d)" % (thr - 1))
    if dlate: down_setup()
    if cpf:
        A("s_getpc_b64 s[56:57]\nL_pc:\ns_lshl_b32 s46, s3, 10\nv_add_u32 v14, s46, v14\nv_min_u32 v14, L_end-L_pc-12, v14")
        A("global_load_dwordx4 v[28:31], v14, s[56:57]")
    A("v_lshlrev_b32 v21, 4, v%d\nv_add_u32 v22, v21, v%d" % (V_G, V_MISC))
    A("s_mov_b32 s48, 0xcccccccc\ns_mov_b32 s49, s48\ns_mov_b32 s50, 0xf0f0f0f0\ns_mov_b32 s51, s50\ns_mov_b32 s62, 0xff00ff00\ns_mov_b32 s63, s62")
    A("v_and_b32 v12, 8, v%d\nv_lshlrev_b32 v12, 2, v12\nv_lshl_add_u32 v12, v10, 3, v12\nv_lshl_add_u32 v12, v%d, 1, v12\ns_lshl_b32 s56, s3, 7\nv_add_u32 v12, s56, v12" % (V_N, V_G))
    A("v_bfe_u32 v13, v%d, 2, 1\nv_lshl_add_u32 v248, v13, 10, v12\nv_add_u32 v248, v248, v%d\nv_mul_u32_u24 v13, 896, v13\nv_add_u32 v12, v12, v13\nv_mov_b32 v252, 0\nv_mov_b32 v253, 0" % (V_N, V_MISC))
    A("buffer_load_short_d16_hi v252, v12, s[40:43], 0 offen\nbuffer_load_short_d16_hi v253, v12, s[40:43], 0 offen offset:64")
    A("v_and_b32 v12, 1, v0\nv_lshlrev_b32 v12, 3, v12\nv_lshl_add_u32 v12, v9, 6, v12\nv_lshrrev_b32 v13, 1, v10\nv_mul_u32_u24 v13, 28672, v13\ns_lshl_b32 s56, s3, 4\ns_add_u32 s56, s56, %d\nv_add3_u32 v12, v12, v13, s56" % R_G)
    A("v_lshl_add_u32 v13, v10, 3, v11\ns_and_b32 s56, s3, 3\ns_lshl_b32 s56, s56, 5\nv_add_u32 v13, s56, v13")
    A("v_mul_u32_u24 v14, 896, v9\nv_lshl_add_u32 v14, v10, 5, v14\ns_lshl_b32 s56, s3, 7\ns_add_u32 s56, s56, %d\nv_add_u32 v14, s56, v14" % R_D)
    A("s_lshr_b32 s56, s3, 2\ns_lshl_b32 s47, s56, 3\ns_add_u32 s47, s47, s35\ns_lshl_b32 s46, s47, 8\ns_add_u32 s46, s46, %d\ns_lshl_b32 s47, s47, 15" % WS_ML)
    A("s_and_b32 s57, s3, 3\ns_lshl_b32 s44, s57, 9\ns_add_u32 s47, s47, s44\ns_add_u32 s47, s47, %d" % WS_OP)
    A("v_mul_u32_u24 v8, 6144, v%d\nv_lshl_add_u32 v8, v%d, 4, v8\nv_add_u32 v15, 4096, v8" % (V_G, V_N))
    A("v_mul_u32_u24 v16, 3, v%d\nv_min_u32 v17, 11, v%d\nv_add_u32 v16, v16, v17\nv_subrev_u32 v17, 12, v16\nv_min_u32 v16, v16, v17\nv_lshlrev_b32 v16, 4, v16" % (V_G, V_N))
    A("v_and_b32 v17, 8, v%d\nv_lshl_add_u32 v17, v%d, 1, v17\nv_and_b32 v9, 6, v%d\nv_lshl_add_u32 v17, v9, 4, v17\nv_and_b32 v9, 1, v%d\nv_lshl_add_u32 v17, v9, 9, v17" % (V_N, V_G, V_N, V_N))
    A("s_lshl_b32 s56, s56, 10\ns_lshl_b32 s44, s57, 7\ns_add_u32 s56, s56, s44\nv_add3_u32 v17, v17, s56, v%d" % V_MISC)
    A("v_lshl_add_u32 v18, v9, 10, v22")
    A("s_mul_i32 s44, s35, 28\ns_lshl_b32 s56, s33, 2\ns_add_u32 s44, s44, s56\ns_add_u32 s44, s44, s57\ns_lshl_b32 s44, s44, 7\ns_add_u32 s44, s44, %d" % WS_AP)
    A("s_mul_i32 s61, s65, 3584\ns_lshl_b32 s56, s3, 9\ns_add_u32 s61, s61, s56\ns_add_u32 s61, s61, %d" % WS_FP)
    A("v_lshl_add_u32 v19, v%d, 6, v21\nv_lshlrev_b32 v245, 7, v%d\nv_lshl_add_u32 v245, v%d, 4, v245" % (V_N, V_G, V_N))
    A("s_add_u32 s45, s56, %d\nv_mul_u32_u24 v249, 7168, v%d\nv_lshl_add_u32 v249, v%d, 4, v249" % (WS_AP, V_G, V_N))
    A("v_cmp_eq_u32 vcc, 1, v9\nv_and_b32 v250, 2, v%d\nv_lshl_add_u32 v250, v250, 9, v22\nv_mov_b32 v23, %d\nv_cndmask_b32 v250, v250, v23, vcc" % (V_N, SMISC + L_ONES - L_H))
    A("v_lshl_add_u32 v23, v9, 6, v22")
    A("v_and_b32 v251, 2, v%d\nv_lshlrev_b32 v251, 7, v251\nv_lshl_add_u32 v251, v9, 5, v251\nv_and_b32 v9, 12, v%d\nv_lshl_add_u32 v251, v9, 4, v251\nv_add_u32 v251, v251, v%d" % (V_N, V_N, V_MISC))
    A("v_and_b32 v247, 4, v%d\nv_lshlrev_b32 v247, 6, v247\nv_lshl_add_u32 v247, v%d, 3, v247\ns_lshl_b32 s56, s3, 5\nv_add3_u32 v247, v247, s56, v%d" % (V_N, V_G, V_MISC))
    A("v_and_b32 v254, 2, v%d\nv_lshlrev_b32 v254, 5, v254\nv_lshl_add_u32 v254, v%d, 3, v254\nv_lshrrev_b32 v9, 2, v%d\nv_lshl_add_u32 v254, v9, 1, v254\ns_lshl_b32 s56, s3, 4\nv_add3_u32 v254, v254, s56, v%d" % (V_N, V_G, V_N, V_MISC))
    A("s_mov_b32 s20, 0x00110011\ns_mov_b32 s21, s20\ns_mov_b32 s12, %d\ns_mov_b32 s66, 0x00ff00ff\ns_mov_b32 s67, s66\ns_mov_b32 s34, 0x00030003\ns_mov_b32 s35, s34" % TAGM)
    A("s_lshr_b32 s56, s32, 1\ns_and_b32 s56, s56, 3\ns_lshl_b32 s56, s56, 4\ns_lshl_b64 s[16:17], 0xffff, s56\ns_mov_b64 s[18:19], 0")
    A("s_bitcmp1_b32 s32, 0\ns_cselect_b64 s[18:19], s[16:17], 0\ns_cselect_b64 s[16:17], 0, s[16:17]")
    A("s_waitcnt vmcnt(0)\ns_barrier")
    WA = 136; DA = 120
    def down_frags():
        for t in range(4):
            A("ds_read_b64_tr_b16 v[%d:%d], v14 offset:%d" % (DA + 4 * t, DA + 4 * t + 1, t * 8))
            A("ds_read_b64_tr_b16 v[%d:%d], v14 offset:%d" % (DA + 4 * t + 2, DA + 4 * t + 3, t * 8 + 4 * 896))
    if not dlate: down_frags()
    A("s_cmp_ge_u32 s3, 4\ns_cbranch_scc1 L_s6")
    for kk in range(14):
        A("ds_read_b64_tr_b16 v[%d:%d], v12 offset:%d" % (WA + 4 * kk, WA + 4 * kk + 1, kk * 2048))
        A("ds_read_b64_tr_b16 v[%d:%d], v12 offset:%d" % (WA + 4 * kk + 2, WA + 4 * kk + 3, kk * 2048 + 256))
    A("s_branch L_s7\nL_s6:")
    for kk in range(16):
        A("ds_read_b64_tr_b16 v[%d:%d], v13 offset:%d" % (WA + 4 * kk, WA + 4 * kk + 1, kk * 4096))
        A("ds_read_b64_tr_b16 v[%d:%d], v13 offset:%d" % (WA + 4 * kk + 2, WA + 4 * kk + 3, kk * 4096 + 512))
    A("L_s7:")
    A.stamp(17)
    def weights():
        A.gather([(16, 0)], 24, 20, "s46", sleep=mls)
        A("v_cmp_gt_u32 vcc, %d, v%d\nv_mov_b32 v28, v24\nv_mov_b32 v29, v25\nv_cndmask_b32 v26, 0, v26, vcc\nv_cndmask_b32 v27, 0, v27, vcc" % (NA, V_N))
        for r in (1, 2, 4, 8):
            A("v_max_f32_dpp v28, v28, v28 row_ror:%d %s\nv_max_f32_dpp v29, v29, v29 row_ror:%d %s" % (r, DPP, r, DPP))
            A.nop(1)
        A("v_sub_f32 v24, v24, v28\nv_sub_f32 v25, v25, v29\nv_mul_f32 v24, %s, v24\nv_mul_f32 v25, %s, v25\nv_exp_f32 v24, v24\nv_exp_f32 v25, v25\ns_nop 0" % (f32(C1), f32(C1)))
        A("v_mul_f32 v26, v24, v26\nv_mul_f32 v27, v25, v27")
        for r in (1, 2, 4, 8):
            A.nop(1)
            A("v_add_f32_dpp v26, v26, v26 row_ror:%d %s\nv_add_f32_dpp v27, v27, v27 row_ror:%d %s" % (r, DPP, r, DPP))
        A("v_rcp_f32 v26, v26\nv_rcp_f32 v27, v27\ns_nop 0\nv_mul_f32 v24, v24, v26\nv_mul_f32 v25, v25, v27")
        A.nop(2)
        for hh in range(2):
            for i in range(3):
                A("v_mov_b32_dpp v%d, v%d row_newbcast:%d %s" % (48 + 2 * i + hh, 24 + hh, i, DPP))
        A.mask(0xaaaaaaaa)
        for i in range(3):
            A("v_cndmask_b32 v%d, v%d, v%d, s[56:57]" % (48 + 2 * i, 48 + 2 * i, 49 + 2 * i))
    weights()
    OPL = [[(8, 0), (8, 256)], [(8, 2048), (8, 2304)], [(15, 0), (15, 256)]]
    if pret:
        for g in OPL:
            for va, oo in g:
                A("buffer_load_dwordx4 v[24:27], v%d, s[52:55], s47 offen offset:%d sc1" % (va, oo))
    A.gather2(OPL, 24, 20, "s47", sleep=ps1, sentinel=0x00010001)
    A.stamp(12)
    for hh in range(2):
        for k in (0, 2):
            r = 24 + 4 * hh + k
            A("v_pk_mul_f32 v[%d:%d], v[%d:%d], v[48:49] op_sel_hi:[1,0]" % (r, r + 1, r, r + 1))
    for i in range(1, 3):
        for hh in range(2):
            for k in (0, 2):
                r = 24 + 4 * hh + k
                A("v_pk_fma_f32 v[%d:%d], v[%d:%d], v[%d:%d], v[%d:%d] op_sel_hi:[1,0,1]" % (r, r + 1, r + 8 * i, r + 8 * i + 1, 48 + 2 * i, 49 + 2 * i, r, r + 1))
    A.swapreduce2(24, 28)
    A("v_cvt_pk_bf16_f32 v24, v24, v28\nds_write_b16 v17, v24 offset:%d\nds_write_b16_d16_hi v17, v24 offset:%d" % (L_SO, L_SO + 16))
    A("s_waitcnt lgkmcnt(0)\ns_barrier")
    A("s_cmp_lt_u32 s3, 4\ns_cbranch_scc1 L_s8")
    for kk in range(16):
        A("ds_read_b128 v[%d:%d], v18 offset:%d" % (56 + 4 * kk, 59 + 4 * kk, L_SO + kk * 64))
    for kk in range(16):
        A("s_waitcnt lgkmcnt(%d)" % (15 - kk))
        A("v_mfma_f32_16x16x32_bf16 v[24:27], v[%d:%d], v[%d:%d], %s" % (WA + 4 * kk, WA + 4 * kk + 3, 56 + 4 * kk, 59 + 4 * kk, "0" if kk == 0 else "v[24:27]"))
    A("s_mov_b64 exec, s[34:35]")
    A.nop(7)
    A.tag4(24, 24)
    A("buffer_store_dwordx4 v[24:27], v19, s[52:55], s44 offen sc1")
    A("s_mov_b64 exec, -1")
    if not gate: A("s_waitcnt vmcnt(0)")
    A("L_s8:")
    A("s_barrier")
    A.stamp(13)
    A("s_cmp_eq_u32 s3, 7\ns_cbranch_scc1 L_final")
    if dlate:
        for j in range(4):
            A("buffer_load_dwordx4 v246, s[36:39], s60 offen offset:%d nt lds" % (j * 1024))
    A.gather2([[(249, 3584 * i), (249, 3584 * i + 256)] for i in range(2)], 28, 20, "s45", sleep=ps2, hold=(16, 18) if gate else None)
    A.stamp(14)
    for k in range(0, 8, 2):
        A("v_pk_add_f32 v[%d:%d], v[%d:%d], v[%d:%d]" % (28 + k, 29 + k, 28 + k, 29 + k, 36 + k, 37 + k))
    A.swapreduce2(28, 32)
    A("v_cvt_pk_bf16_f32 v28, v28, v32\nv_lshlrev_b32 v29, 16, v28\nv_and_b32 v28, 0xffff0000, v28\nv_add_f32 v29, v252, v29\nv_add_f32 v28, v253, v28\nv_cvt_pk_bf16_f32 v28, v29, v28")
    A("ds_write_b16 v248, v28 offset:%d\nds_write_b16_d16_hi v248, v28 offset:%d" % (L_H, L_H + 64))
    A("v_lshlrev_b32 v29, 16, v28\nv_and_b32 v30, 0xffff0000, v28\nv_add_f32 v32, v29, v30\nv_mul_f32 v33, v29, v29\nv_fmac_f32 v33, v30, v30")
    for m in ("quad_perm:[1,0,3,2]", "quad_perm:[2,3,0,1]", "row_ror:8"):
        A("v_add_f32_dpp v32, v32, v32 %s %s\ns_nop 0\nv_add_f32_dpp v33, v33, v33 %s %s" % (m, DPP, m, DPP))
    A("s_mov_b64 exec, s[20:21]\nds_write_b64 v247, v[32:33] offset:%d\ns_mov_b64 exec, -1" % L_ST)
    A("s_waitcnt lgkmcnt(0)\ns_barrier")
    A.stamp(18)
    A("s_cmp_ge_u32 s3, 4\ns_cbranch_scc1 L_f2")
    HB = 48
    A("ds_read_b128 v[32:35], v251 offset:%d\nds_read_b128 v[36:39], v251 offset:%d" % (L_ST, L_ST + 16))
    for kk in range(14):
        A("ds_read_b128 v[%d:%d], v250 offset:%d" % (HB + 4 * kk, HB + 4 * kk + 3, L_H + kk * 64))
    side = ["v_pk_add_f32 v[32:33], v[32:33], v[34:35]", "v_pk_add_f32 v[36:37], v[36:37], v[38:39]", "v_pk_add_f32 v[40:41], v[32:33], v[36:37]", "s_nop 1"]
    for m in ("quad_perm:[1,0,3,2]", "row_ror:4", "row_ror:8"):
        side += ["v_add_f32_dpp v40, v40, v40 %s %s" % (m, DPP), "v_add_f32_dpp v41, v41, v41 %s %s" % (m, DPP), "s_nop 0"]
    side += A.ln_stats_list(40, 41, 42, 43, 44) + ["v_sub_f32 v42, 0, v42"]
    ga = 2 * math.sqrt(2 / math.pi) * math.log2(math.e); gb = ga * 0.044715
    side += ["v_mov_b32 v45, %s" % f32(-ga), "s_mov_b32 s56, %s" % f32(-gb)]
    tailn = 8
    cuts = [round((len(side) - tailn) * k / 13) for k in range(14)] + [len(side)]
    for kk in range(14):
        A("s_waitcnt lgkmcnt(%d)" % (13 - kk))
        A("v_mfma_f32_16x16x32_bf16 v[24:27], v[%d:%d], v[%d:%d], %s" % (WA + 4 * kk, WA + 4 * kk + 3, HB + 4 * kk, HB + 4 * kk + 3, "0" if kk == 0 else "v[24:27]"))
        A("\n".join(side[cuts[kk]:cuts[kk + 1]]))
    A("v_cndmask_b32 v24, v24, v25, s[50:51]\nv_cndmask_b32 v26, v26, v27, s[50:51]\nv_cndmask_b32 v24, v24, v26, s[62:63]")
    A.nop(2)
    A("v_fmac_f32_dpp v24, v24, v42 quad_perm:[1,1,3,3] %s" % DPP)
    A("v_mul_f32 v24, v24, v43\nv_cvt_pk_bf16_f32 v24, v24, v24\nv_lshlrev_b32 v24, 16, v24\nv_mov_b32 v25, v24")
    A("v_mul_f32 v26, v24, v24\nv_fma_f32 v26, v26, s56, v45")
    A("v_permlane32_swap_b32 v27, v25")
    A.L.pop()
    A("v_mul_f32 v26, v26, v24\nv_exp_f32 v26, v26\nv_mov_b32 v27, v24\nv_add_f32 v26, 1.0, v26\nv_rcp_f32 v26, v26\nv_permlane32_swap_b32 v27, v25")
    A("v_mul_f32 v26, v26, v24\nv_cvt_pk_bf16_f32 v26, v26, v26\nv_lshlrev_b32 v26, 16, v26\nv_mul_f32 v26, v26, v25\nv_cvt_pk_bf16_f32 v26, v26, v26")
    A("s_mov_b64 exec, 0x55555555\nds_write_b16 v254, v26 offset:%d\ns_mov_b64 exec, -1" % L_ACT)
    A("L_f2:")
    if dlate: down_frags()
    A("s_waitcnt lgkmcnt(%d)\ns_barrier" % (8 if dlate else 0))
    A.stamp(19)
    A("ds_read_b128 v[24:27], v23 offset:%d\ns_waitcnt lgkmcnt(0)" % L_ACT)
    for t in range(4):
        A("v_mfma_f32_16x16x32_bf16 v[%d:%d], v[%d:%d], v[24:27], 0" % (48 + 4 * t, 51 + 4 * t, DA + 4 * t, DA + 4 * t + 3))
    A("s_mov_b64 exec, s[66:67]")
    A.nop(5)
    for k in range(4):
        A("v_cndmask_b32 v%d, v%d, v%d, s[48:49]" % (48 + k, 48 + k, 52 + k))
    for k in range(4):
        A("v_cndmask_b32 v%d, v%d, v%d, s[48:49]" % (56 + k, 56 + k, 60 + k))
    for k in range(4):
        A("v_cndmask_b32 v%d, v%d, v%d, s[50:51]" % (48 + k, 48 + k, 56 + k))
    A.tag4(48, 48)
    A("buffer_store_dwordx4 v[48:51], v245, s[52:55], s61 offen sc1")
    A.stamp(15)
    if ack: A("s_waitcnt vmcnt(0)")
    A.stamp(21)
    A("s_barrier")
    if stamps:
        A("s_cmp_lg_u32 s3, 0\ns_cbranch_scc1 L_end")
        A.stamp_flush([0, 6, 7, 17, 12, 13, 14, 18, 19, 15, 21])
    A("s_endpgm")
    A("L_final:")
    A("s_lshr_b32 s45, s65, 1\ns_lshl_b32 s45, s45, 7\ns_and_b32 s56, s65, 1\ns_lshl_b32 s56, s56, 4\ns_add_u32 s45, s45, s56\ns_add_u32 s45, s45, %d" % WS_FP)
    A("v_lshrrev_b32 v12, 2, v0\nv_mul_u32_u24 v8, 3584, v12\nv_lshl_add_u32 v8, v10, 5, v8")
    A("v_add_u32 v9, %d, v8\nv_add_u32 v13, %d, v8\nv_add_u32 v11, %d, v8\nv_cmp_gt_u32 vcc, 8, v12" % (16 * 3584, 32 * 3584, 48 * 3584))
    A("v_lshlrev_b32 v16, 3, v10\nv_lshl_add_u32 v16, v%d, 1, v16\ns_lshr_b32 s46, s65, 1\ns_lshl_b32 s46, s46, 5\ns_and_b32 s56, s65, 1" % V_G)
    A("v_cndmask_b32 v11, v8, v11, vcc\nv_cndmask_b32 v12, 0, 1.0, vcc\nv_mov_b32 v18, 0")
    A("s_lshl_b32 s57, s56, 10\ns_add_u32 s57, s57, s46\nv_add3_u32 v17, v16, s57, v%d\ns_mul_i32 s56, s56, 896\ns_add_u32 s46, s46, s56" % V_MISC)
    A("s_mov_b32 s40, s22\ns_mov_b32 s41, s23\ns_mov_b32 s66, 0x000f000f\ns_mov_b32 s67, s66")
    A("s_barrier")
    A("ds_read_u16_d16_hi v18, v17 offset:%d" % L_H)
    A("s_cmp_lg_u32 s65, 0\ns_cbranch_scc1 L_noE")
    A("s_mov_b64 exec, 1\nv_mov_b32 v14, 0\nbuffer_store_dwordx4 v[%d:%d], v14, s[52:55], 0 offen offset:%d\ns_mov_b64 exec, -1" % (V_TAG, V_TAG + 3, WS_E))
    A("L_noE:")
    A("s_barrier\ns_barrier")
    A.gather2([[(8, 0)], [(9, 0)], [(13, 0)], [(11, 0)]], 24, 20, "s45", sleep=ps3)
    for k in range(4):
        A("v_add_f32 v%d, v%d, v%d" % (24 + k, 24 + k, 28 + k))
    for k in range(4):
        A("v_fmac_f32 v%d, v%d, v12" % (32 + k, 36 + k))
    for k in range(4):
        A("v_add_f32 v%d, v%d, v%d" % (24 + k, 24 + k, 32 + k))
    A.swapreduce(24)
    for r in (4, 8):
        A.nop(2)
        A("v_add_f32_dpp v24, v24, v24 row_ror:%d %s" % (r, DPP))
    A("s_waitcnt lgkmcnt(0)")
    A("v_cvt_pk_bf16_f32 v24, v24, v24\nv_lshlrev_b32 v24, 16, v24\nv_add_f32 v24, v18, v24\nv_cvt_pk_bf16_f32 v24, v24, v24")
    A("s_mov_b64 exec, s[66:67]")
    A("buffer_store_short v24, v16, s[40:43], s46 offen")
    if stamps:
        A.stamp(20)
        A("s_waitcnt vmcnt(0)")
        A.stamp(16)
        A.stamp_flush([20, 16])
    A("L_end:\ns_endpgm")
    A.L.append('.section .rodata,"a"\n.p2align 6\n.amdhsa_kernel %s_kernel' % NAME)
    A.L.append("  .amdhsa_next_free_vgpr 256\n  .amdhsa_next_free_sgpr 100\n  .amdhsa_accum_offset 256")
    A.L.append("  .amdhsa_group_segment_fixed_size 0\n  .amdhsa_kernarg_size 96\n  .amdhsa_user_sgpr_count 2\n  .amdhsa_user_sgpr_kernarg_segment_ptr 1\n  .amdhsa_system_sgpr_workgroup_id_x 1\n  .amdhsa_float_denorm_mode_32 3\n.end_amdhsa_kernel")
    return "\n".join(A.L) + "\n"

if __name__ == "__main__":
    out = sys.argv[1]
    kw = {}
    for a in sys.argv[2:]:
        k, v = a.split("="); kw[k] = int(v)
    open(out, "w").write(build(**kw))
```

```python
import sys, math, struct
NAME = "sequential_preLN__gqa_block_cached__geglu_ffn__decode"
HEADER = open("cdna_kernels/%s.s.ref" % NAME).read().split("; Override launch")[0]

NA = 12
NSL = 22
WS_E = 0
WS_Q = 0x1000
WS_ML = 0x9000
WS_AP = 0xA000
WS_OP = 0x20000
WS_FP = 0xA0000
WS_END = 0x100000
STAMP_OFF = 128 << 20
RING = 8
MISC = RING * 16384
L_Q = 0; L_P = 1024; PSTR = 1536; L_LSUM = 4096; L_MX = 4736
L_LAND = 4816; L_QF = 4820; L_C1 = 4824; L_C2 = 4828; L_WF = 4832; L_C3 = 4836
L_PROG = 4848
R_A = 0; R_G = 65536; R_U = R_G + 28672; R_D = R_U + 28672; SMISC = R_D + 28672
L_LN = 0; L_SO = 0; L_H = 2048; L_ONES = 4096; L_ACT = 5120; L_ST = 5248
LDS_TOTAL = SMISC + 5760
assert MISC + 8192 <= LDS_TOTAL <= 163840
TAGM = 0x3ff
SPIN = 1 << 17
V_G = 1; V_N = 2; V_MISC = 3; V_TAG = 4
DPP = "row_mask:0xf bank_mask:0xf"
C1 = 0.0625 * math.log2(math.e)

def f32(x): return "0x%08x" % struct.unpack("<I", struct.pack("<f", x))[0]

class Gen:
    def __init__(self, stamps):
        self.L = []; self.uid = 0; self.stamps = stamps
    def __call__(self, s):
        for line in s.split("\n"):
            line = line.strip()
            if line: self.L.append(("" if line.endswith(":") else "    ") + line)
    def lab(self, p="L"):
        self.uid += 1
        return "%s_%d" % (p, self.uid)
    def nop(self, n):
        while n > 0:
            k = min(n, 16); self("s_nop %d" % (k - 1)); n -= k
    def mask(self, m32, dst="s[56:57]"):
        self("s_mov_b32 s56, 0x%08x\ns_mov_b32 s57, s56" % m32)
        if dst == "exec": self("s_mov_b64 exec, s[56:57]")
    def stamp(self, idx):
        if not self.stamps: return
        self("s_memrealtime s[%d:%d]\ns_waitcnt lgkmcnt(0)" % (68 + 2 * (idx % 16), 69 + 2 * (idx % 16)))
    def stamp_flush(self, idxs):
        if not self.stamps: return
        if self.stamps == 2:
            DBGMAP = {0: 0, 1: 1, 4: 2, 5: 3, 6: 4, 7: 5, 8: 6, 10: 7, 11: 8, 12: 9, 13: 10, 14: 11, 19: 12, 15: 13, 16: 14, 17: 15}
            self("s_mov_b64 exec, 1\nv_mov_b32 v255, 0")
            for idx in idxs:
                if idx not in DBGMAP: continue
                if idx == 0: self("s_not_b32 s68, s68")
                self("v_mov_b32 v250, s%d" % (68 + 2 * (idx % 16)))
                self("global_atomic_umax v255, v250, s[24:25] offset:%d\ns_nop 1" % (DBGMAP[idx] * 4))
            self("s_mov_b64 exec, -1")
            return
        self("s_mov_b64 exec, 1\ns_mul_i32 s60, s2, 256\ns_add_u32 s60, s60, %d\nv_mov_b32 v255, s60" % STAMP_OFF)
        for idx in idxs:
            self("v_mov_b32 v250, s%d\nv_mov_b32 v251, s%d" % (68 + 2 * (idx % 16), 69 + 2 * (idx % 16)))
            self("global_store_dwordx2 v255, v[250:251], s[26:27] offset:%d\ns_nop 1" % (idx * 8))
        self("s_mov_b64 exec, -1")
    def lds_wait_ge(self, off, sreg, target, vt, cached=True, sleep=1):
        d = self.lab("Lw"); l = self.lab("Lw")
        if cached:
            self("s_cmp_ge_u32 s%d, %s\ns_cbranch_scc1 %s" % (sreg, target, d))
        self("%s:" % l)
        self("ds_read_b32 v%d, v%d offset:%d\ns_waitcnt lgkmcnt(0)" % (vt, V_MISC, off))
        self("v_readfirstlane_b32 s%d, v%d\ns_cmp_ge_u32 s%d, %s\ns_cbranch_scc1 %s" % (sreg, vt, sreg, target, d))
        if sleep: self("s_sleep %d" % sleep)
        self("s_sub_u32 s64, s64, 1\ns_cbranch_scc0 %s\ns_mov_b32 s64, 0" % l)
        self("%s:" % d)
    def lds_signal_add(self, off, vt):
        self("s_mov_b64 exec, 1\nv_mov_b32 v%d, 1\nds_add_u32 v%d, v%d offset:%d\ns_mov_b64 exec, -1" % (vt, V_MISC, vt, off))
    def gather(self, offs, vd, vt, soff, sleep=2, reh=False):
        l = self.lab("Lg"); d = self.lab("Lg")
        self("s_mov_b32 s58, 0\n%s:" % l)
        for i, (va, oo) in enumerate(offs):
            self("buffer_load_dwordx4 v[%d:%d], v%d, s[52:55], %s offen offset:%d sc1" % (vd + 4 * i, vd + 4 * i + 3, va, soff, oo))
        for i in range(len(offs)):
            self("s_waitcnt vmcnt(%d)" % (len(offs) - 1 - i))
            for k in range(4):
                self("v_xor_b32 v%d, s%d, v%d" % (vd + 4 * i + k, 28 + k, vd + 4 * i + k))
            if i == 0:
                self("v_or3_b32 v%d, v%d, v%d, v%d\nv_or_b32 v%d, v%d, v%d" % (vt, vd, vd + 1, vd + 2, vt, vt, vd + 3))
            else:
                self("v_or3_b32 v%d, v%d, v%d, v%d" % (vt, vt, vd + 4 * i, vd + 4 * i + 1))
                self("v_or3_b32 v%d, v%d, v%d, v%d" % (vt, vt, vd + 4 * i + 2, vd + 4 * i + 3))
        self("v_and_b32 v%d, %d, v%d\nv_cmp_ne_u32 vcc, 0, v%d" % (vt, TAGM, vt, vt))
        if reh: self("s_and_b64 vcc, vcc, s[20:21]\ns_cbranch_scc0 %s" % d)
        else: self("s_cbranch_vccz %s" % d)
        if sleep: self("s_sleep %d" % sleep)
        self("s_add_u32 s58, s58, 1\ns_cmp_lt_u32 s58, %d\ns_cbranch_scc1 %s\n%s:" % (SPIN, l, d))
    def gather2(self, groups, vd, vt, soff, sleep=0, sentinel=None, MS=(4, 6, 8, 10), between=None, hold=None):
        regs = []; r = vd
        for g in groups:
            regs.append([r + 4 * k for k in range(len(g))]); r += 4 * len(g)
        def load(i, only=None):
            for (va, oo), rr in list(zip(groups[i], regs[i]))[:only]:
                self("buffer_load_dwordx4 v[%d:%d], v%d, s[52:55], %s offen offset:%d sc1" % (rr, rr + 3, va, soff, oo))
        def check(i, dst, only=None):
            w = []
            for rr in regs[i][:only]:
                for k in range(4):
                    self("v_xor_b32 v%d, s%d, v%d" % (rr + k, 28 + k, rr + k)); w.append(rr + k)
            self("v_or3_b32 v%d, v%d, v%d, v%d" % (vt, w[0], w[1], w[2])); w = w[3:]
            while len(w) > 1:
                self("v_or3_b32 v%d, v%d, v%d, v%d" % (vt, vt, w[0], w[1])); w = w[2:]
            self("v_bitop3_b32 v%d, v%d, v%d, s12 bitop3:0xa8\nv_cmp_ne_u32 %s, 0, v%d" % (vt, vt, w[0], dst, vt))
        n = len(groups)
        self("s_mov_b32 s58, 0")
        if sentinel is not None:
            l = self.lab("Ls"); d = self.lab("Ls")
            self.mask(sentinel, "exec")
            self("%s:" % l)
            load(0, 1)
            self("s_waitcnt vmcnt(0)")
            check(0, "vcc", 1)
            self("s_cmp_lg_u64 vcc, exec\ns_cbranch_scc1 %s\ns_sleep 6" % d)
            self("s_add_u32 s58, s58, 1\ns_cmp_lt_u32 s58, %d\ns_cbranch_scc1 %s\n%s:" % (SPIN, l, d))
        if between:
            self("s_mov_b64 exec, -1")
            between()
            self("s_mov_b32 s58, 0")
        for i in range(n):
            if hold: self("s_not_b64 s[%d:%d], s[%d:%d]" % (MS[i], MS[i] + 1, hold[i], hold[i] + 1))
            else: self("s_mov_b64 s[%d:%d], -1" % (MS[i], MS[i] + 1))
        l = self.lab("Lg"); d = self.lab("Lg")
        self("%s:" % l)
        for i in range(n):
            k = self.lab("Lk")
            self("s_mov_b64 exec, s[%d:%d]\ns_cbranch_execz %s" % (MS[i], MS[i] + 1, k))
            load(i)
            self("%s:" % k)
        self("s_waitcnt vmcnt(0)")
        for i in range(n):
            k = self.lab("Lk")
            self("s_mov_b64 exec, s[%d:%d]\ns_cbranch_execz %s" % (MS[i], MS[i] + 1, k))
            check(i, "s[%d:%d]" % (MS[i], MS[i] + 1))
            self("%s:" % k)
        if hold:
            for i in range(n):
                self("s_or_b64 s[%d:%d], s[%d:%d], s[%d:%d]\ns_mov_b64 s[%d:%d], 0" % (MS[i], MS[i] + 1, MS[i], MS[i] + 1, hold[i], hold[i] + 1, hold[i], hold[i] + 1))
        self("s_or_b64 s[14:15], s[%d:%d], s[%d:%d]" % (MS[0], MS[0] + 1, MS[1], MS[1] + 1))
        for i in range(2, n):
            self("s_or_b64 s[14:15], s[14:15], s[%d:%d]" % (MS[i], MS[i] + 1))
        self("s_cbranch_scc0 %s" % d)
        if sleep: self("s_sleep %d" % sleep)
        self("s_add_u32 s58, s58, 1\ns_cmp_lt_u32 s58, %d\ns_cbranch_scc1 %s\n%s:" % (SPIN, l, d))
        self("s_mov_b64 exec, -1")
    def tag4(self, vs, vd):
        for k in range(4):
            self("v_and_or_b32 v%d, v%d, s59, v%d" % (vd + k, vs + k, V_TAG + k))
    def swapreduce(self, v):
        self.nop(2)
        self("v_permlane16_swap_b32 v%d, v%d\nv_permlane16_swap_b32 v%d, v%d" % (v, v + 1, v + 2, v + 3))
        self("v_add_f32 v%d, v%d, v%d\nv_add_f32 v%d, v%d, v%d" % (v, v, v + 1, v + 2, v + 2, v + 3))
        self.nop(2)
        self("v_permlane32_swap_b32 v%d, v%d" % (v, v + 2))
        self("v_add_f32 v%d, v%d, v%d" % (v, v, v + 2))
    def swapreduce2(self, v, u):
        self.nop(1)
        self("v_permlane16_swap_b32 v%d, v%d\nv_permlane16_swap_b32 v%d, v%d" % (v, v + 1, v + 2, v + 3))
        self("v_permlane16_swap_b32 v%d, v%d\nv_permlane16_swap_b32 v%d, v%d" % (u, u + 1, u + 2, u + 3))
        self("v_add_f32 v%d, v%d, v%d\nv_add_f32 v%d, v%d, v%d" % (v, v, v + 1, v + 2, v + 2, v + 3))
        self("v_add_f32 v%d, v%d, v%d\nv_add_f32 v%d, v%d, v%d" % (u, u, u + 1, u + 2, u + 2, u + 3))
        self("v_permlane32_swap_b32 v%d, v%d" % (v, v + 2))
        self.nop(1)
        self("v_permlane32_swap_b32 v%d, v%d" % (u, u + 2))
        self("v_add_f32 v%d, v%d, v%d\nv_add_f32 v%d, v%d, v%d" % (v, v, v + 2, u, u, u + 2))
    def ln_stats_list(self, vs, vq, vm, vr, t):
        return ["v_mul_f32 v%d, %s, v%d" % (vs, f32(1.0 / 448), vs), "v_mul_f32 v%d, %s, v%d" % (vq, f32(1.0 / 448), vq),
                "v_fma_f32 v%d, -v%d, v%d, v%d" % (vq, vs, vs, vq), "v_max_f32 v%d, 0, v%d" % (vq, vq),
                "v_cvt_pk_bf16_f32 v%d, v%d, v%d" % (t, vs, vq),
                "v_and_b32 v%d, 0xffff0000, v%d" % (vq, t), "v_lshlrev_b32 v%d, 16, v%d" % (vm, t),
                "v_add_f32 v%d, %s, v%d" % (vq, f32(1e-5), vq), "v_cvt_pk_bf16_f32 v%d, v%d, v%d" % (t, vq, vq),
                "v_lshlrev_b32 v%d, 16, v%d" % (vq, t), "v_sqrt_f32 v%d, v%d" % (vq, vq), "s_nop 0",
                "v_cvt_pk_bf16_f32 v%d, v%d, v%d" % (t, vq, vq), "v_lshlrev_b32 v%d, 16, v%d" % (vq, t),
                "v_rcp_f32 v%d, v%d" % (vr, vq), "s_nop 0"]
    def tags_setup(self):
        for k in range(4):
            self("s_add_u32 s%d, s%d, 1\ns_and_b32 s%d, s%d, %d\nv_mov_b32 v%d, s%d" % (28 + k, 28 + k, 28 + k, 28 + k, TAGM, V_TAG + k, 28 + k))

def build(stamps=0, win=48, qp=14, qslp=16, fast=1, ps1=0, ps2=0, ps3=0, cpf=1, ack=1, gate=1, pret=0, mls=32, prew=0, dlate=0, thr=0, off=0, diag=-1):
    A = Gen(stamps)
    A.L.append(HEADER.rstrip())
    A.L.append("; @launch grid=(256,1,1) block=(512,1,1) lds=%d" % LDS_TOTAL)
    A.L.append('.amdgcn_target "amdgcn-amd-amdhsa--gfx950"')
    A.L.append(".text\n.globl %s_kernel\n.p2align 8\n.type %s_kernel,@function\n%s_kernel:" % (NAME, NAME, NAME))
    A("s_cmp_ge_u32 s2, 256\ns_cbranch_scc1 L_end")
    A("s_load_dwordx16 s[4:19], s[0:1], 0\ns_load_dwordx8 s[20:27], s[0:1], 64")
    if stamps: A("s_memrealtime s[68:69]")
    if diag >= 0: A("s_memrealtime s[90:91]")
    A("v_lshrrev_b32 v1, 6, v0\nv_and_b32 v0, 63, v0\nv_readfirstlane_b32 s3, v1")
    A("s_and_b32 s32, s2, 15\ns_lshr_b32 s33, s2, 4\ns_lshr_b32 s34, s32, 3\ns_and_b32 s35, s32, 7")
    A("v_mov_b32 v%d, %d\ns_mov_b32 s64, %d" % (V_MISC, MISC, 1 << 20))
    A("s_cmp_ge_u32 s33, %d\ns_cbranch_scc1 L_service" % NA)
    A("s_mul_i32 s65, s33, 43691\ns_add_u32 s66, s65, 43691\ns_lshr_b32 s65, s65, 6\ns_lshr_b32 s66, s66, 6")
    for a in range(NA + 1): assert (a * 43691) >> 6 == a * 8192 // NA
    A("s_cmp_lg_u32 s3, 1\ns_cbranch_scc1 L_notloader")
    A("s_setprio 3")
    A("v_lshrrev_b32 v1, 5, v0\nv_and_b32 v2, 31, v0\nv_xor_b32 v4, v2, v1\nv_lshlrev_b32 v4, 4, v4\nv_lshl_or_b32 v8, v1, 9, v4")
    for j in range(1, 8):
        A("v_xor_b32 v%d, %d, v8" % (8 + j, 32 * j))
    A("s_lshl_b32 s45, s32, 22\ns_lshl_b32 s44, s65, 9\ns_add_u32 s44, s44, s45\ns_lshl_b32 s38, s66, 9\ns_add_u32 s38, s38, s45")
    A("s_mov_b32 s45, s44\ns_mov_b32 s46, 0\ns_mov_b32 s47, 0\ns_mov_b32 s48, 0\ns_mov_b32 s50, 3\ns_mov_b32 m0, 0")
    A("s_mov_b32 s39, 0x20000")
    A("s_waitcnt lgkmcnt(0)")
    A.stamp(2)
    A("s_mov_b32 s36, s6\ns_mov_b32 s37, s7")
    W = win
    lag = W // 16 - 1
    def land(k):
        A("s_sub_i32 s56, s46, %d\ns_max_i32 s48, s48, s56\nv_mov_b32 v20, s48\nds_write_b32 v%d, v20 offset:%d" % (k, V_MISC, L_LAND))
    A("L_slot:")
    A("s_add_u32 s56, s47, %d\ns_cmp_lt_u32 s46, s56\ns_cbranch_scc0 L_waitfree" % RING)
    A("L_go:")
    A("s_waitcnt vmcnt(%d)" % (W - 8))
    for j in range(16):
        if j == 8:
            A("s_waitcnt vmcnt(%d)" % (W - 8))
            land(lag)
        A("buffer_load_dwordx4 v%d, s[36:39], s45 offen nt lds" % (8 + j % 8))
        A("s_add_u32 m0, m0, 1024\ns_add_u32 s45, s45, 1024")
    A("s_and_b32 m0, m0, %d" % (MISC - 1))
    A("s_add_u32 s46, s46, 1\ns_cmp_lg_u32 s46, s50\ns_cbranch_scc1 L_slot")
    A("s_cmp_lg_u32 s46, 3\ns_cbranch_scc1 L_evV")
    A.stamp(29)
    A("s_barrier")
    A.stamp(30)
    if stamps:
        A("s_waitcnt vmcnt(40)")
        A.stamp(31)
    A("s_mov_b32 s50, %d\ns_branch L_slot" % NSL)
    A("L_evV:\ns_cmp_lg_u32 s46, %d\ns_cbranch_scc1 L_ldone" % NSL)
    A.stamp(1)
    A("v_lshlrev_b32 v4, 1, v1\nv_xor_b32 v4, v2, v4\nv_lshlrev_b32 v4, 4, v4\nv_lshl_or_b32 v8, v1, 9, v4")
    for j in range(1, 8):
        A("v_xor_b32 v%d, %d, v8" % (8 + j, 64 * (j & 3)))
    A("s_mov_b32 s36, s8\ns_mov_b32 s37, s9\ns_mov_b32 s45, s44\ns_mov_b32 s50, %d\ns_branch L_slot" % (2 * NSL))
    A("L_ldone:")
    A.stamp(3)
    for k in range(lag, -1, -1):
        A("s_waitcnt vmcnt(%d)" % (16 * k))
        land(k)
    A.stamp(4)
    A.stamp_flush([0, 1, 2, 3, 4, 29, 30, 31])
    A("s_endpgm")
    A("L_waitfree:")
    def prog_check():
        A("ds_read_b128 v[20:23], v%d offset:%d\nds_read_b64 v[24:25], v%d offset:%d\ns_waitcnt lgkmcnt(0)" % (V_MISC, L_PROG, V_MISC, L_PROG + 16))
        A("v_min3_u32 v20, v20, v21, v22\nv_min3_u32 v23, v23, v24, v25\nv_min_u32 v20, v20, v23\ns_nop 0\nv_readfirstlane_b32 s47, v20")
        A("s_add_u32 s56, s47, %d\ns_cmp_lt_u32 s46, s56\ns_cbranch_scc1 L_go" % RING)
    for k in range(lag, -1, -1):
        prog_check()
        A("s_waitcnt vmcnt(%d)" % (16 * k))
        land(k)
    A("L_wf2:")
    prog_check()
    A("s_sleep 1\ns_sub_u32 s64, s64, 1\ns_cbranch_scc0 L_wf2\ns_mov_b32 s64, 0\ns_branch L_go")

    def common_setup():
        A("v_lshrrev_b32 v%d, 4, v0\nv_and_b32 v%d, 15, v0" % (V_G, V_N))
        A("s_waitcnt lgkmcnt(0)")
        A("s_load_dwordx4 s[28:31], s[26:27], %d" % WS_E)
        A("s_mov_b32 s52, s26\ns_mov_b32 s53, s27\ns_mov_b32 s54, %d\ns_mov_b32 s55, 0x20000" % WS_END)
        A("s_mov_b32 s59, %d" % (0xffffffff & ~TAGM))
    A("L_notloader:")
    common_setup()
    A("s_cmp_lg_u32 s3, 0\ns_cbranch_scc1 L_noinit")
    A("v_mov_b32 v8, 0\nv_lshl_add_u32 v9, v0, 2, v%d\nds_write_b32 v9, v8 offset:%d" % (V_MISC, L_LSUM))
    A("s_mov_b64 exec, 0xff\nds_write_b32 v9, v8 offset:%d\nds_write_b32 v9, v0 offset:%d" % (L_LAND, L_PROG))
    A("s_mov_b64 exec, 0x3\nv_mov_b32 v10, 0xff800000\nds_write_b32 v9, v10 offset:%d\ns_mov_b64 exec, -1" % L_MX)
    A("L_noinit:")
    A("s_sub_u32 s61, s3, 2")
    A("s_waitcnt lgkmcnt(0)")
    A.tags_setup()
    A("s_mov_b32 s48, 0\ns_barrier")
    A("s_cmp_ge_u32 s3, 2\ns_cbranch_scc1 L_cons")
    A("s_lshl_b32 s45, s34, 14\ns_lshl_b32 s46, s35, 11\ns_add_u32 s45, s45, s46\ns_add_u32 s45, s45, %d" % WS_Q)
    A("v_lshlrev_b32 v16, 4, v0")
    A.lds_wait_ge(L_LAND, 48, str(qp), 17)
    A.stamp(7)
    A.gather([(16, 0), (16, 1024)], 20, 17, "s45", sleep=qslp)
    A("s_mov_b32 s56, 0x07060302")
    for i in range(4):
        A("v_perm_b32 v%d, v%d, v%d, s56" % (28 + i, 21 + 2 * i, 20 + 2 * i))
    A("v_lshl_add_u32 v16, v0, 3, v%d" % V_MISC)
    A("ds_write_b64 v16, v[28:29] offset:%d\nds_write_b64 v16, v[30:31] offset:%d" % (L_Q, L_Q + 512))
    A("s_getreg_b32 s56, hwreg(HW_REG_XCC_ID)\ns_and_b32 s56, s56, 15\nv_bfe_u32 v18, v20, 10, 4\nv_bfe_u32 v19, v24, 10, 4")
    A("v_cmp_ne_u32 vcc, s56, v18\nv_cmp_ne_u32 s[44:45], s56, v19\ns_nop 0\ns_or_b64 vcc, vcc, s[44:45]\ns_cselect_b32 s56, 1, %d" % (2 if fast else 1))
    A("s_mov_b32 s67, s56\nv_mov_b32 v17, s56\nds_write_b32 v%d, v17 offset:%d" % (V_MISC, L_QF))
    A.stamp(8)
    A.lds_wait_ge(L_C2, 47, "6", 8, cached=False, sleep=4)
    A("ds_read_b32 v10, v9 offset:%d\nds_read_b64 v[12:13], v%d offset:%d\ns_waitcnt lgkmcnt(0)" % (L_LSUM, V_MISC, L_MX))
    for r in (1, 2, 4, 8):
        A("v_add_f32_dpp v10, v10, v10 row_ror:%d %s" % (r, DPP))
        A.nop(2)
    A("v_readlane_b32 s56, v10, 16\nv_readlane_b32 s57, v10, 32\nv_readlane_b32 s58, v10, 48")
    A.nop(1)
    A("v_add_f32 v14, s56, v10\nv_mov_b32 v15, s57\nv_add_f32 v15, s58, v15")
    A.tag4(12, 12)
    A("s_lshl_b32 s45, s32, 8\ns_add_u32 s45, s45, %d\ns_lshl_b32 s46, s33, 4\nv_mov_b32 v9, s46" % WS_ML)
    A("s_mov_b64 exec, 1\ns_cmp_eq_u32 s67, 2\ns_cbranch_scc1 L_mlfast")
    A("buffer_store_dwordx4 v[12:15], v9, s[52:55], s45 offen sc1\ns_branch L_mldone\nL_mlfast:")
    A("buffer_store_dwordx4 v[12:15], v9, s[52:55], s45 offen\nL_mldone:")
    A.stamp_flush([7, 8])
    A("s_endpgm")

    A("L_cons:")
    KA = 8; KT = 244; KD = [16, 80, 144, 16]; QB = 208; AC = 240; S = 248
    A("v_xor_b32 v12, v%d, v%d\nv_lshlrev_b32 v12, 4, v12\nv_lshl_or_b32 v%d, v%d, 9, v12" % (V_G, V_N, KA, V_N))
    for k in range(1, 4):
        A("v_xor_b32 v%d, %d, v%d" % (KA + k, 64 * k, KA))
    A("s_add_u32 s46, s61, 1\ns_lshl_b32 s44, s61, 14")
    A("s_lshl_b32 s62, s61, 2\nv_add_u32 v13, s62, v%d" % V_MISC)
    def kread(i):
        for k in range(4):
            A("v_add_u32 v%d, s44, v%d" % (KT + k, KA + k))
        A.lds_wait_ge(L_LAND, 48, "s46", 12)
        for tt in range(2):
            for kk in range(8):
                r = KD[i] + 32 * tt + 4 * kk
                A("ds_read_b128 v[%d:%d], v%d offset:%d" % (r, r + 3, KT + (kk & 3), tt * 8192 + (kk >> 2) * 256))
        A("s_add_u32 s56, s46, 5\ns_min_u32 s56, s56, %d\nv_mov_b32 v12, s56\ns_add_u32 s46, s46, 6" % NSL)
        A("s_add_u32 s44, s44, %d\ns_and_b32 s44, s44, %d" % (6 * 16384, MISC - 1))
        A("s_waitcnt lgkmcnt(0)")
        A("ds_write_b32 v13, v12 offset:%d" % L_PROG)
    def kcomp(i):
        for kk in range(8):
            for tt in range(2):
                r = KD[i] + 32 * tt + 4 * kk
                A("v_mfma_f32_16x16x32_bf16 v[%d:%d], v[%d:%d], v[%d:%d], %s" % (AC + 4 * tt, AC + 4 * tt + 3, r, r + 3, QB + 4 * kk, QB + 4 * kk + 3, "0" if kk == 0 else "v[%d:%d]" % (AC + 4 * tt, AC + 4 * tt + 3)))
        A.mask(0x00030003 << (4 * i))
        A.nop(5)
        for k in range(4):
            A("v_cndmask_b32 v%d, v%d, v%d, s[56:57]" % (S + k, S + k, AC + k))
        A("s_lshl_b64 s[56:57], s[56:57], 2")
        for k in range(4):
            A("v_cndmask_b32 v%d, v%d, v%d, s[56:57]" % (S + k, S + k, AC + 4 + k))
    for i in range(3):
        kread(i)
    A.lds_wait_ge(L_QF, 67, "1", 12, cached=False)
    A("v_and_b32 v12, 1, v%d\nv_lshlrev_b32 v12, 9, v12\nv_lshl_add_u32 v12, v%d, 4, v12\nv_add_u32 v12, v%d, v12" % (V_N, V_G, V_MISC))
    for kk in range(8):
        A("ds_read_b128 v[%d:%d], v12 offset:%d" % (QB + 4 * kk, QB + 4 * kk + 3, L_Q + kk * 64))
    A("s_waitcnt lgkmcnt(0)")
    for i in range(3):
        kcomp(i)
    A("s_cmp_gt_u32 s46, %d\ns_cbranch_scc1 L_kdone" % NSL)
    kread(3); kcomp(3)
    A("L_kdone:")
    A.stamp(9)
    A("v_lshrrev_b32 v23, 2, v%d\nv_mul_u32_u24 v16, 192, v23\nv_and_b32 v22, 2, v%d\nv_lshl_add_u32 v16, v22, 3, v16\nv_lshl_add_u32 v16, v%d, 2, v16" % (V_N, V_N, V_G))
    A("s_sub_u32 s44, s66, s65\ns_lshl_b32 s45, s61, 5\ns_sub_u32 s44, s44, s45\nv_mov_b32 v17, 0xff800000")
    for k in range(4):
        A("v_cmp_gt_u32 vcc, s44, v16\nv_add_u32 v16, 1, v16\ns_nop 0\nv_cndmask_b32 v%d, v17, v%d, vcc" % (S + k, S + k))
    A("v_cvt_pk_bf16_f32 v16, v%d, v%d\nv_cvt_pk_bf16_f32 v17, v%d, v%d" % (S, S + 1, S + 2, S + 3))
    A("v_lshlrev_b32 v%d, 16, v16\nv_and_b32 v%d, 0xffff0000, v16\nv_lshlrev_b32 v%d, 16, v17\nv_and_b32 v%d, 0xffff0000, v17" % (S, S + 1, S + 2, S + 3))
    A("v_max3_f32 v16, v%d, v%d, v%d\nv_max_f32 v16, v16, v%d" % (S, S + 1, S + 2, S + 3))
    for r in (2, 4, 8):
        A.nop(2)
        A("v_max_f32_dpp v16, v16, v16 row_ror:%d %s" % (r, DPP))
    A("v_and_b32 v17, 1, v%d\nv_lshl_add_u32 v18, v17, 2, v%d" % (V_N, V_MISC))
    A.mask(0x00030003, "exec")
    A("ds_max_f32 v18, v16 offset:%d" % L_MX)
    A.lds_signal_add(L_C1, 12)
    A("v_mul_u32_u24 v19, 384, v23\nv_mul_u32_u24 v14, %d, v17\nv_lshl_add_u32 v14, v%d, 4, v14\nv_add_u32 v14, v%d, v14" % (PSTR, V_G, V_MISC))
    A("v_lshl_add_u32 v19, v22, 2, v19\ns_lshl_b32 s62, s61, 6\nv_add3_u32 v19, v19, s62, v14")
    A("v_lshlrev_b32 v20, 7, v17\nv_lshl_add_u32 v20, v%d, 2, v20\ns_lshl_b32 s62, s61, 4\nv_add3_u32 v20, v20, s62, v%d" % (V_G, V_MISC))
    A.lds_wait_ge(L_C1, 47, "6", 12, cached=False, sleep=0)
    A("ds_read_b32 v16, v18 offset:%d\ns_waitcnt lgkmcnt(0)" % L_MX)
    for k in range(4):
        A("v_sub_f32 v%d, v%d, v16\nv_mul_f32 v%d, %s, v%d\nv_exp_f32 v%d, v%d" % (S + k, S + k, S + k, f32(C1), S + k, S + k, S + k))
    A("v_add_f32 v16, v%d, v%d\nv_add_f32 v16, v16, v%d\nv_add_f32 v16, v16, v%d" % (S, S + 1, S + 2, S + 3))
    A("v_cvt_pk_bf16_f32 v24, v%d, v%d\nv_cvt_pk_bf16_f32 v25, v%d, v%d" % (S, S + 1, S + 2, S + 3))
    A("ds_write_b64 v19, v[24:25] offset:%d" % L_P)
    for r in (2, 4, 8):
        A("v_add_f32_dpp v16, v16, v16 row_ror:%d %s" % (r, DPP))
        A.nop(2)
    A("s_mov_b64 exec, s[56:57]\nds_write_b32 v20, v16 offset:%d" % L_LSUM)
    A.lds_signal_add(L_C2, 12)
    A("s_cmp_ge_u32 s3, 4\ns_cbranch_scc1 L_pv")
    A("v_mov_b32 v12, 0x7fff\nds_write_b32 v13, v12 offset:%d" % L_PROG)
    A("s_endpgm")
    A("L_pv:")
    A("s_sub_u32 s61, s3, 4")
    VA = 8; VT = 16; VD = 24; PB = 40; OA = 96
    A("v_lshrrev_b32 v16, 2, v0\nv_and_b32 v18, 7, v16\ns_lshl_b32 s62, s61, 2\nv_xor_b32 v18, s62, v18\nv_lshlrev_b32 v18, 5, v18")
    A("v_lshl_or_b32 v18, v16, 9, v18\nv_and_b32 v16, 3, v0\nv_lshl_or_b32 v%d, v16, 3, v18" % VA)
    for tt in range(1, 4):
        A("v_xor_b32 v%d, %d, v%d" % (VA + tt, 32 * tt, VA))
    for k in range(4):
        A("v_mov_b32 v%d, 0" % (OA + k))
    for k in range(16):
        A("v_mov_b32 v%d, 0" % (PB + k))
    A("v_lshlrev_b32 v112, 7, v%d\nv_lshl_add_u32 v112, v%d, 4, v112" % (V_G, V_N))
    A("s_lshl_b32 s41, s32, 15\ns_lshl_b32 s56, s61, 9\ns_add_u32 s41, s41, s56\ns_add_u32 s41, s41, %d" % WS_OP)
    A("s_lshl_b32 s56, s33, 11\ns_add_u32 s40, s41, s56")
    for tt in range(4):
        A("s_mov_b32 s%d, 0x%08x\ns_mov_b32 s%d, s%d" % (4 + 2 * tt, 0x00030003 << (2 * tt), 5 + 2 * tt, 4 + 2 * tt))
    A("s_mov_b32 s12, 0x00ff00ff\ns_mov_b32 s13, s12")
    if prew:
        A("s_cmp_lg_u32 s67, 2\ns_cbranch_scc1 L_noprew")
        for k in range(4):
            A("v_xor_b32 v%d, 1, v%d" % (100 + k, V_TAG + k))
        A("s_mov_b64 exec, s[12:13]\nbuffer_store_dwordx4 v[100:103], v112, s[52:55], s40 offen\ns_mov_b64 exec, -1\nL_noprew:")
    A.lds_wait_ge(L_C2, 47, "6", 12, cached=False, sleep=0)
    A.stamp(10)
    A("s_mov_b32 s46, %d\ns_mov_b32 s44, %d" % (NSL + 1, (NSL % RING) * 16384))
    A("L_vloop:")
    for tt in range(4):
        A("s_mov_b64 exec, s[%d:%d]\nds_read_b128 v[%d:%d], v14 offset:%d" % (4 + 2 * tt, 5 + 2 * tt, PB + 4 * tt, PB + 4 * tt + 3, L_P))
    A("s_mov_b64 exec, -1")
    for tt in range(4):
        A("v_add_u32 v%d, s44, v%d" % (VT + tt, VA + tt))
    A.lds_wait_ge(L_LAND, 48, "s46", 12, sleep=0)
    for tt in range(4):
        A("ds_read_b64_tr_b16 v[%d:%d], v%d" % (VD + 4 * tt, VD + 4 * tt + 1, VT + tt))
        A("ds_read_b64_tr_b16 v[%d:%d], v%d offset:8192" % (VD + 4 * tt + 2, VD + 4 * tt + 3, VT + tt))
    A("v_mov_b32 v12, s46\nv_add_u32 v14, 64, v14\ns_add_u32 s44, s44, 16384\ns_and_b32 s44, s44, %d" % (MISC - 1))
    A("s_add_u32 s46, s46, 1\ns_cmp_le_u32 s46, %d" % (2 * NSL))
    for tt in range(4):
        A("s_waitcnt lgkmcnt(%d)" % (6 - 2 * tt))
        A("v_mfma_f32_16x16x32_bf16 v[%d:%d], v[%d:%d], v[%d:%d], v[%d:%d]" % (OA, OA + 3, VD + 4 * tt, VD + 4 * tt + 3, PB + 4 * tt, PB + 4 * tt + 3, OA, OA + 3))
    A("ds_write_b32 v13, v12 offset:%d" % L_PROG)
    A("s_cbranch_scc1 L_vloop")
    A("s_mov_b64 exec, s[12:13]\ns_cmp_eq_u32 s67, 2")
    A.nop(4)
    A.tag4(OA, OA)
    A("s_cbranch_scc0 L_slowpub")
    A("buffer_store_dwordx4 v[%d:%d], v112, s[52:55], s40 offen" % (OA, OA + 3))
    A("s_branch L_pubdone\nL_slowpub:")
    A("buffer_store_dwordx4 v[%d:%d], v112, s[52:55], s40 offen sc1" % (OA, OA + 3))
    A("L_pubdone:")
    if stamps:
        A.stamp(11)
        A("s_cmp_lg_u32 s3, 4\ns_cbranch_scc1 L_end")
        A.stamp_flush([9, 10, 11])
    A("s_endpgm")

    A("L_service:")
    A("v_mov_b32 v%d, %d" % (V_MISC, SMISC))
    common_setup()
    A("s_sub_u32 s33, s2, %d\ns_lshr_b32 s33, s33, 3" % (16 * NA))
    A("s_mov_b32 s40, s4\ns_mov_b32 s41, s5\ns_mov_b32 s42, 1792\ns_mov_b32 s43, 0x20000")
    A("s_cmp_lg_u32 s3, 0\ns_cbranch_scc1 L_s1")
    A("v_lshrrev_b32 v8, 5, v0\nv_and_b32 v9, 31, v0\nv_mul_u32_u24 v10, 896, v8\nv_lshl_add_u32 v10, v9, 4, v10")
    A("v_cmp_gt_u32 vcc, 28, v9\nv_mov_b32 v11, 0x1000\ns_nop 0\nv_cndmask_b32 v11, v11, v10, vcc")
    A("buffer_load_dwordx4 v[16:19], v11, s[40:43], 0 offen\nbuffer_load_dwordx4 v[20:23], v11, s[40:43], 0 offen offset:448")
    A("L_s1:")
    def dma7(vaddr, gstep, lds, t=0):
        A("s_mul_i32 s56, s3, 7168\ns_add_u32 m0, s56, %d" % lds)
        for j in range(7):
            if j: A("s_add_u32 m0, m0, 1024\ns_add_u32 s45, s45, %d" % gstep)
            else: A("s_nop 0")
            A("buffer_load_dwordx4 v%d, s[36:39], s45 offen nt lds" % vaddr)
            if t: A("s_waitcnt vmcnt(%d)" % (t - 1))
    A("v_lshrrev_b32 v12, 3, v0\nv_and_b32 v13, 7, v0\nv_lshlrev_b32 v13, 4, v13\nv_lshl_add_u32 v14, v12, 13, v13\nv_mul_u32_u24 v12, 896, v12\nv_add_u32 v15, v12, v13")
    A("s_mov_b32 s36, s10\ns_mov_b32 s37, s11\ns_mov_b32 s38, %d\ns_mov_b32 s39, 0x20000" % (0 if off & 1 else 448 * 8192))
    A("s_lshl_b32 s44, s35, 3\ns_add_u32 s44, s44, s33\ns_lshl_b32 s45, s44, 7\ns_mul_i32 s56, s3, %d\ns_add_u32 s45, s45, s56" % (56 * 8192))
    dma7(14, 8 * 8192, R_A)
    A("s_waitcnt lgkmcnt(0)")
    A.tags_setup()
    A("s_cmp_lg_u32 s3, 1\ns_cbranch_scc1 L_s2")
    A("v_lshl_add_u32 v9, v0, 4, v%d\nv_mov_b32 v24, 0x3f803f80\nv_mov_b32 v25, v24\nv_mov_b32 v26, v24\nv_mov_b32 v27, v24" % V_MISC)
    A("ds_write_b128 v9, v[24:27] offset:%d" % L_ONES)
    A("v_mov_b32 v28, 0\nv_mov_b32 v29, 0\nv_mov_b32 v30, 0\nv_mov_b32 v31, 0\ns_mov_b64 exec, 0xffffffff\nds_write_b128 v9, v[28:31] offset:%d\ns_mov_b64 exec, -1" % L_ST)
    A("L_s2:")
    A("s_cmp_lg_u32 s3, 0\ns_cbranch_scc1 L_s3")
    A("s_waitcnt vmcnt(7)")
    A.stamp(5)
    X = 24
    for i in range(8):
        A("v_lshlrev_b32 v%d, 16, v%d\nv_and_b32 v%d, 0xffff0000, v%d" % (X + 2 * i, 16 + i, X + 2 * i + 1, 16 + i))
    A("v_add_f32 v40, v%d, v%d\nv_mul_f32 v41, v%d, v%d\nv_fmac_f32 v41, v%d, v%d" % (X, X + 1, X, X, X + 1, X + 1))
    for i in range(2, 16):
        A("v_add_f32 v40, v40, v%d\nv_fmac_f32 v41, v%d, v%d" % (X + i, X + i, X + i))
    for r in (1, 2, 4, 8):
        A.nop(1)
        A("v_add_f32_dpp v40, v40, v40 row_ror:%d %s\nv_add_f32_dpp v41, v41, v41 row_ror:%d %s" % (r, DPP, r, DPP))
    A("v_mov_b32 v42, v40\nv_mov_b32 v43, v41")
    A.nop(2)
    A("v_permlane16_swap_b32 v40, v42\nv_permlane16_swap_b32 v41, v43")
    A("v_add_f32 v40, v40, v42\nv_add_f32 v41, v41, v43")
    A("\n".join(A.ln_stats_list(40, 41, 42, 43, 44)))
    for i in range(8):
        a, b = X + 2 * i, X + 2 * i + 1
        A("v_sub_f32 v%d, v%d, v42\nv_sub_f32 v%d, v%d, v42\nv_cvt_pk_bf16_f32 v44, v%d, v%d" % (a, a, b, b, a, b))
        A("v_lshlrev_b32 v%d, 16, v44\nv_and_b32 v%d, 0xffff0000, v44" % (a, b))
        A("v_mul_f32 v%d, v%d, v43\nv_mul_f32 v%d, v%d, v43\nv_cvt_pk_bf16_f32 v%d, v%d, v%d" % (a, a, b, b, 16 + i, a, b))
    A("v_add_u32 v10, v%d, v10" % V_MISC)
    A.mask(0x0fffffff, "exec")
    A("ds_write_b128 v10, v[16:19] offset:%d\nds_write_b128 v10, v[20:23] offset:%d" % (L_LN, L_LN + 448))
    A("s_mov_b64 exec, -1")
    A("L_s3:")
    A("v_lshrrev_b32 v9, 2, v%d\nv_lshl_add_u32 v9, v%d, 3, v9\nv_lshlrev_b32 v11, 7, v9\nv_and_b32 v10, 3, v0" % (V_N, V_G))
    A("s_waitcnt vmcnt(0) lgkmcnt(0)\ns_barrier")
    A.stamp(6)
    A("s_cmp_ge_u32 s3, 4\ns_cbranch_scc1 L_s4")
    BQ = 16; AQ = 72
    A("v_and_b32 v8, 1, v%d\nv_mul_u32_u24 v8, 896, v8\nv_lshl_add_u32 v8, v%d, 4, v8\nv_add_u32 v8, v%d, v8" % (V_N, V_G, V_MISC))
    A("v_lshl_add_u32 v12, v10, 3, v11\ns_lshl_b32 s56, s3, 5\nv_add_u32 v12, s56, v12")
    for kk in range(14):
        A("ds_read_b128 v[%d:%d], v8 offset:%d" % (BQ + 4 * kk, BQ + 4 * kk + 3, L_LN + kk * 64))
        A("ds_read_b64_tr_b16 v[%d:%d], v12 offset:%d" % (AQ + 4 * kk, AQ + 4 * kk + 1, R_A + kk * 4096))
        A("ds_read_b64_tr_b16 v[%d:%d], v12 offset:%d" % (AQ + 4 * kk + 2, AQ + 4 * kk + 3, R_A + kk * 4096 + 512))
    A("s_waitcnt lgkmcnt(0)")
    for kk in range(14):
        A("v_mfma_f32_16x16x32_bf16 v[128:131], v[%d:%d], v[%d:%d], %s" % (AQ + 4 * kk, AQ + 4 * kk + 3, BQ + 4 * kk, BQ + 4 * kk + 3, "0" if kk == 0 else "v[128:131]"))
    A("v_and_b32 v16, 1, v%d\nv_lshlrev_b32 v16, 14, v16\nv_lshl_add_u32 v16, v%d, 4, v16" % (V_N, V_G))
    A("s_lshl_b32 s45, s44, 8\ns_lshl_b32 s56, s3, 6\ns_add_u32 s45, s45, s56\ns_add_u32 s45, s45, %d" % WS_Q)
    A("s_getreg_b32 s46, hwreg(HW_REG_XCC_ID)\ns_and_b32 s46, s46, 15\ns_lshl_b32 s46, s46, 10")
    A("v_cvt_pk_bf16_f32 v12, v128, v129\nv_cvt_pk_bf16_f32 v13, v130, v131")
    A("v_lshl_or_b32 v128, v12, 16, v%d\nv_and_b32 v129, 0xffff0000, v12\nv_or_b32 v129, v129, v%d" % (V_TAG, V_TAG + 1))
    A("v_lshl_or_b32 v130, v13, 16, v%d\nv_and_b32 v131, 0xffff0000, v13\nv_or_b32 v131, v131, v%d" % (V_TAG + 2, V_TAG + 3))
    A("v_or_b32 v128, s46, v128")
    A.mask(0x00030003, "exec")
    A("buffer_store_dwordx4 v[128:131], v16, s[52:55], s45 offen sc1")
    A("s_mov_b64 exec, -1")
    A.stamp(7)
    A("L_s4:")
    if diag >= 0:
        A("s_cmp_lg_u32 s2, %d\ns_cbranch_scc1 L_nodiag" % (248 + diag))
        A("L_diag:\ns_memrealtime s[92:93]\ns_waitcnt lgkmcnt(0)\ns_sub_u32 s92, s92, s90\ns_cmp_lt_u32 s92, 5000\ns_cbranch_scc1 L_diag\nL_nodiag:")
    A("s_cmp_ge_u32 s33, 7\ns_cbranch_scc1 L_end")
    A("s_mul_i32 s65, s35, 7\ns_add_u32 s65, s65, s33")
    A("s_cmp_lt_u32 s3, 4\ns_cselect_b32 s36, s16, s18\ns_cselect_b32 s37, s17, s19\ns_mov_b32 s38, %d" % (0 if off & 2 else 448 * 3584))
    A("s_and_b32 s56, s3, 3\ns_mul_i32 s45, s56, %d\ns_lshl_b32 s56, s65, 6\ns_add_u32 s45, s45, s56" % (112 * 3584))
    A("v_lshrrev_b32 v14, 2, v0\nv_mul_u32_u24 v14, 3584, v14\nv_lshl_add_u32 v14, v10, 4, v14")
    dma7(14, 16 * 3584, R_G, thr)
    def down_dma(sreg, lab):
        A("s_cmp_eq_u32 s3, 7\ns_cbranch_scc1 %s" % lab)
        for j in range(4):
            A("buffer_load_dwordx4 v246, s[36:39], s%d offen offset:%d nt lds" % (sreg, j * 1024))
            if thr: A("s_waitcnt vmcnt(%d)" % (thr - 1))
        A("%s:" % lab)
    def down_setup():
        A("s_mul_i32 s60, s65, 28672\ns_add_u32 s38, s60, 28672\ns_mov_b32 s36, s20\ns_mov_b32 s37, s21\ns_lshl_b32 s56, s3, 12\ns_add_u32 s60, s60, s56\ns_add_u32 m0, s56, %d" % R_D)
        if off & 8: A("s_mov_b32 s38, 0")
    A("v_lshlrev_b32 v14, 4, v0\nv_lshlrev_b32 v246, 4, v0")
    if not dlate:
        down_setup(); down_dma(60, "L_s5a")
    A("L_s5:")
    A("s_barrier")
    A("s_mov_b32 s36, s12\ns_mov_b32 s37, s13\ns_mov_b32 s38, %d" % (0 if off & 4 else 4096 * 896))
    A("s_mul_i32 s45, s35, %d\ns_mul_i32 s56, s3, %d\ns_add_u32 s45, s45, s56\ns_lshl_b32 s56, s33, 7\ns_add_u32 s45, s45, s56" % (512 * 896, 64 * 896))
    A("s_lshl_b32 s56, s3, 13\ns_mov_b32 m0, s56")
    for j in range(8):
        if j: A("s_add_u32 m0, m0, 1024\ns_add_u32 s45, s45, %d" % (8 * 896))
        else: A("s_nop 0")
        A("buffer_load_dwordx4 v15, s[36:39], s45 offen nt lds")
        if thr: A("s_waitcnt vmcnt(%d)" % (thr - 1))
    if dlate: down_setup()
    if cpf:
        A("s_getpc_b64 s[56:57]\nL_pc:\ns_lshl_b32 s46, s3, 10\nv_add_u32 v14, s46, v14\nv_min_u32 v14, L_end-L_pc-12, v14")
        A("global_load_dwordx4 v[28:31], v14, s[56:57]")
    A("v_lshlrev_b32 v21, 4, v%d\nv_add_u32 v22, v21, v%d" % (V_G, V_MISC))
    A("s_mov_b32 s48, 0xcccccccc\ns_mov_b32 s49, s48\ns_mov_b32 s50, 0xf0f0f0f0\ns_mov_b32 s51, s50\ns_mov_b32 s62, 0xff00ff00\ns_mov_b32 s63, s62")
    A("v_and_b32 v12, 8, v%d\nv_lshlrev_b32 v12, 2, v12\nv_lshl_add_u32 v12, v10, 3, v12\nv_lshl_add_u32 v12, v%d, 1, v12\ns_lshl_b32 s56, s3, 7\nv_add_u32 v12, s56, v12" % (V_N, V_G))
    A("v_bfe_u32 v13, v%d, 2, 1\nv_lshl_add_u32 v248, v13, 10, v12\nv_add_u32 v248, v248, v%d\nv_mul_u32_u24 v13, 896, v13\nv_add_u32 v12, v12, v13\nv_mov_b32 v252, 0\nv_mov_b32 v253, 0" % (V_N, V_MISC))
    A("buffer_load_short_d16_hi v252, v12, s[40:43], 0 offen\nbuffer_load_short_d16_hi v253, v12, s[40:43], 0 offen offset:64")
    A("v_and_b32 v12, 1, v0\nv_lshlrev_b32 v12, 3, v12\nv_lshl_add_u32 v12, v9, 6, v12\nv_lshrrev_b32 v13, 1, v10\nv_mul_u32_u24 v13, 28672, v13\ns_lshl_b32 s56, s3, 4\ns_add_u32 s56, s56, %d\nv_add3_u32 v12, v12, v13, s56" % R_G)
    A("v_lshl_add_u32 v13, v10, 3, v11\ns_and_b32 s56, s3, 3\ns_lshl_b32 s56, s56, 5\nv_add_u32 v13, s56, v13")
    A("v_mul_u32_u24 v14, 896, v9\nv_lshl_add_u32 v14, v10, 5, v14\ns_lshl_b32 s56, s3, 7\ns_add_u32 s56, s56, %d\nv_add_u32 v14, s56, v14" % R_D)
    A("s_lshr_b32 s56, s3, 2\ns_lshl_b32 s47, s56, 3\ns_add_u32 s47, s47, s35\ns_lshl_b32 s46, s47, 8\ns_add_u32 s46, s46, %d\ns_lshl_b32 s47, s47, 15" % WS_ML)
    A("s_and_b32 s57, s3, 3\ns_lshl_b32 s44, s57, 9\ns_add_u32 s47, s47, s44\ns_add_u32 s47, s47, %d" % WS_OP)
    A("v_mul_u32_u24 v8, 6144, v%d\nv_lshl_add_u32 v8, v%d, 4, v8\nv_add_u32 v15, 4096, v8" % (V_G, V_N))
    A("v_mul_u32_u24 v16, 3, v%d\nv_min_u32 v17, 11, v%d\nv_add_u32 v16, v16, v17\nv_subrev_u32 v17, 12, v16\nv_min_u32 v16, v16, v17\nv_lshlrev_b32 v16, 4, v16" % (V_G, V_N))
    A("v_and_b32 v17, 8, v%d\nv_lshl_add_u32 v17, v%d, 1, v17\nv_and_b32 v9, 6, v%d\nv_lshl_add_u32 v17, v9, 4, v17\nv_and_b32 v9, 1, v%d\nv_lshl_add_u32 v17, v9, 9, v17" % (V_N, V_G, V_N, V_N))
    A("s_lshl_b32 s56, s56, 10\ns_lshl_b32 s44, s57, 7\ns_add_u32 s56, s56, s44\nv_add3_u32 v17, v17, s56, v%d" % V_MISC)
    A("v_lshl_add_u32 v18, v9, 10, v22")
    A("s_mul_i32 s44, s35, 28\ns_lshl_b32 s56, s33, 2\ns_add_u32 s44, s44, s56\ns_add_u32 s44, s44, s57\ns_lshl_b32 s44, s44, 7\ns_add_u32 s44, s44, %d" % WS_AP)
    A("s_mul_i32 s61, s65, 3584\ns_lshl_b32 s56, s3, 9\ns_add_u32 s61, s61, s56\ns_add_u32 s61, s61, %d" % WS_FP)
    A("v_lshl_add_u32 v19, v%d, 6, v21\nv_lshlrev_b32 v245, 7, v%d\nv_lshl_add_u32 v245, v%d, 4, v245" % (V_N, V_G, V_N))
    A("s_add_u32 s45, s56, %d\nv_mul_u32_u24 v249, 7168, v%d\nv_lshl_add_u32 v249, v%d, 4, v249" % (WS_AP, V_G, V_N))
    A("v_cmp_eq_u32 vcc, 1, v9\nv_and_b32 v250, 2, v%d\nv_lshl_add_u32 v250, v250, 9, v22\nv_mov_b32 v23, %d\nv_cndmask_b32 v250, v250, v23, vcc" % (V_N, SMISC + L_ONES - L_H))
    A("v_lshl_add_u32 v23, v9, 6, v22")
    A("v_and_b32 v251, 2, v%d\nv_lshlrev_b32 v251, 7, v251\nv_lshl_add_u32 v251, v9, 5, v251\nv_and_b32 v9, 12, v%d\nv_lshl_add_u32 v251, v9, 4, v251\nv_add_u32 v251, v251, v%d" % (V_N, V_N, V_MISC))
    A("v_and_b32 v247, 4, v%d\nv_lshlrev_b32 v247, 6, v247\nv_lshl_add_u32 v247, v%d, 3, v247\ns_lshl_b32 s56, s3, 5\nv_add3_u32 v247, v247, s56, v%d" % (V_N, V_G, V_MISC))
    A("v_and_b32 v254, 2, v%d\nv_lshlrev_b32 v254, 5, v254\nv_lshl_add_u32 v254, v%d, 3, v254\nv_lshrrev_b32 v9, 2, v%d\nv_lshl_add_u32 v254, v9, 1, v254\ns_lshl_b32 s56, s3, 4\nv_add3_u32 v254, v254, s56, v%d" % (V_N, V_G, V_N, V_MISC))
    A("s_mov_b32 s20, 0x00110011\ns_mov_b32 s21, s20\ns_mov_b32 s12, %d\ns_mov_b32 s66, 0x00ff00ff\ns_mov_b32 s67, s66\ns_mov_b32 s34, 0x00030003\ns_mov_b32 s35, s34" % TAGM)
    A("s_lshr_b32 s56, s32, 1\ns_and_b32 s56, s56, 3\ns_lshl_b32 s56, s56, 4\ns_lshl_b64 s[16:17], 0xffff, s56\ns_mov_b64 s[18:19], 0")
    A("s_bitcmp1_b32 s32, 0\ns_cselect_b64 s[18:19], s[16:17], 0\ns_cselect_b64 s[16:17], 0, s[16:17]")
    A("s_waitcnt vmcnt(0)\ns_barrier")
    WA = 136; DA = 120
    def down_frags():
        for t in range(4):
            A("ds_read_b64_tr_b16 v[%d:%d], v14 offset:%d" % (DA + 4 * t, DA + 4 * t + 1, t * 8))
            A("ds_read_b64_tr_b16 v[%d:%d], v14 offset:%d" % (DA + 4 * t + 2, DA + 4 * t + 3, t * 8 + 4 * 896))
    if not dlate: down_frags()
    A("s_cmp_ge_u32 s3, 4\ns_cbranch_scc1 L_s6")
    for kk in range(14):
        A("ds_read_b64_tr_b16 v[%d:%d], v12 offset:%d" % (WA + 4 * kk, WA + 4 * kk + 1, kk * 2048))
        A("ds_read_b64_tr_b16 v[%d:%d], v12 offset:%d" % (WA + 4 * kk + 2, WA + 4 * kk + 3, kk * 2048 + 256))
    A("s_branch L_s7\nL_s6:")
    for kk in range(16):
        A("ds_read_b64_tr_b16 v[%d:%d], v13 offset:%d" % (WA + 4 * kk, WA + 4 * kk + 1, kk * 4096))
        A("ds_read_b64_tr_b16 v[%d:%d], v13 offset:%d" % (WA + 4 * kk + 2, WA + 4 * kk + 3, kk * 4096 + 512))
    A("L_s7:")
    A.stamp(17)
    def weights():
        A.gather([(16, 0)], 24, 20, "s46", sleep=mls)
        A("v_cmp_gt_u32 vcc, %d, v%d\nv_mov_b32 v28, v24\nv_mov_b32 v29, v25\nv_cndmask_b32 v26, 0, v26, vcc\nv_cndmask_b32 v27, 0, v27, vcc" % (NA, V_N))
        for r in (1, 2, 4, 8):
            A("v_max_f32_dpp v28, v28, v28 row_ror:%d %s\nv_max_f32_dpp v29, v29, v29 row_ror:%d %s" % (r, DPP, r, DPP))
            A.nop(1)
        A("v_sub_f32 v24, v24, v28\nv_sub_f32 v25, v25, v29\nv_mul_f32 v24, %s, v24\nv_mul_f32 v25, %s, v25\nv_exp_f32 v24, v24\nv_exp_f32 v25, v25\ns_nop 0" % (f32(C1), f32(C1)))
        A("v_mul_f32 v26, v24, v26\nv_mul_f32 v27, v25, v27")
        for r in (1, 2, 4, 8):
            A.nop(1)
            A("v_add_f32_dpp v26, v26, v26 row_ror:%d %s\nv_add_f32_dpp v27, v27, v27 row_ror:%d %s" % (r, DPP, r, DPP))
        A("v_rcp_f32 v26, v26\nv_rcp_f32 v27, v27\ns_nop 0\nv_mul_f32 v24, v24, v26\nv_mul_f32 v25, v25, v27")
        A.nop(2)
        for hh in range(2):
            for i in range(3):
                A("v_mov_b32_dpp v%d, v%d row_newbcast:%d %s" % (48 + 2 * i + hh, 24 + hh, i, DPP))
        A.mask(0xaaaaaaaa)
        for i in range(3):
            A("v_cndmask_b32 v%d, v%d, v%d, s[56:57]" % (48 + 2 * i, 48 + 2 * i, 49 + 2 * i))
    weights()
    OPL = [[(8, 0), (8, 256)], [(8, 2048), (8, 2304)], [(15, 0), (15, 256)]]
    if pret:
        for g in OPL:
            for va, oo in g:
                A("buffer_load_dwordx4 v[24:27], v%d, s[52:55], s47 offen offset:%d sc1" % (va, oo))
    A.gather2(OPL, 24, 20, "s47", sleep=ps1, sentinel=0x00010001)
    A.stamp(12)
    for hh in range(2):
        for k in (0, 2):
            r = 24 + 4 * hh + k
            A("v_pk_mul_f32 v[%d:%d], v[%d:%d], v[48:49] op_sel_hi:[1,0]" % (r, r + 1, r, r + 1))
    for i in range(1, 3):
        for hh in range(2):
            for k in (0, 2):
                r = 24 + 4 * hh + k
                A("v_pk_fma_f32 v[%d:%d], v[%d:%d], v[%d:%d], v[%d:%d] op_sel_hi:[1,0,1]" % (r, r + 1, r + 8 * i, r + 8 * i + 1, 48 + 2 * i, 49 + 2 * i, r, r + 1))
    A.swapreduce2(24, 28)
    A("v_cvt_pk_bf16_f32 v24, v24, v28\nds_write_b16 v17, v24 offset:%d\nds_write_b16_d16_hi v17, v24 offset:%d" % (L_SO, L_SO + 16))
    A("s_waitcnt lgkmcnt(0)\ns_barrier")
    A("s_cmp_lt_u32 s3, 4\ns_cbranch_scc1 L_s8")
    for kk in range(16):
        A("ds_read_b128 v[%d:%d], v18 offset:%d" % (56 + 4 * kk, 59 + 4 * kk, L_SO + kk * 64))
    for kk in range(16):
        A("s_waitcnt lgkmcnt(%d)" % (15 - kk))
        A("v_mfma_f32_16x16x32_bf16 v[24:27], v[%d:%d], v[%d:%d], %s" % (WA + 4 * kk, WA + 4 * kk + 3, 56 + 4 * kk, 59 + 4 * kk, "0" if kk == 0 else "v[24:27]"))
    A("s_mov_b64 exec, s[34:35]")
    A.nop(7)
    A.tag4(24, 24)
    A("buffer_store_dwordx4 v[24:27], v19, s[52:55], s44 offen sc1")
    A("s_mov_b64 exec, -1")
    if not gate: A("s_waitcnt vmcnt(0)")
    A("L_s8:")
    A("s_barrier")
    A.stamp(13)
    A("s_cmp_eq_u32 s3, 7\ns_cbranch_scc1 L_final")
    if dlate:
        for j in range(4):
            A("buffer_load_dwordx4 v246, s[36:39], s60 offen offset:%d nt lds" % (j * 1024))
    A.gather2([[(249, 3584 * i), (249, 3584 * i + 256)] for i in range(2)], 28, 20, "s45", sleep=ps2, hold=(16, 18) if gate else None)
    A.stamp(14)
    for k in range(0, 8, 2):
        A("v_pk_add_f32 v[%d:%d], v[%d:%d], v[%d:%d]" % (28 + k, 29 + k, 28 + k, 29 + k, 36 + k, 37 + k))
    A.swapreduce2(28, 32)
    A("v_cvt_pk_bf16_f32 v28, v28, v32\nv_lshlrev_b32 v29, 16, v28\nv_and_b32 v28, 0xffff0000, v28\nv_add_f32 v29, v252, v29\nv_add_f32 v28, v253, v28\nv_cvt_pk_bf16_f32 v28, v29, v28")
    A("ds_write_b16 v248, v28 offset:%d\nds_write_b16_d16_hi v248, v28 offset:%d" % (L_H, L_H + 64))
    A("v_lshlrev_b32 v29, 16, v28\nv_and_b32 v30, 0xffff0000, v28\nv_add_f32 v32, v29, v30\nv_mul_f32 v33, v29, v29\nv_fmac_f32 v33, v30, v30")
    for m in ("quad_perm:[1,0,3,2]", "quad_perm:[2,3,0,1]", "row_ror:8"):
        A("v_add_f32_dpp v32, v32, v32 %s %s\ns_nop 0\nv_add_f32_dpp v33, v33, v33 %s %s" % (m, DPP, m, DPP))
    A("s_mov_b64 exec, s[20:21]\nds_write_b64 v247, v[32:33] offset:%d\ns_mov_b64 exec, -1" % L_ST)
    A("s_waitcnt lgkmcnt(0)\ns_barrier")
    A.stamp(18)
    A("s_cmp_ge_u32 s3, 4\ns_cbranch_scc1 L_f2")
    HB = 48
    A("ds_read_b128 v[32:35], v251 offset:%d\nds_read_b128 v[36:39], v251 offset:%d" % (L_ST, L_ST + 16))
    for kk in range(14):
        A("ds_read_b128 v[%d:%d], v250 offset:%d" % (HB + 4 * kk, HB + 4 * kk + 3, L_H + kk * 64))
    side = ["v_pk_add_f32 v[32:33], v[32:33], v[34:35]", "v_pk_add_f32 v[36:37], v[36:37], v[38:39]", "v_pk_add_f32 v[40:41], v[32:33], v[36:37]", "s_nop 1"]
    for m in ("quad_perm:[1,0,3,2]", "row_ror:4", "row_ror:8"):
        side += ["v_add_f32_dpp v40, v40, v40 %s %s" % (m, DPP), "v_add_f32_dpp v41, v41, v41 %s %s" % (m, DPP), "s_nop 0"]
    side += A.ln_stats_list(40, 41, 42, 43, 44) + ["v_sub_f32 v42, 0, v42"]
    ga = 2 * math.sqrt(2 / math.pi) * math.log2(math.e); gb = ga * 0.044715
    side += ["v_mov_b32 v45, %s" % f32(-ga), "s_mov_b32 s56, %s" % f32(-gb)]
    tailn = 8
    cuts = [round((len(side) - tailn) * k / 13) for k in range(14)] + [len(side)]
    for kk in range(14):
        A("s_waitcnt lgkmcnt(%d)" % (13 - kk))
        A("v_mfma_f32_16x16x32_bf16 v[24:27], v[%d:%d], v[%d:%d], %s" % (WA + 4 * kk, WA + 4 * kk + 3, HB + 4 * kk, HB + 4 * kk + 3, "0" if kk == 0 else "v[24:27]"))
        A("\n".join(side[cuts[kk]:cuts[kk + 1]]))
    A("v_cndmask_b32 v24, v24, v25, s[50:51]\nv_cndmask_b32 v26, v26, v27, s[50:51]\nv_cndmask_b32 v24, v24, v26, s[62:63]")
    A.nop(2)
    A("v_fmac_f32_dpp v24, v24, v42 quad_perm:[1,1,3,3] %s" % DPP)
    A("v_mul_f32 v24, v24, v43\nv_cvt_pk_bf16_f32 v24, v24, v24\nv_lshlrev_b32 v24, 16, v24\nv_mov_b32 v25, v24")
    A("v_mul_f32 v26, v24, v24\nv_fma_f32 v26, v26, s56, v45")
    A("v_permlane32_swap_b32 v27, v25")
    A.L.pop()
    A("v_mul_f32 v26, v26, v24\nv_exp_f32 v26, v26\nv_mov_b32 v27, v24\nv_add_f32 v26, 1.0, v26\nv_rcp_f32 v26, v26\nv_permlane32_swap_b32 v27, v25")
    A("v_mul_f32 v26, v26, v24\nv_cvt_pk_bf16_f32 v26, v26, v26\nv_lshlrev_b32 v26, 16, v26\nv_mul_f32 v26, v26, v25\nv_cvt_pk_bf16_f32 v26, v26, v26")
    A("s_mov_b64 exec, 0x55555555\nds_write_b16 v254, v26 offset:%d\ns_mov_b64 exec, -1" % L_ACT)
    A("L_f2:")
    if dlate: down_frags()
    A("s_waitcnt lgkmcnt(%d)\ns_barrier" % (8 if dlate else 0))
    A.stamp(19)
    A("ds_read_b128 v[24:27], v23 offset:%d\ns_waitcnt lgkmcnt(0)" % L_ACT)
    for t in range(4):
        A("v_mfma_f32_16x16x32_bf16 v[%d:%d], v[%d:%d], v[24:27], 0" % (48 + 4 * t, 51 + 4 * t, DA + 4 * t, DA + 4 * t + 3))
    A("s_mov_b64 exec, s[66:67]")
    A.nop(5)
    for k in range(4):
        A("v_cndmask_b32 v%d, v%d, v%d, s[48:49]" % (48 + k, 48 + k, 52 + k))
    for k in range(4):
        A("v_cndmask_b32 v%d, v%d, v%d, s[48:49]" % (56 + k, 56 + k, 60 + k))
    for k in range(4):
        A("v_cndmask_b32 v%d, v%d, v%d, s[50:51]" % (48 + k, 48 + k, 56 + k))
    A.tag4(48, 48)
    A("buffer_store_dwordx4 v[48:51], v245, s[52:55], s61 offen sc1")
    A.stamp(15)
    if ack: A("s_waitcnt vmcnt(0)")
    A.stamp(21)
    A("s_barrier")
    if stamps:
        A("s_cmp_lg_u32 s3, 0\ns_cbranch_scc1 L_end")
        A.stamp_flush([0, 6, 7, 17, 12, 13, 14, 18, 19, 15, 21])
    A("s_endpgm")
    A("L_final:")
    A("s_lshr_b32 s45, s65, 1\ns_lshl_b32 s45, s45, 7\ns_and_b32 s56, s65, 1\ns_lshl_b32 s56, s56, 4\ns_add_u32 s45, s45, s56\ns_add_u32 s45, s45, %d" % WS_FP)
    A("v_lshrrev_b32 v12, 2, v0\nv_mul_u32_u24 v8, 3584, v12\nv_lshl_add_u32 v8, v10, 5, v8")
    A("v_add_u32 v9, %d, v8\nv_add_u32 v13, %d, v8\nv_add_u32 v11, %d, v8\nv_cmp_gt_u32 vcc, 8, v12" % (16 * 3584, 32 * 3584, 48 * 3584))
    A("v_lshlrev_b32 v16, 3, v10\nv_lshl_add_u32 v16, v%d, 1, v16\ns_lshr_b32 s46, s65, 1\ns_lshl_b32 s46, s46, 5\ns_and_b32 s56, s65, 1" % V_G)
    A("v_cndmask_b32 v11, v8, v11, vcc\nv_cndmask_b32 v12, 0, 1.0, vcc\nv_mov_b32 v18, 0")
    A("s_lshl_b32 s57, s56, 10\ns_add_u32 s57, s57, s46\nv_add3_u32 v17, v16, s57, v%d\ns_mul_i32 s56, s56, 896\ns_add_u32 s46, s46, s56" % V_MISC)
    A("s_mov_b32 s40, s22\ns_mov_b32 s41, s23\ns_mov_b32 s66, 0x000f000f\ns_mov_b32 s67, s66")
    A("s_barrier")
    A("ds_read_u16_d16_hi v18, v17 offset:%d" % L_H)
    A("s_cmp_lg_u32 s65, 0\ns_cbranch_scc1 L_noE")
    A("s_mov_b64 exec, 1\nv_mov_b32 v14, 0\nbuffer_store_dwordx4 v[%d:%d], v14, s[52:55], 0 offen offset:%d\ns_mov_b64 exec, -1" % (V_TAG, V_TAG + 3, WS_E))
    A("L_noE:")
    A("s_barrier\ns_barrier")
    A.gather2([[(8, 0)], [(9, 0)], [(13, 0)], [(11, 0)]], 24, 20, "s45", sleep=ps3)
    for k in range(4):
        A("v_add_f32 v%d, v%d, v%d" % (24 + k, 24 + k, 28 + k))
    for k in range(4):
        A("v_fmac_f32 v%d, v%d, v12" % (32 + k, 36 + k))
    for k in range(4):
        A("v_add_f32 v%d, v%d, v%d" % (24 + k, 24 + k, 32 + k))
    A.swapreduce(24)
    for r in (4, 8):
        A.nop(2)
        A("v_add_f32_dpp v24, v24, v24 row_ror:%d %s" % (r, DPP))
    A("s_waitcnt lgkmcnt(0)")
    A("v_cvt_pk_bf16_f32 v24, v24, v24\nv_lshlrev_b32 v24, 16, v24\nv_add_f32 v24, v18, v24\nv_cvt_pk_bf16_f32 v24, v24, v24")
    A("s_mov_b64 exec, s[66:67]")
    A("buffer_store_short v24, v16, s[40:43], s46 offen")
    if stamps:
        A.stamp(20)
        A("s_waitcnt vmcnt(0)")
        A.stamp(16)
        A.stamp_flush([20, 16])
    A("L_end:\ns_endpgm")
    A.L.append('.section .rodata,"a"\n.p2align 6\n.amdhsa_kernel %s_kernel' % NAME)
    A.L.append("  .amdhsa_next_free_vgpr 256\n  .amdhsa_next_free_sgpr 100\n  .amdhsa_accum_offset 256")
    A.L.append("  .amdhsa_group_segment_fixed_size 0\n  .amdhsa_kernarg_size 96\n  .amdhsa_user_sgpr_count 2\n  .amdhsa_user_sgpr_kernarg_segment_ptr 1\n  .amdhsa_system_sgpr_workgroup_id_x 1\n  .amdhsa_float_denorm_mode_32 3\n.end_amdhsa_kernel")
    return "\n".join(A.L) + "\n"

if __name__ == "__main__":
    out = sys.argv[1]
    kw = {}
    for a in sys.argv[2:]:
        k, v = a.split("="); kw[k] = int(v)
    open(out, "w").write(build(**kw))
```

```python
import sys, math, struct
NAME = "sequential_preLN__gqa_block_cached__geglu_ffn__decode"
HEADER = open("cdna_kernels/%s.s.ref" % NAME).read().split("; Override launch")[0]

NA = 12
NSL = 22
WS_E = 0
WS_Q = 0x1000
WS_ML = 0x9000
WS_AP = 0xA000
WS_OP = 0x20000
WS_FP = 0xA0000
WS_END = 0x140000
STAMP_OFF = 128 << 20
RING = 8
MISC = RING * 16384
L_Q = 0; L_P = 1024; PSTR = 1536; L_LSUM = 4096; L_MX = 4736
L_LAND = 4816; L_QF = 4820; L_C1 = 4824; L_C2 = 4828; L_WF = 4832; L_C3 = 4836
L_PROG = 4848
R_A = 0; R_G = 65536; R_U = R_G + 28672; R_D = R_U + 28672; SMISC = R_D + 28672
L_LN = 0; L_SO = 0; OSTR = 1088; L_H = 2304; HSTR = 960; L_ACT = 4352; L_ST = 4480
LDS_TOTAL = SMISC + 5120
assert MISC + 8192 <= LDS_TOTAL <= 163840
TAGM = 0x3ff
SPIN = 1 << 17
V_G = 1; V_N = 2; V_MISC = 3; V_TAG = 4
DPP = "row_mask:0xf bank_mask:0xf"
C1 = 0.0625 * math.log2(math.e)

def f32(x): return "0x%08x" % struct.unpack("<I", struct.pack("<f", x))[0]

class Gen:
    def __init__(self, stamps):
        self.L = []; self.uid = 0; self.stamps = stamps
    def __call__(self, s):
        for line in s.split("\n"):
            line = line.strip()
            if line: self.L.append(("" if line.endswith(":") else "    ") + line)
    def lab(self, p="L"):
        self.uid += 1
        return "%s_%d" % (p, self.uid)
    def nop(self, n):
        while n > 0:
            k = min(n, 16); self("s_nop %d" % (k - 1)); n -= k
    def mask(self, m32, dst="s[56:57]"):
        self("s_mov_b32 s56, 0x%08x\ns_mov_b32 s57, s56" % m32)
        if dst == "exec": self("s_mov_b64 exec, s[56:57]")
    def stamp(self, idx):
        if not self.stamps: return
        self("s_memrealtime s[%d:%d]\ns_waitcnt lgkmcnt(0)" % (68 + 2 * (idx % 16), 69 + 2 * (idx % 16)))
    def stamp_flush(self, idxs):
        if not self.stamps: return
        if self.stamps == 2:
            DBGMAP = {0: 0, 1: 1, 4: 2, 5: 3, 6: 4, 7: 5, 8: 6, 10: 7, 11: 8, 12: 9, 13: 10, 14: 11, 19: 12, 15: 13, 16: 14, 17: 15}
            self("s_mov_b64 exec, 1\nv_mov_b32 v255, 0")
            for idx in idxs:
                if idx not in DBGMAP: continue
                if idx == 0: self("s_not_b32 s68, s68")
                self("v_mov_b32 v250, s%d" % (68 + 2 * (idx % 16)))
                self("global_atomic_umax v255, v250, s[24:25] offset:%d\ns_nop 1" % (DBGMAP[idx] * 4))
            self("s_mov_b64 exec, -1")
            return
        self("s_mov_b64 exec, 1\ns_mul_i32 s60, s2, 256\ns_add_u32 s60, s60, %d\nv_mov_b32 v255, s60" % STAMP_OFF)
        for idx in idxs:
            self("v_mov_b32 v250, s%d\nv_mov_b32 v251, s%d" % (68 + 2 * (idx % 16), 69 + 2 * (idx % 16)))
            self("global_store_dwordx2 v255, v[250:251], s[26:27] offset:%d\ns_nop 1" % (idx * 8))
        self("s_mov_b64 exec, -1")
    def lds_wait_ge(self, off, sreg, target, vt, cached=True, sleep=1):
        d = self.lab("Lw"); l = self.lab("Lw")
        if cached:
            self("s_cmp_ge_u32 s%d, %s\ns_cbranch_scc1 %s" % (sreg, target, d))
        self("%s:" % l)
        self("ds_read_b32 v%d, v%d offset:%d\ns_waitcnt lgkmcnt(0)" % (vt, V_MISC, off))
        self("v_readfirstlane_b32 s%d, v%d\ns_cmp_ge_u32 s%d, %s\ns_cbranch_scc1 %s" % (sreg, vt, sreg, target, d))
        if sleep: self("s_sleep %d" % sleep)
        self("s_sub_u32 s64, s64, 1\ns_cbranch_scc0 %s\ns_mov_b32 s64, 0" % l)
        self("%s:" % d)
    def lds_signal_add(self, off, vt):
        self("s_mov_b64 exec, 1\nv_mov_b32 v%d, 1\nds_add_u32 v%d, v%d offset:%d\ns_mov_b64 exec, -1" % (vt, V_MISC, vt, off))
    def gather(self, offs, vd, vt, soff, sleep=2, reh=False):
        l = self.lab("Lg"); d = self.lab("Lg")
        self("s_mov_b32 s58, 0\n%s:" % l)
        for i, (va, oo) in enumerate(offs):
            self("buffer_load_dwordx4 v[%d:%d], v%d, s[52:55], %s offen offset:%d sc1" % (vd + 4 * i, vd + 4 * i + 3, va, soff, oo))
        for i in range(len(offs)):
            self("s_waitcnt vmcnt(%d)" % (len(offs) - 1 - i))
            for k in range(4):
                self("v_xor_b32 v%d, s%d, v%d" % (vd + 4 * i + k, 28 + k, vd + 4 * i + k))
            if i == 0:
                self("v_or3_b32 v%d, v%d, v%d, v%d\nv_or_b32 v%d, v%d, v%d" % (vt, vd, vd + 1, vd + 2, vt, vt, vd + 3))
            else:
                self("v_or3_b32 v%d, v%d, v%d, v%d" % (vt, vt, vd + 4 * i, vd + 4 * i + 1))
                self("v_or3_b32 v%d, v%d, v%d, v%d" % (vt, vt, vd + 4 * i + 2, vd + 4 * i + 3))
        self("v_and_b32 v%d, %d, v%d\nv_cmp_ne_u32 vcc, 0, v%d" % (vt, TAGM, vt, vt))
        if reh: self("s_and_b64 vcc, vcc, s[20:21]\ns_cbranch_scc0 %s" % d)
        else: self("s_cbranch_vccz %s" % d)
        if sleep: self("s_sleep %d" % sleep)
        self("s_add_u32 s58, s58, 1\ns_cmp_lt_u32 s58, %d\ns_cbranch_scc1 %s\n%s:" % (SPIN, l, d))
    def gather2(self, groups, vd, vt, soff, sleep=0, sentinel=None, MS=(4, 6, 8, 10), between=None, hold=None, first=False):
        regs = []; r = vd
        for g in groups:
            regs.append([r + 4 * k for k in range(len(g))]); r += 4 * len(g)
        def load(i, only=None):
            for (va, oo), rr in list(zip(groups[i], regs[i]))[:only]:
                self("buffer_load_dwordx4 v[%d:%d], v%d, s[52:55], %s offen offset:%d sc1" % (rr, rr + 3, va, soff, oo))
        def check(i, dst, only=None):
            w = []
            for rr in regs[i][:only]:
                for k in range(4):
                    self("v_xor_b32 v%d, s%d, v%d" % (rr + k, 28 + k, rr + k)); w.append(rr + k)
            self("v_or3_b32 v%d, v%d, v%d, v%d" % (vt, w[0], w[1], w[2])); w = w[3:]
            while len(w) > 1:
                self("v_or3_b32 v%d, v%d, v%d, v%d" % (vt, vt, w[0], w[1])); w = w[2:]
            self("v_bitop3_b32 v%d, v%d, v%d, s12 bitop3:0xa8\nv_cmp_ne_u32 %s, 0, v%d" % (vt, vt, w[0], dst, vt))
        n = len(groups)
        self("s_mov_b32 s58, 0")
        if sentinel is not None:
            l = self.lab("Ls"); d = self.lab("Ls")
            self.mask(sentinel, "exec")
            self("%s:" % l)
            load(0, 1)
            self("s_waitcnt vmcnt(0)")
            check(0, "vcc", 1)
            self("s_cmp_lg_u64 vcc, exec\ns_cbranch_scc1 %s\ns_sleep 6" % d)
            self("s_add_u32 s58, s58, 1\ns_cmp_lt_u32 s58, %d\ns_cbranch_scc1 %s\n%s:" % (SPIN, l, d))
        if between:
            self("s_mov_b64 exec, -1")
            between()
            self("s_mov_b32 s58, 0")
        l = self.lab("Lg"); d = self.lab("Lg"); dd = self.lab("Lg")
        if first:
            for i in range(n): load(i)
            left = sum(len(g) for g in groups)
            for i in range(n):
                left -= len(groups[i])
                self("s_waitcnt vmcnt(%d)" % left)
                check(i, "s[%d:%d]" % (MS[i], MS[i] + 1))
            self("s_or_b64 s[14:15], s[%d:%d], s[%d:%d]" % (MS[0], MS[0] + 1, MS[1], MS[1] + 1))
            for i in range(2, n):
                self("s_or_b64 s[14:15], s[14:15], s[%d:%d]" % (MS[i], MS[i] + 1))
            self("s_cbranch_scc0 %s" % dd)
        for i in range(n if not first else 0):
            if hold: self("s_not_b64 s[%d:%d], s[%d:%d]" % (MS[i], MS[i] + 1, hold[i], hold[i] + 1))
            else: self("s_mov_b64 s[%d:%d], -1" % (MS[i], MS[i] + 1))
        self("%s:" % l)
        for i in range(n):
            k = self.lab("Lk")
            self("s_mov_b64 exec, s[%d:%d]\ns_cbranch_execz %s" % (MS[i], MS[i] + 1, k))
            load(i)
            self("%s:" % k)
        self("s_waitcnt vmcnt(0)")
        for i in range(n):
            k = self.lab("Lk")
            self("s_mov_b64 exec, s[%d:%d]\ns_cbranch_execz %s" % (MS[i], MS[i] + 1, k))
            check(i, "s[%d:%d]" % (MS[i], MS[i] + 1))
            self("%s:" % k)
        if hold:
            for i in range(n):
                self("s_or_b64 s[%d:%d], s[%d:%d], s[%d:%d]\ns_mov_b64 s[%d:%d], 0" % (MS[i], MS[i] + 1, MS[i], MS[i] + 1, hold[i], hold[i] + 1, hold[i], hold[i] + 1))
        self("s_or_b64 s[14:15], s[%d:%d], s[%d:%d]" % (MS[0], MS[0] + 1, MS[1], MS[1] + 1))
        for i in range(2, n):
            self("s_or_b64 s[14:15], s[14:15], s[%d:%d]" % (MS[i], MS[i] + 1))
        self("s_cbranch_scc0 %s" % d)
        if sleep: self("s_sleep %d" % sleep)
        self("s_add_u32 s58, s58, 1\ns_cmp_lt_u32 s58, %d\ns_cbranch_scc1 %s\n%s:" % (SPIN, l, d))
        self("s_mov_b64 exec, -1\n%s:" % dd)
    def tag4(self, vs, vd):
        for k in range(4):
            self("v_and_or_b32 v%d, v%d, s59, v%d" % (vd + k, vs + k, V_TAG + k))
    def swapreduce(self, v):
        self.nop(2)
        self("v_permlane16_swap_b32 v%d, v%d\nv_permlane16_swap_b32 v%d, v%d" % (v, v + 1, v + 2, v + 3))
        self("v_add_f32 v%d, v%d, v%d\nv_add_f32 v%d, v%d, v%d" % (v, v, v + 1, v + 2, v + 2, v + 3))
        self.nop(2)
        self("v_permlane32_swap_b32 v%d, v%d" % (v, v + 2))
        self("v_add_f32 v%d, v%d, v%d" % (v, v, v + 2))
    def swapreduce2(self, v, u):
        self.nop(1)
        self("v_permlane16_swap_b32 v%d, v%d\nv_permlane16_swap_b32 v%d, v%d" % (v, v + 1, v + 2, v + 3))
        self("v_permlane16_swap_b32 v%d, v%d\nv_permlane16_swap_b32 v%d, v%d" % (u, u + 1, u + 2, u + 3))
        self("v_add_f32 v%d, v%d, v%d\nv_add_f32 v%d, v%d, v%d" % (v, v, v + 1, v + 2, v + 2, v + 3))
        self("v_add_f32 v%d, v%d, v%d\nv_add_f32 v%d, v%d, v%d" % (u, u, u + 1, u + 2, u + 2, u + 3))
        self("v_permlane32_swap_b32 v%d, v%d" % (v, v + 2))
        self.nop(1)
        self("v_permlane32_swap_b32 v%d, v%d" % (u, u + 2))
        self("v_add_f32 v%d, v%d, v%d\nv_add_f32 v%d, v%d, v%d" % (v, v, v + 2, u, u, u + 2))
    def ln_stats_list(self, vs, vq, vm, vr, t):
        return ["v_mul_f32 v%d, %s, v%d" % (vs, f32(1.0 / 448), vs), "v_mul_f32 v%d, %s, v%d" % (vq, f32(1.0 / 448), vq),
                "v_fma_f32 v%d, -v%d, v%d, v%d" % (vq, vs, vs, vq), "v_max_f32 v%d, 0, v%d" % (vq, vq),
                "v_cvt_pk_bf16_f32 v%d, v%d, v%d" % (t, vs, vq),
                "v_and_b32 v%d, 0xffff0000, v%d" % (vq, t), "v_lshlrev_b32 v%d, 16, v%d" % (vm, t),
                "v_add_f32 v%d, %s, v%d" % (vq, f32(1e-5), vq), "v_cvt_pk_bf16_f32 v%d, v%d, v%d" % (t, vq, vq),
                "v_lshlrev_b32 v%d, 16, v%d" % (vq, t), "v_sqrt_f32 v%d, v%d" % (vq, vq), "s_nop 0",
                "v_cvt_pk_bf16_f32 v%d, v%d, v%d" % (t, vq, vq), "v_lshlrev_b32 v%d, 16, v%d" % (vq, t),
                "v_rcp_f32 v%d, v%d" % (vr, vq), "s_nop 0"]
    def tags_setup(self):
        for k in range(4):
            self("s_add_u32 s%d, s%d, 1\ns_and_b32 s%d, s%d, %d\nv_mov_b32 v%d, s%d" % (28 + k, 28 + k, 28 + k, 28 + k, TAGM, V_TAG + k, 28 + k))

def build(stamps=0, win=48, qp=14, qslp=16, fast=1, ps1=0, ps2=0, ps3=0, cpf=1, ack=14, gate=1, pret=2, mls=32, prew=0, dlate=0, thr=0, off=0, diag=-1, rep=0, rot=0, lastbar=2, lite=0, fp1=1, pre=4):
    global WS_AP
    if rep: WS_AP = 0x100000
    A = Gen(stamps)
    A.L.append(HEADER.rstrip())
    A.L.append("; @launch grid=(256,1,1) block=(512,1,1) lds=%d" % LDS_TOTAL)
    A.L.append('.amdgcn_target "amdgcn-amd-amdhsa--gfx950"')
    A.L.append(".text\n.globl %s_kernel\n.p2align 8\n.type %s_kernel,@function\n%s_kernel:" % (NAME, NAME, NAME))
    A("s_cmp_ge_u32 s2, 256\ns_cbranch_scc1 L_end")
    A("s_load_dwordx16 s[4:19], s[0:1], 0\ns_load_dwordx8 s[20:27], s[0:1], 64")
    if stamps: A("s_memrealtime s[68:69]")
    if diag >= 0: A("s_memrealtime s[90:91]")
    A("v_lshrrev_b32 v1, 6, v0\nv_and_b32 v0, 63, v0\nv_readfirstlane_b32 s3, v1")
    A("s_and_b32 s32, s2, 15\ns_lshr_b32 s33, s2, 4\ns_lshr_b32 s34, s32, 3\ns_and_b32 s35, s32, 7")
    A("v_mov_b32 v%d, %d\ns_mov_b32 s64, %d" % (V_MISC, MISC, 1 << 20))
    A("s_cmp_ge_u32 s33, %d\ns_cbranch_scc1 L_service" % NA)
    A("s_mul_i32 s65, s33, 43691\ns_add_u32 s66, s65, 43691\ns_lshr_b32 s65, s65, 6\ns_lshr_b32 s66, s66, 6")
    for a in range(NA + 1): assert (a * 43691) >> 6 == a * 8192 // NA
    A("s_cmp_lg_u32 s3, 1\ns_cbranch_scc1 L_notloader")
    A("s_setprio 3")
    A("v_lshrrev_b32 v1, 5, v0\nv_and_b32 v2, 31, v0\nv_xor_b32 v4, v2, v1\nv_lshlrev_b32 v4, 4, v4\nv_lshl_or_b32 v8, v1, 9, v4")
    for j in range(1, 8):
        A("v_xor_b32 v%d, %d, v8" % (8 + j, 32 * j))
    A("s_lshl_b32 s45, s32, 22\ns_lshl_b32 s44, s65, 9\ns_add_u32 s44, s44, s45\ns_lshl_b32 s38, s66, 9\ns_add_u32 s38, s38, s45")
    if rot:
        A("s_mul_i32 s51, s32, %d\ns_mul_i32 s56, s51, 3121\ns_lshr_b32 s56, s56, 16\ns_mul_i32 s56, s56, 21\ns_sub_u32 s51, s51, s56" % rot)
        for g in range(16): assert (g * rot * 3121) >> 16 == g * rot // 21
        A("s_lshl_b32 s51, s51, 14\ns_add_u32 s51, s51, s44\ns_add_u32 s49, s44, %d" % (21 * 16384))
    else:
        A("s_mov_b32 s51, s44")
    A("s_mov_b32 s45, s51\ns_mov_b32 s46, 0\ns_mov_b32 s47, 0\ns_mov_b32 s48, 0\ns_mov_b32 s50, 3\ns_mov_b32 m0, 0")
    A("s_mov_b32 s39, 0x20000")
    A("s_waitcnt lgkmcnt(0)")
    A.stamp(2)
    A("s_mov_b32 s36, s6\ns_mov_b32 s37, s7")
    W = win
    lag = W // 16 - 1
    def land(k):
        A("s_sub_i32 s56, s46, %d\ns_max_i32 s48, s48, s56\nv_mov_b32 v20, s48\nds_write_b32 v%d, v20 offset:%d" % (k, V_MISC, L_LAND))
    A("L_slot:")
    A("s_add_u32 s56, s47, %d\ns_cmp_lt_u32 s46, s56\ns_cbranch_scc0 L_waitfree" % RING)
    A("L_go:")
    A("s_waitcnt vmcnt(%d)" % (W - 8))
    for j in range(16):
        if j == 8:
            A("s_waitcnt vmcnt(%d)" % (W - 8))
            land(lag)
        A("buffer_load_dwordx4 v%d, s[36:39], s45 offen nt lds" % (8 + j % 8))
        A("s_add_u32 m0, m0, 1024\ns_add_u32 s45, s45, 1024")
    A("s_and_b32 m0, m0, %d" % (MISC - 1))
    if rot:
        A("s_cmp_eq_u32 s45, s49\ns_cselect_b32 s45, s44, s45\ns_cmp_eq_u32 s45, s51\ns_cselect_b32 s45, s49, s45")
    A("s_add_u32 s46, s46, 1\ns_cmp_lg_u32 s46, s50\ns_cbranch_scc1 L_slot")
    A("s_cmp_lg_u32 s46, 3\ns_cbranch_scc1 L_evV")
    A.stamp(29)
    A("s_barrier")
    A.stamp(30)
    if stamps:
        A("s_waitcnt vmcnt(40)")
        A.stamp(31)
    A("s_mov_b32 s50, %d\ns_branch L_slot" % NSL)
    A("L_evV:\ns_cmp_lg_u32 s46, %d\ns_cbranch_scc1 L_ldone" % NSL)
    A.stamp(1)
    A("v_lshlrev_b32 v4, 1, v1\nv_xor_b32 v4, v2, v4\nv_lshlrev_b32 v4, 4, v4\nv_lshl_or_b32 v8, v1, 9, v4")
    for j in range(1, 8):
        A("v_xor_b32 v%d, %d, v8" % (8 + j, 64 * (j & 3)))
    A("s_mov_b32 s36, s8\ns_mov_b32 s37, s9\ns_mov_b32 s45, s51\ns_mov_b32 s50, %d\ns_branch L_slot" % (2 * NSL))
    A("L_ldone:")
    A.stamp(3)
    for k in range(lag, -1, -1):
        A("s_waitcnt vmcnt(%d)" % (16 * k))
        if k < lastbar: A("s_barrier")
        else: land(k)
    A.stamp(4)
    A.stamp_flush([0, 1, 2, 3, 4, 29, 30, 31])
    A("s_endpgm")
    A("L_waitfree:")
    def prog_check():
        A("ds_read_b128 v[20:23], v%d offset:%d\nds_read_b64 v[24:25], v%d offset:%d\ns_waitcnt lgkmcnt(0)" % (V_MISC, L_PROG, V_MISC, L_PROG + 16))
        A("v_min3_u32 v20, v20, v21, v22\nv_min3_u32 v23, v23, v24, v25\nv_min_u32 v20, v20, v23\ns_nop 0\nv_readfirstlane_b32 s47, v20")
        A("s_add_u32 s56, s47, %d\ns_cmp_lt_u32 s46, s56\ns_cbranch_scc1 L_go" % RING)
    for k in range(lag, -1, -1):
        prog_check()
        A("s_waitcnt vmcnt(%d)" % (16 * k))
        land(k)
    A("L_wf2:")
    prog_check()
    A("s_sleep 1\ns_sub_u32 s64, s64, 1\ns_cbranch_scc0 L_wf2\ns_mov_b32 s64, 0\ns_branch L_go")

    def common_setup():
        A("v_lshrrev_b32 v%d, 4, v0\nv_and_b32 v%d, 15, v0" % (V_G, V_N))
        A("s_waitcnt lgkmcnt(0)")
        A("s_load_dwordx4 s[28:31], s[26:27], %d" % WS_E)
        A("s_mov_b32 s52, s26\ns_mov_b32 s53, s27\ns_mov_b32 s54, %d\ns_mov_b32 s55, 0x20000" % WS_END)
        A("s_mov_b32 s59, %d" % (0xffffffff & ~TAGM))
    A("L_notloader:")
    common_setup()
    A("s_cmp_lg_u32 s3, 0\ns_cbranch_scc1 L_noinit")
    A("v_mov_b32 v8, 0\nv_lshl_add_u32 v9, v0, 2, v%d\nds_write_b32 v9, v8 offset:%d" % (V_MISC, L_LSUM))
    A("s_mov_b64 exec, 0xff\nds_write_b32 v9, v8 offset:%d\nds_write_b32 v9, v0 offset:%d" % (L_LAND, L_PROG))
    A("s_mov_b64 exec, 0x3\nv_mov_b32 v10, 0xff800000\nds_write_b32 v9, v10 offset:%d\ns_mov_b64 exec, -1" % L_MX)
    A("L_noinit:")
    A("s_sub_u32 s61, s3, 2")
    A("s_waitcnt lgkmcnt(0)")
    A.tags_setup()
    A("s_mov_b32 s48, 0\ns_barrier")
    A("s_cmp_ge_u32 s3, 2\ns_cbranch_scc1 L_cons")
    A("s_lshl_b32 s45, s34, 14\ns_lshl_b32 s46, s35, 11\ns_add_u32 s45, s45, s46\ns_add_u32 s45, s45, %d" % WS_Q)
    A("v_lshlrev_b32 v16, 4, v0")
    A.lds_wait_ge(L_LAND, 48, str(qp), 17)
    A.stamp(7)
    A.gather([(16, 0), (16, 1024)], 20, 17, "s45", sleep=qslp)
    A("s_mov_b32 s56, 0x07060302")
    for i in range(4):
        A("v_perm_b32 v%d, v%d, v%d, s56" % (28 + i, 21 + 2 * i, 20 + 2 * i))
    A("v_lshl_add_u32 v16, v0, 3, v%d" % V_MISC)
    A("ds_write_b64 v16, v[28:29] offset:%d\nds_write_b64 v16, v[30:31] offset:%d" % (L_Q, L_Q + 512))
    A("s_getreg_b32 s56, hwreg(HW_REG_XCC_ID)\ns_and_b32 s56, s56, 15\nv_bfe_u32 v18, v20, 10, 4\nv_bfe_u32 v19, v24, 10, 4")
    A("v_cmp_ne_u32 vcc, s56, v18\nv_cmp_ne_u32 s[44:45], s56, v19\ns_nop 0\ns_or_b64 vcc, vcc, s[44:45]\ns_cselect_b32 s56, 1, %d" % (2 if fast else 1))
    A("s_mov_b32 s67, s56\nv_mov_b32 v17, s56\nds_write_b32 v%d, v17 offset:%d" % (V_MISC, L_QF))
    A.stamp(8)
    A.lds_wait_ge(L_C2, 47, "6", 8, cached=False, sleep=4)
    A("ds_read_b32 v10, v9 offset:%d\nds_read_b64 v[12:13], v%d offset:%d\ns_waitcnt lgkmcnt(0)" % (L_LSUM, V_MISC, L_MX))
    for r in (1, 2, 4, 8):
        A("v_add_f32_dpp v10, v10, v10 row_ror:%d %s" % (r, DPP))
        A.nop(2)
    A("v_readlane_b32 s56, v10, 16\nv_readlane_b32 s57, v10, 32\nv_readlane_b32 s58, v10, 48")
    A.nop(1)
    A("v_add_f32 v14, s56, v10\nv_mov_b32 v15, s57\nv_add_f32 v15, s58, v15")
    A.tag4(12, 12)
    A("s_lshl_b32 s45, s32, 8\ns_add_u32 s45, s45, %d\ns_lshl_b32 s46, s33, 4\nv_mov_b32 v9, s46" % WS_ML)
    A("s_mov_b64 exec, 1\ns_cmp_eq_u32 s67, 2\ns_cbranch_scc1 L_mlfast")
    A("buffer_store_dwordx4 v[12:15], v9, s[52:55], s45 offen sc1\ns_branch L_mldone\nL_mlfast:")
    A("buffer_store_dwordx4 v[12:15], v9, s[52:55], s45 offen\nL_mldone:")
    A.stamp_flush([7, 8])
    A("s_endpgm")

    A("L_cons:")
    KA = 8; KT = 244; KD = [16, 80, 144, 16]; QB = 208; AC = 240; S = 248
    A("v_xor_b32 v12, v%d, v%d\nv_lshlrev_b32 v12, 4, v12\nv_lshl_or_b32 v%d, v%d, 9, v12" % (V_G, V_N, KA, V_N))
    for k in range(1, 4):
        A("v_xor_b32 v%d, %d, v%d" % (KA + k, 64 * k, KA))
    A("s_add_u32 s46, s61, 1\ns_lshl_b32 s44, s61, 14")
    A("s_lshl_b32 s62, s61, 2\nv_add_u32 v13, s62, v%d" % V_MISC)
    def kread(i):
        for k in range(4):
            A("v_add_u32 v%d, s44, v%d" % (KT + k, KA + k))
        A.lds_wait_ge(L_LAND, 48, "s46", 12)
        for tt in range(2):
            for kk in range(8):
                r = KD[i] + 32 * tt + 4 * kk
                A("ds_read_b128 v[%d:%d], v%d offset:%d" % (r, r + 3, KT + (kk & 3), tt * 8192 + (kk >> 2) * 256))
        A("s_add_u32 s56, s46, 5\ns_min_u32 s56, s56, %d\nv_mov_b32 v12, s56\ns_add_u32 s46, s46, 6" % NSL)
        A("s_add_u32 s44, s44, %d\ns_and_b32 s44, s44, %d" % (6 * 16384, MISC - 1))
        A("s_waitcnt lgkmcnt(0)")
        A("ds_write_b32 v13, v12 offset:%d" % L_PROG)
    def kcomp(i):
        for kk in range(8):
            for tt in range(2):
                r = KD[i] + 32 * tt + 4 * kk
                A("v_mfma_f32_16x16x32_bf16 v[%d:%d], v[%d:%d], v[%d:%d], %s" % (AC + 4 * tt, AC + 4 * tt + 3, r, r + 3, QB + 4 * kk, QB + 4 * kk + 3, "0" if kk == 0 else "v[%d:%d]" % (AC + 4 * tt, AC + 4 * tt + 3)))
        A.mask(0x00030003 << (4 * i))
        A.nop(5)
        for k in range(4):
            A("v_cndmask_b32 v%d, v%d, v%d, s[56:57]" % (S + k, S + k, AC + k))
        A("s_lshl_b64 s[56:57], s[56:57], 2")
        for k in range(4):
            A("v_cndmask_b32 v%d, v%d, v%d, s[56:57]" % (S + k, S + k, AC + 4 + k))
    for i in range(3):
        kread(i)
    A.lds_wait_ge(L_QF, 67, "1", 12, cached=False)
    A("v_and_b32 v12, 1, v%d\nv_lshlrev_b32 v12, 9, v12\nv_lshl_add_u32 v12, v%d, 4, v12\nv_add_u32 v12, v%d, v12" % (V_N, V_G, V_MISC))
    for kk in range(8):
        A("ds_read_b128 v[%d:%d], v12 offset:%d" % (QB + 4 * kk, QB + 4 * kk + 3, L_Q + kk * 64))
    A("s_waitcnt lgkmcnt(0)")
    for i in range(3):
        kcomp(i)
    A("s_cmp_gt_u32 s46, %d\ns_cbranch_scc1 L_kdone" % NSL)
    kread(3); kcomp(3)
    A("L_kdone:")
    A.stamp(9)
    A("v_lshrrev_b32 v23, 2, v%d\nv_mul_u32_u24 v16, 192, v23\nv_and_b32 v22, 2, v%d\nv_lshl_add_u32 v16, v22, 3, v16\nv_lshl_add_u32 v16, v%d, 2, v16" % (V_N, V_N, V_G))
    A("s_sub_u32 s44, s66, s65\ns_lshl_b32 s45, s61, 5\ns_sub_u32 s44, s44, s45\nv_mov_b32 v17, 0xff800000")
    for k in range(4):
        A("v_cmp_gt_u32 vcc, s44, v16\nv_add_u32 v16, 1, v16\ns_nop 0\nv_cndmask_b32 v%d, v17, v%d, vcc" % (S + k, S + k))
    A("v_cvt_pk_bf16_f32 v16, v%d, v%d\nv_cvt_pk_bf16_f32 v17, v%d, v%d" % (S, S + 1, S + 2, S + 3))
    A("v_lshlrev_b32 v%d, 16, v16\nv_and_b32 v%d, 0xffff0000, v16\nv_lshlrev_b32 v%d, 16, v17\nv_and_b32 v%d, 0xffff0000, v17" % (S, S + 1, S + 2, S + 3))
    A("v_max3_f32 v16, v%d, v%d, v%d\nv_max_f32 v16, v16, v%d" % (S, S + 1, S + 2, S + 3))
    for r in (2, 4, 8):
        A.nop(2)
        A("v_max_f32_dpp v16, v16, v16 row_ror:%d %s" % (r, DPP))
    A("v_and_b32 v17, 1, v%d\nv_lshl_add_u32 v18, v17, 2, v%d" % (V_N, V_MISC))
    A.mask(0x00030003, "exec")
    A("ds_max_f32 v18, v16 offset:%d" % L_MX)
    A.lds_signal_add(L_C1, 12)
    A("v_mul_u32_u24 v19, 384, v23\nv_mul_u32_u24 v14, %d, v17\nv_lshl_add_u32 v14, v%d, 4, v14\nv_add_u32 v14, v%d, v14" % (PSTR, V_G, V_MISC))
    A("v_lshl_add_u32 v19, v22, 2, v19\ns_lshl_b32 s62, s61, 6\nv_add3_u32 v19, v19, s62, v14")
    A("v_lshlrev_b32 v20, 7, v17\nv_lshl_add_u32 v20, v%d, 2, v20\ns_lshl_b32 s62, s61, 4\nv_add3_u32 v20, v20, s62, v%d" % (V_G, V_MISC))
    A.lds_wait_ge(L_C1, 47, "6", 12, cached=False, sleep=0)
    A("ds_read_b32 v16, v18 offset:%d\ns_waitcnt lgkmcnt(0)" % L_MX)
    for k in range(4):
        A("v_sub_f32 v%d, v%d, v16\nv_mul_f32 v%d, %s, v%d\nv_exp_f32 v%d, v%d" % (S + k, S + k, S + k, f32(C1), S + k, S + k, S + k))
    A("v_add_f32 v16, v%d, v%d\nv_add_f32 v16, v16, v%d\nv_add_f32 v16, v16, v%d" % (S, S + 1, S + 2, S + 3))
    A("v_cvt_pk_bf16_f32 v24, v%d, v%d\nv_cvt_pk_bf16_f32 v25, v%d, v%d" % (S, S + 1, S + 2, S + 3))
    A("ds_write_b64 v19, v[24:25] offset:%d" % L_P)
    for r in (2, 4, 8):
        A("v_add_f32_dpp v16, v16, v16 row_ror:%d %s" % (r, DPP))
        A.nop(2)
    A("s_mov_b64 exec, s[56:57]\nds_write_b32 v20, v16 offset:%d" % L_LSUM)
    A.lds_signal_add(L_C2, 12)
    A("s_cmp_ge_u32 s3, 4\ns_cbranch_scc1 L_pv")
    A("v_mov_b32 v12, 0x7fff\nds_write_b32 v13, v12 offset:%d" % L_PROG)
    A("s_endpgm")
    A("L_pv:")
    A("s_sub_u32 s61, s3, 4")
    VA = 8; VT = 16; VD = 24; PB = 40; OA = 96
    A("v_lshrrev_b32 v16, 2, v0\nv_and_b32 v18, 7, v16\ns_lshl_b32 s62, s61, 2\nv_xor_b32 v18, s62, v18\nv_lshlrev_b32 v18, 5, v18")
    A("v_lshl_or_b32 v18, v16, 9, v18\nv_and_b32 v16, 3, v0\nv_lshl_or_b32 v%d, v16, 3, v18" % VA)
    for tt in range(1, 4):
        A("v_xor_b32 v%d, %d, v%d" % (VA + tt, 32 * tt, VA))
    for k in range(4):
        A("v_mov_b32 v%d, 0" % (OA + k))
    for k in range(16):
        A("v_mov_b32 v%d, 0" % (PB + k))
    A("v_lshlrev_b32 v112, 7, v%d\nv_lshl_add_u32 v112, v%d, 4, v112" % (V_G, V_N))
    A("s_lshl_b32 s41, s32, 15\ns_lshl_b32 s56, s61, 9\ns_add_u32 s41, s41, s56\ns_add_u32 s41, s41, %d" % WS_OP)
    A("s_lshl_b32 s56, s33, 11\ns_add_u32 s40, s41, s56")
    for tt in range(4):
        A("s_mov_b32 s%d, 0x%08x\ns_mov_b32 s%d, s%d" % (4 + 2 * tt, 0x00030003 << (2 * tt), 5 + 2 * tt, 4 + 2 * tt))
    A("s_mov_b32 s12, 0x00ff00ff\ns_mov_b32 s13, s12")
    if prew:
        A("s_cmp_lg_u32 s67, 2\ns_cbranch_scc1 L_noprew")
        for k in range(4):
            A("v_xor_b32 v%d, 1, v%d" % (100 + k, V_TAG + k))
        A("s_mov_b64 exec, s[12:13]\nbuffer_store_dwordx4 v[100:103], v112, s[52:55], s40 offen\ns_mov_b64 exec, -1\nL_noprew:")
    A.lds_wait_ge(L_C2, 47, "6", 12, cached=False, sleep=0)
    A.stamp(10)
    A("s_mov_b32 s46, %d\ns_mov_b32 s44, %d" % (NSL + 1, (NSL % RING) * 16384))
    A("L_vloop:")
    for tt in range(4):
        A("s_mov_b64 exec, s[%d:%d]\nds_read_b128 v[%d:%d], v14 offset:%d" % (4 + 2 * tt, 5 + 2 * tt, PB + 4 * tt, PB + 4 * tt + 3, L_P))
    A("s_mov_b64 exec, -1")
    for tt in range(4):
        A("v_add_u32 v%d, s44, v%d" % (VT + tt, VA + tt))
    if lastbar == 2: A("s_cmp_lg_u32 s46, %d\ns_cbranch_scc1 L_vw\ns_barrier\ns_branch L_vg\nL_vw:" % (2 * NSL - 1))
    A.lds_wait_ge(L_LAND, 48, "s46", 12, sleep=0)
    if lastbar == 2: A("L_vg:")
    for tt in range(4):
        A("ds_read_b64_tr_b16 v[%d:%d], v%d" % (VD + 4 * tt, VD + 4 * tt + 1, VT + tt))
        A("ds_read_b64_tr_b16 v[%d:%d], v%d offset:8192" % (VD + 4 * tt + 2, VD + 4 * tt + 3, VT + tt))
    A("v_mov_b32 v12, s46\nv_add_u32 v14, 64, v14\ns_add_u32 s44, s44, 16384\ns_and_b32 s44, s44, %d" % (MISC - 1))
    A("s_add_u32 s46, s46, 1\ns_cmp_le_u32 s46, %d" % (2 * NSL - min(lastbar, 1)))
    for tt in range(4):
        A("s_waitcnt lgkmcnt(%d)" % (6 - 2 * tt))
        A("v_mfma_f32_16x16x32_bf16 v[%d:%d], v[%d:%d], v[%d:%d], v[%d:%d]" % (OA, OA + 3, VD + 4 * tt, VD + 4 * tt + 3, PB + 4 * tt, PB + 4 * tt + 3, OA, OA + 3))
    A("ds_write_b32 v13, v12 offset:%d" % L_PROG)
    A("s_cbranch_scc1 L_vloop")
    if lastbar:
        for tt in range(4):
            A("s_mov_b64 exec, s[%d:%d]\nds_read_b64 v[%d:%d], v14 offset:%d" % (4 + 2 * tt, 5 + 2 * tt, PB + 4 * tt, PB + 4 * tt + 1, L_P))
        A("s_mov_b64 exec, -1")
        for tt in range(4):
            A("v_add_u32 v%d, s44, v%d" % (VT + tt, VA + tt))
        A("s_cmp_eq_u32 s67, 2\ns_barrier")
        for tt in range(4):
            A("ds_read_b64_tr_b16 v[%d:%d], v%d" % (VD + 4 * tt, VD + 4 * tt + 1, VT + tt))
        for tt in range(4):
            A("s_waitcnt lgkmcnt(%d)" % (3 - tt))
            A("v_mfma_f32_16x16x16_bf16 v[%d:%d], v[%d:%d], v[%d:%d], v[%d:%d]" % (OA, OA + 3, VD + 4 * tt, VD + 4 * tt + 1, PB + 4 * tt, PB + 4 * tt + 1, OA, OA + 3))
        A("s_mov_b64 exec, s[12:13]")
        A.nop(7)
    else:
        A("s_mov_b64 exec, s[12:13]\ns_cmp_eq_u32 s67, 2")
        A.nop(4)
    A.tag4(OA, OA)
    A("s_cbranch_scc0 L_slowpub")
    A("buffer_store_dwordx4 v[%d:%d], v112, s[52:55], s40 offen" % (OA, OA + 3))
    A("s_branch L_pubdone\nL_slowpub:")
    A("buffer_store_dwordx4 v[%d:%d], v112, s[52:55], s40 offen sc1" % (OA, OA + 3))
    A("L_pubdone:")
    if stamps:
        A.stamp(11)
        A("s_cmp_lg_u32 s3, 4\ns_cbranch_scc1 L_end")
        A.stamp_flush([9, 10, 11])
    A("s_endpgm")

    A("L_service:")
    A("v_mov_b32 v%d, %d" % (V_MISC, SMISC))
    common_setup()
    A("s_sub_u32 s33, s2, %d\ns_lshr_b32 s33, s33, 3" % (16 * NA))
    A("s_mov_b32 s40, s4\ns_mov_b32 s41, s5\ns_mov_b32 s42, 1792\ns_mov_b32 s43, 0x20000")
    A("s_cmp_lg_u32 s3, 0\ns_cbranch_scc1 L_s1")
    A("v_lshrrev_b32 v8, 5, v0\nv_and_b32 v9, 31, v0\nv_mul_u32_u24 v10, 896, v8\nv_lshl_add_u32 v10, v9, 4, v10")
    A("v_cmp_gt_u32 vcc, 28, v9\nv_mov_b32 v11, 0x1000\ns_nop 0\nv_cndmask_b32 v11, v11, v10, vcc")
    A("buffer_load_dwordx4 v[16:19], v11, s[40:43], 0 offen\nbuffer_load_dwordx4 v[20:23], v11, s[40:43], 0 offen offset:448")
    A("L_s1:")
    def dma7(vaddr, gstep, lds, t=0):
        A("s_mul_i32 s56, s3, 7168\ns_add_u32 m0, s56, %d" % lds)
        for j in range(7):
            if j: A("s_add_u32 m0, m0, 1024\ns_add_u32 s45, s45, %d" % gstep)
            else: A("s_nop 0")
            A("buffer_load_dwordx4 v%d, s[36:39], s45 offen nt lds" % vaddr)
            if t: A("s_waitcnt vmcnt(%d)" % (t - 1))
    A("v_lshrrev_b32 v12, 3, v0\nv_and_b32 v13, 7, v0\nv_lshlrev_b32 v13, 4, v13\nv_lshl_add_u32 v14, v12, 13, v13\nv_mul_u32_u24 v12, 896, v12\nv_add_u32 v15, v12, v13")
    A("s_mov_b32 s36, s10\ns_mov_b32 s37, s11\ns_mov_b32 s38, %d\ns_mov_b32 s39, 0x20000" % (0 if off & 1 else 448 * 8192))
    A("s_lshl_b32 s44, s35, 3\ns_add_u32 s44, s44, s33\ns_lshl_b32 s45, s44, 7\ns_mul_i32 s56, s3, %d\ns_add_u32 s45, s45, s56" % (56 * 8192))
    dma7(14, 8 * 8192, R_A)
    A("s_waitcnt lgkmcnt(0)")
    A.tags_setup()
    A("s_cmp_lg_u32 s3, 1\ns_cbranch_scc1 L_s2")
    A("v_lshl_add_u32 v9, v0, 4, v%d" % V_MISC)
    A("v_mov_b32 v28, 0\nv_mov_b32 v29, 0\nv_mov_b32 v30, 0\nv_mov_b32 v31, 0\ns_mov_b64 exec, 0xffffffff\nds_write_b128 v9, v[28:31] offset:%d\ns_mov_b64 exec, -1" % L_ST)
    A("L_s2:")
    A("s_cmp_lg_u32 s3, 0\ns_cbranch_scc1 L_s3")
    A("s_waitcnt vmcnt(7)")
    A.stamp(5)
    X = 24
    for i in range(8):
        A("v_lshlrev_b32 v%d, 16, v%d\nv_and_b32 v%d, 0xffff0000, v%d" % (X + 2 * i, 16 + i, X + 2 * i + 1, 16 + i))
    A("v_add_f32 v40, v%d, v%d\nv_mul_f32 v41, v%d, v%d\nv_fmac_f32 v41, v%d, v%d" % (X, X + 1, X, X, X + 1, X + 1))
    for i in range(2, 16):
        A("v_add_f32 v40, v40, v%d\nv_fmac_f32 v41, v%d, v%d" % (X + i, X + i, X + i))
    for r in (1, 2, 4, 8):
        A.nop(1)
        A("v_add_f32_dpp v40, v40, v40 row_ror:%d %s\nv_add_f32_dpp v41, v41, v41 row_ror:%d %s" % (r, DPP, r, DPP))
    A("v_mov_b32 v42, v40\nv_mov_b32 v43, v41")
    A.nop(2)
    A("v_permlane16_swap_b32 v40, v42\nv_permlane16_swap_b32 v41, v43")
    A("v_add_f32 v40, v40, v42\nv_add_f32 v41, v41, v43")
    A("\n".join(A.ln_stats_list(40, 41, 42, 43, 44)))
    for i in range(8):
        a, b = X + 2 * i, X + 2 * i + 1
        A("v_sub_f32 v%d, v%d, v42\nv_sub_f32 v%d, v%d, v42\nv_cvt_pk_bf16_f32 v44, v%d, v%d" % (a, a, b, b, a, b))
        A("v_lshlrev_b32 v%d, 16, v44\nv_and_b32 v%d, 0xffff0000, v44" % (a, b))
        A("v_mul_f32 v%d, v%d, v43\nv_mul_f32 v%d, v%d, v43\nv_cvt_pk_bf16_f32 v%d, v%d, v%d" % (a, a, b, b, 16 + i, a, b))
    A("v_add_u32 v10, v%d, v10" % V_MISC)
    A.mask(0x0fffffff, "exec")
    A("ds_write_b128 v10, v[16:19] offset:%d\nds_write_b128 v10, v[20:23] offset:%d" % (L_LN, L_LN + 448))
    A("s_mov_b64 exec, -1")
    A("L_s3:")
    A("v_lshrrev_b32 v9, 2, v%d\nv_lshl_add_u32 v9, v%d, 3, v9\nv_lshlrev_b32 v11, 7, v9\nv_and_b32 v10, 3, v0" % (V_N, V_G))
    A("s_waitcnt vmcnt(0) lgkmcnt(0)\ns_barrier")
    A.stamp(6)
    A("s_cmp_ge_u32 s3, 4\ns_cbranch_scc1 L_s4")
    BQ = 16; AQ = 72
    A("v_and_b32 v8, 1, v%d\nv_mul_u32_u24 v8, 896, v8\nv_lshl_add_u32 v8, v%d, 4, v8\nv_add_u32 v8, v%d, v8" % (V_N, V_G, V_MISC))
    A("v_lshl_add_u32 v12, v10, 3, v11\ns_lshl_b32 s56, s3, 5\nv_add_u32 v12, s56, v12")
    for kk in range(14):
        A("ds_read_b128 v[%d:%d], v8 offset:%d" % (BQ + 4 * kk, BQ + 4 * kk + 3, L_LN + kk * 64))
        A("ds_read_b64_tr_b16 v[%d:%d], v12 offset:%d" % (AQ + 4 * kk, AQ + 4 * kk + 1, R_A + kk * 4096))
        A("ds_read_b64_tr_b16 v[%d:%d], v12 offset:%d" % (AQ + 4 * kk + 2, AQ + 4 * kk + 3, R_A + kk * 4096 + 512))
    A("s_waitcnt lgkmcnt(0)")
    for kk in range(14):
        A("v_mfma_f32_16x16x32_bf16 v[128:131], v[%d:%d], v[%d:%d], %s" % (AQ + 4 * kk, AQ + 4 * kk + 3, BQ + 4 * kk, BQ + 4 * kk + 3, "0" if kk == 0 else "v[128:131]"))
    A("v_and_b32 v16, 1, v%d\nv_lshlrev_b32 v16, 14, v16\nv_lshl_add_u32 v16, v%d, 4, v16" % (V_N, V_G))
    A("s_lshl_b32 s45, s44, 8\ns_lshl_b32 s56, s3, 6\ns_add_u32 s45, s45, s56\ns_add_u32 s45, s45, %d" % WS_Q)
    A("s_getreg_b32 s46, hwreg(HW_REG_XCC_ID)\ns_and_b32 s46, s46, 15\ns_lshl_b32 s46, s46, 10")
    A("v_cvt_pk_bf16_f32 v12, v128, v129\nv_cvt_pk_bf16_f32 v13, v130, v131")
    A("v_lshl_or_b32 v128, v12, 16, v%d\nv_and_b32 v129, 0xffff0000, v12\nv_or_b32 v129, v129, v%d" % (V_TAG, V_TAG + 1))
    A("v_lshl_or_b32 v130, v13, 16, v%d\nv_and_b32 v131, 0xffff0000, v13\nv_or_b32 v131, v131, v%d" % (V_TAG + 2, V_TAG + 3))
    A("v_or_b32 v128, s46, v128")
    A.mask(0x00030003, "exec")
    A("buffer_store_dwordx4 v[128:131], v16, s[52:55], s45 offen sc1")
    A("s_mov_b64 exec, -1")
    A.stamp(7)
    A("L_s4:")
    if diag >= 0:
        A("s_cmp_lg_u32 s2, %d\ns_cbranch_scc1 L_nodiag" % (248 + diag))
        A("L_diag:\ns_memrealtime s[92:93]\ns_waitcnt lgkmcnt(0)\ns_sub_u32 s92, s92, s90\ns_cmp_lt_u32 s92, 5000\ns_cbranch_scc1 L_diag\nL_nodiag:")
    if pret == 2:
        A("s_cmp_lt_u32 s33, 7\ns_cbranch_scc1 L_s4b")
        A("s_lshr_b32 s56, s3, 2\ns_lshl_b32 s47, s56, 3\ns_add_u32 s47, s47, s35\ns_lshl_b32 s47, s47, 15\ns_and_b32 s56, s3, 3\ns_mul_i32 s56, s56, 6144\ns_add_u32 s47, s47, s56\ns_add_u32 s47, s47, %d" % WS_OP)
        A("v_min_u32 v8, 47, v0\nv_lshlrev_b32 v8, 7, v8\nbuffer_load_dword v9, v8, s[52:55], s47 offen sc1\ns_endpgm\nL_s4b:")
    A("s_cmp_ge_u32 s33, 7\ns_cbranch_scc1 L_end")
    A("s_mul_i32 s65, s35, 7\ns_add_u32 s65, s65, s33")
    A("s_cmp_lt_u32 s3, 4\ns_cselect_b32 s36, s16, s18\ns_cselect_b32 s37, s17, s19\ns_mov_b32 s38, %d" % (0 if off & 2 else 448 * 3584))
    A("s_and_b32 s56, s3, 3\ns_mul_i32 s45, s56, %d\ns_lshl_b32 s56, s65, 6\ns_add_u32 s45, s45, s56" % (112 * 3584))
    A("v_lshrrev_b32 v14, 2, v0\nv_mul_u32_u24 v14, 3584, v14\nv_lshl_add_u32 v14, v10, 4, v14")
    dma7(14, 16 * 3584, R_G, thr)
    def down_dma(sreg, lab):
        A("s_cmp_eq_u32 s3, 7\ns_cbranch_scc1 %s" % lab)
        for j in range(4):
            A("buffer_load_dwordx4 v246, s[36:39], s%d offen offset:%d nt lds" % (sreg, j * 1024))
            if thr: A("s_waitcnt vmcnt(%d)" % (thr - 1))
        A("%s:" % lab)
    def down_setup():
        A("s_mul_i32 s60, s65, 28672\ns_add_u32 s38, s60, 28672\ns_mov_b32 s36, s20\ns_mov_b32 s37, s21\ns_lshl_b32 s56, s3, 12\ns_add_u32 s60, s60, s56\ns_add_u32 m0, s56, %d" % R_D)
        if off & 8: A("s_mov_b32 s38, 0")
    A("v_lshlrev_b32 v14, 4, v0\nv_lshlrev_b32 v246, 4, v0")
    if not dlate:
        down_setup(); down_dma(60, "L_s5a")
    A("L_s5:")
    A("s_barrier")
    A("s_mov_b32 s36, s12\ns_mov_b32 s37, s13\ns_mov_b32 s38, %d" % (0 if off & 4 else 4096 * 896))
    A("s_mul_i32 s45, s35, %d\ns_mul_i32 s56, s3, %d\ns_add_u32 s45, s45, s56\ns_lshl_b32 s56, s33, 7\ns_add_u32 s45, s45, s56" % (512 * 896, 64 * 896))
    A("s_lshl_b32 s56, s3, 13\ns_mov_b32 m0, s56")
    for j in range(8):
        if j: A("s_add_u32 m0, m0, 1024\ns_add_u32 s45, s45, %d" % (8 * 896))
        else: A("s_nop 0")
        A("buffer_load_dwordx4 v15, s[36:39], s45 offen nt lds")
        if thr: A("s_waitcnt vmcnt(%d)" % (thr - 1))
    if dlate: down_setup()
    if cpf:
        A("s_getpc_b64 s[56:57]\nL_pc:\ns_lshl_b32 s46, s3, 10\nv_add_u32 v14, s46, v14\nv_min_u32 v14, L_end-L_pc-12, v14")
        A("global_load_dwordx4 v[28:31], v14, s[56:57]")
    A("v_lshlrev_b32 v21, 4, v%d\nv_add_u32 v22, v21, v%d" % (V_G, V_MISC))
    A("s_mov_b32 s48, 0xcccccccc\ns_mov_b32 s49, s48\ns_mov_b32 s50, 0xf0f0f0f0\ns_mov_b32 s51, s50\ns_mov_b32 s62, 0xff00ff00\ns_mov_b32 s63, s62")
    A("v_and_b32 v12, 8, v%d\nv_lshlrev_b32 v12, 2, v12\nv_lshl_add_u32 v12, v10, 3, v12\nv_lshl_add_u32 v12, v%d, 1, v12\ns_lshl_b32 s56, s3, 7\nv_add_u32 v12, s56, v12" % (V_N, V_G))
    A("v_bfe_u32 v13, v%d, 2, 1\nv_mul_u32_u24 v248, %d, v13\nv_add3_u32 v248, v248, v12, v%d\nv_mul_u32_u24 v13, 896, v13\nv_add_u32 v12, v12, v13\nv_mov_b32 v252, 0\nv_mov_b32 v253, 0" % (V_N, HSTR, V_MISC))
    A("buffer_load_short_d16_hi v252, v12, s[40:43], 0 offen\nbuffer_load_short_d16_hi v253, v12, s[40:43], 0 offen offset:64")
    A("v_and_b32 v12, 1, v0\nv_lshlrev_b32 v12, 3, v12\nv_lshl_add_u32 v12, v9, 6, v12\nv_lshrrev_b32 v13, 1, v10\nv_mul_u32_u24 v13, 28672, v13\ns_lshl_b32 s56, s3, 4\ns_add_u32 s56, s56, %d\nv_add3_u32 v12, v12, v13, s56" % R_G)
    A("v_lshl_add_u32 v13, v10, 3, v11\ns_and_b32 s56, s3, 3\ns_lshl_b32 s56, s56, 5\nv_add_u32 v13, s56, v13")
    A("v_mul_u32_u24 v14, 896, v9\nv_lshl_add_u32 v14, v10, 5, v14\ns_lshl_b32 s56, s3, 7\ns_add_u32 s56, s56, %d\nv_add_u32 v14, s56, v14" % R_D)
    A("s_lshr_b32 s56, s3, 2\ns_lshl_b32 s47, s56, 3\ns_add_u32 s47, s47, s35\ns_lshl_b32 s46, s47, 8\ns_add_u32 s46, s46, %d\ns_lshl_b32 s47, s47, 15" % WS_ML)
    A("s_and_b32 s57, s3, 3\ns_lshl_b32 s44, s57, 9\ns_add_u32 s47, s47, s44\ns_add_u32 s47, s47, %d" % WS_OP)
    A("v_mul_u32_u24 v8, 6144, v%d\nv_lshl_add_u32 v8, v%d, 4, v8\nv_add_u32 v15, 4096, v8" % (V_G, V_N))
    A("v_mul_u32_u24 v16, 3, v%d\nv_min_u32 v17, 11, v%d\nv_add_u32 v16, v16, v17\nv_subrev_u32 v17, 12, v16\nv_min_u32 v16, v16, v17\nv_lshlrev_b32 v16, 4, v16" % (V_G, V_N))
    A("v_and_b32 v17, 8, v%d\nv_lshl_add_u32 v17, v%d, 1, v17\nv_and_b32 v9, 6, v%d\nv_lshl_add_u32 v17, v9, 4, v17\nv_and_b32 v9, 1, v%d\nv_lshl_add_u32 v17, v9, 9, v17" % (V_N, V_G, V_N, V_N))
    A("s_mul_i32 s56, s56, %d\ns_lshl_b32 s44, s57, 7\ns_add_u32 s56, s56, s44\nv_add3_u32 v17, v17, s56, v%d" % (OSTR, V_MISC))
    A("v_mul_u32_u24 v18, %d, v9\nv_add_u32 v18, v18, v22" % OSTR)
    A("s_mul_i32 s44, s35, 28\ns_lshl_b32 s56, s33, 2\ns_add_u32 s44, s44, s56\ns_add_u32 s44, s44, s57\ns_lshl_b32 s44, s44, 7\ns_add_u32 s44, s44, %d" % WS_AP)
    A("s_mul_i32 s61, s65, 3584\ns_lshl_b32 s56, s3, 9\ns_add_u32 s61, s61, s56\ns_add_u32 s61, s61, %d" % WS_FP)
    if rep:
        A("v_lshrrev_b32 v19, 1, v%d\nv_lshlrev_b32 v19, 15, v19\nv_lshl_add_u32 v19, v9, 6, v19\nv_add_u32 v19, v19, v21\ns_lshl_b32 s57, s35, 15\ns_add_u32 s56, s56, s57" % V_N)
    else:
        A("v_lshl_add_u32 v19, v%d, 6, v21" % V_N)
    A("v_lshlrev_b32 v245, 7, v%d\nv_lshl_add_u32 v245, v%d, 4, v245" % (V_G, V_N))
    A("s_add_u32 s45, s56, %d\nv_mul_u32_u24 v249, 7168, v%d\nv_lshl_add_u32 v249, v%d, 4, v249" % (WS_AP, V_G, V_N))
    A("v_mul_u32_u24 v250, %d, v9\nv_add_u32 v250, v250, v22" % HSTR)
    A("v_lshl_add_u32 v23, v9, 6, v22")
    A("v_and_b32 v251, 14, v%d\nv_lshlrev_b32 v251, 4, v251\nv_lshl_add_u32 v251, v9, 8, v251\nv_add_u32 v251, v251, v%d" % (V_N, V_MISC))
    A("v_and_b32 v247, 4, v%d\nv_lshlrev_b32 v247, 6, v247\nv_lshl_add_u32 v247, v%d, 3, v247\ns_lshl_b32 s56, s3, 5\nv_add3_u32 v247, v247, s56, v%d" % (V_N, V_G, V_MISC))
    A("v_and_b32 v254, 6, v%d\nv_lshl_add_u32 v254, v9, 6, v254\nv_lshl_add_u32 v254, v%d, 3, v254\ns_lshl_b32 s56, s3, 4\nv_add3_u32 v254, v254, s56, v%d" % (V_N, V_G, V_MISC))
    A("s_mov_b32 s20, 0x00110011\ns_mov_b32 s21, s20\ns_mov_b32 s12, %d\ns_mov_b32 s66, 0x00ff00ff\ns_mov_b32 s67, s66\ns_mov_b32 s34, 0x00030003\ns_mov_b32 s35, s34" % TAGM)
    A("s_lshr_b32 s56, s32, 1\ns_and_b32 s56, s56, 3\ns_lshl_b32 s56, s56, 4\ns_lshl_b64 s[16:17], 0xffff, s56\ns_mov_b64 s[18:19], 0")
    A("s_bitcmp1_b32 s32, 0\ns_cselect_b64 s[18:19], s[16:17], 0\ns_cselect_b64 s[16:17], 0, s[16:17]")
    A("s_waitcnt vmcnt(0)\ns_barrier")
    WA = 136; DA = 120
    def down_frags():
        for t in range(4):
            A("ds_read_b64_tr_b16 v[%d:%d], v14 offset:%d" % (DA + 4 * t, DA + 4 * t + 1, t * 8))
            A("ds_read_b64_tr_b16 v[%d:%d], v14 offset:%d" % (DA + 4 * t + 2, DA + 4 * t + 3, t * 8 + 4 * 896))
    if not dlate: down_frags()
    A("s_cmp_ge_u32 s3, 4\ns_cbranch_scc1 L_s6")
    for kk in range(14):
        A("ds_read_b64_tr_b16 v[%d:%d], v12 offset:%d" % (WA + 4 * kk, WA + 4 * kk + 1, kk * 2048))
        A("ds_read_b64_tr_b16 v[%d:%d], v12 offset:%d" % (WA + 4 * kk + 2, WA + 4 * kk + 3, kk * 2048 + 256))
    A("v_mov_b32 v56, 0x3f803f80\nv_mov_b32 v57, v56\nv_mov_b32 v58, v56\nv_mov_b32 v59, v56\ns_nop 1\ns_waitcnt lgkmcnt(0)")
    for kk in range(14):
        A("v_mfma_f32_16x16x32_bf16 v[24:27], v[%d:%d], v[56:59], %s" % (WA + 4 * kk, WA + 4 * kk + 3, "0" if kk == 0 else "v[24:27]"))
    A.nop(8)
    A("v_cndmask_b32 v24, v24, v25, s[48:49]\nv_cndmask_b32 v26, v26, v27, s[48:49]\nv_cndmask_b32 v244, v24, v26, s[50:51]")
    A("s_branch L_s7\nL_s6:")
    for kk in range(16):
        A("ds_read_b64_tr_b16 v[%d:%d], v13 offset:%d" % (WA + 4 * kk, WA + 4 * kk + 1, kk * 4096))
        A("ds_read_b64_tr_b16 v[%d:%d], v13 offset:%d" % (WA + 4 * kk + 2, WA + 4 * kk + 3, kk * 4096 + 512))
    A("L_s7:")
    A.stamp(17)
    def weights():
        A.gather([(16, 0)], 24, 20, "s46", sleep=mls)
        A("v_cmp_gt_u32 vcc, %d, v%d\nv_mov_b32 v28, v24\nv_mov_b32 v29, v25\nv_cndmask_b32 v26, 0, v26, vcc\nv_cndmask_b32 v27, 0, v27, vcc" % (NA, V_N))
        for r in (1, 2, 4, 8):
            A("v_max_f32_dpp v28, v28, v28 row_ror:%d %s\nv_max_f32_dpp v29, v29, v29 row_ror:%d %s" % (r, DPP, r, DPP))
            A.nop(1)
        A("v_sub_f32 v24, v24, v28\nv_sub_f32 v25, v25, v29\nv_mul_f32 v24, %s, v24\nv_mul_f32 v25, %s, v25\nv_exp_f32 v24, v24\nv_exp_f32 v25, v25\ns_nop 0" % (f32(C1), f32(C1)))
        A("v_mul_f32 v26, v24, v26\nv_mul_f32 v27, v25, v27")
        for r in (1, 2, 4, 8):
            A.nop(1)
            A("v_add_f32_dpp v26, v26, v26 row_ror:%d %s\nv_add_f32_dpp v27, v27, v27 row_ror:%d %s" % (r, DPP, r, DPP))
        A("v_rcp_f32 v26, v26\nv_rcp_f32 v27, v27\ns_nop 0\nv_mul_f32 v24, v24, v26\nv_mul_f32 v25, v25, v27")
        A.nop(2)
        for hh in range(2):
            for i in range(3):
                A("v_mov_b32_dpp v%d, v%d row_newbcast:%d %s" % (48 + 2 * i + hh, 24 + hh, i, DPP))
        A.mask(0xaaaaaaaa)
        for i in range(3):
            A("v_cndmask_b32 v%d, v%d, v%d, s[56:57]" % (48 + 2 * i, 48 + 2 * i, 49 + 2 * i))
    weights()
    OPL = [[(8, 0), (8, 256)], [(8, 2048), (8, 2304)], [(15, 0), (15, 256)]]
    if pret == 1:
        for g in OPL:
            for va, oo in g:
                A("buffer_load_dwordx4 v[24:27], v%d, s[52:55], s47 offen offset:%d sc1" % (va, oo))
    A.gather2(OPL, 24, 20, "s47", sleep=ps1, sentinel=0x00010001)
    A.stamp(12)
    for hh in range(2):
        for k in (0, 2):
            r = 24 + 4 * hh + k
            A("v_pk_mul_f32 v[%d:%d], v[%d:%d], v[48:49] op_sel_hi:[1,0]" % (r, r + 1, r, r + 1))
    for i in range(1, 3):
        for hh in range(2):
            for k in (0, 2):
                r = 24 + 4 * hh + k
                A("v_pk_fma_f32 v[%d:%d], v[%d:%d], v[%d:%d], v[%d:%d] op_sel_hi:[1,0,1]" % (r, r + 1, r + 8 * i, r + 8 * i + 1, 48 + 2 * i, 49 + 2 * i, r, r + 1))
    A.swapreduce2(24, 28)
    A("v_cvt_pk_bf16_f32 v24, v24, v28\nds_write_b16 v17, v24 offset:%d\nds_write_b16_d16_hi v17, v24 offset:%d" % (L_SO, L_SO + 16))
    A("s_waitcnt lgkmcnt(0)\ns_barrier")
    A("s_cmp_lt_u32 s3, 4\ns_cbranch_scc1 L_s8")
    def chain(n, rd, mf, side=None, older=0):
        for kk in range(min(pre, n)): rd(kk)
        for kk in range(n):
            if kk + pre < n: rd(kk + pre)
            A("s_waitcnt lgkmcnt(%d)" % (min(n - 1, kk + pre) - kk))
            mf(kk)
            if side: side(kk)
    chain(16, lambda kk: A("ds_read_b128 v[%d:%d], v18 offset:%d" % (56 + 4 * kk, 59 + 4 * kk, L_SO + kk * 64)),
          lambda kk: A("v_mfma_f32_16x16x32_bf16 v[24:27], v[%d:%d], v[%d:%d], %s" % (WA + 4 * kk, WA + 4 * kk + 3, 56 + 4 * kk, 59 + 4 * kk, "0" if kk == 0 else "v[24:27]")))
    if rep: A.nop(1)
    else: A("s_mov_b64 exec, s[34:35]")
    A.nop(7)
    A.tag4(24, 24)
    A("buffer_store_dwordx4 v[24:27], v19, s[52:55], s44 offen sc1")
    A("s_mov_b64 exec, -1")
    if not gate: A("s_waitcnt vmcnt(0)")
    A("L_s8:")
    A("s_barrier")
    A.stamp(13)
    A("s_cmp_eq_u32 s3, 7\ns_cbranch_scc1 L_final")
    if dlate == 1:
        for j in range(4):
            A("buffer_load_dwordx4 v246, s[36:39], s60 offen offset:%d nt lds" % (j * 1024))
    A.gather2([[(249, 3584 * i), (249, 3584 * i + 256)] for i in range(2)], 28, 20, "s45", sleep=ps2, hold=(16, 18) if gate else None)
    A.stamp(14)
    for k in range(0, 8, 2):
        A("v_pk_add_f32 v[%d:%d], v[%d:%d], v[%d:%d]" % (28 + k, 29 + k, 28 + k, 29 + k, 36 + k, 37 + k))
    A.swapreduce2(28, 32)
    A("v_cvt_pk_bf16_f32 v28, v28, v32\nv_lshlrev_b32 v29, 16, v28\nv_and_b32 v28, 0xffff0000, v28\nv_add_f32 v29, v252, v29\nv_add_f32 v28, v253, v28\nv_cvt_pk_bf16_f32 v28, v29, v28")
    A("ds_write_b16 v248, v28 offset:%d\nds_write_b16_d16_hi v248, v28 offset:%d" % (L_H, L_H + 64))
    A("v_lshlrev_b32 v29, 16, v28\nv_and_b32 v30, 0xffff0000, v28\nv_add_f32 v32, v29, v30\nv_mul_f32 v33, v29, v29\nv_fmac_f32 v33, v30, v30")
    for m in ("quad_perm:[1,0,3,2]", "quad_perm:[2,3,0,1]", "row_ror:8"):
        A("v_add_f32_dpp v32, v32, v32 %s %s\ns_nop 0\nv_add_f32_dpp v33, v33, v33 %s %s" % (m, DPP, m, DPP))
    A("s_mov_b64 exec, s[20:21]\nds_write_b64 v247, v[32:33] offset:%d\ns_mov_b64 exec, -1" % L_ST)
    A("s_waitcnt lgkmcnt(0)\ns_barrier")
    A.stamp(18)
    A("s_cmp_ge_u32 s3, 4\ns_cbranch_scc1 L_f2")
    HB = 56
    A("ds_read_b128 v[32:35], v251 offset:%d\nds_read_b128 v[36:39], v251 offset:%d" % (L_ST, L_ST + 16))
    side = ["v_pk_add_f32 v[32:33], v[32:33], v[34:35]", "v_pk_add_f32 v[36:37], v[36:37], v[38:39]", "v_pk_add_f32 v[40:41], v[32:33], v[36:37]", "s_nop 1"]
    for m in ("row_ror:2", "row_ror:4", "row_ror:8"):
        side += ["v_add_f32_dpp v40, v40, v40 %s %s" % (m, DPP), "v_add_f32_dpp v41, v41, v41 %s %s" % (m, DPP), "s_nop 0"]
    if lite:
        side += ["v_mul_f32 v42, %s, v40" % f32(-1.0 / 448), "v_mul_f32 v41, %s, v41" % f32(1.0 / 448), "v_fma_f32 v41, -v42, v42, v41",
                 "v_max_f32 v41, 0, v41", "v_add_f32 v41, %s, v41" % f32(1e-5), "v_rsq_f32 v43, v41"]
    else:
        side += A.ln_stats_list(40, 41, 42, 43, 44) + ["v_sub_f32 v42, 0, v42"]
    ga = 2 * math.sqrt(2 / math.pi) * math.log2(math.e); gb = ga * 0.044715
    side += ["v_mov_b32 v45, %s" % f32(-ga), "s_mov_b32 s56, %s" % f32(-gb)]
    tailn = 8
    cuts = [round((len(side) - tailn) * k / 13) for k in range(14)] + [len(side)]
    chain(14, lambda kk: A("ds_read_b128 v[%d:%d], v250 offset:%d" % (HB + 4 * kk, HB + 4 * kk + 3, L_H + kk * 64)),
          lambda kk: A("v_mfma_f32_16x16x32_bf16 v[24:27], v[%d:%d], v[%d:%d], %s" % (WA + 4 * kk, WA + 4 * kk + 3, HB + 4 * kk, HB + 4 * kk + 3, "0" if kk == 0 else "v[24:27]")),
          lambda kk: A("\n".join(side[cuts[kk]:cuts[kk + 1]])))
    A("v_cndmask_b32 v24, v24, v25, s[48:49]\nv_cndmask_b32 v26, v26, v27, s[48:49]\nv_cndmask_b32 v24, v24, v26, s[50:51]")
    A("v_fmac_f32 v24, v244, v42")
    A("v_mul_f32 v24, v24, v43\nv_cvt_pk_bf16_f32 v24, v24, v24\nv_lshlrev_b32 v24, 16, v24\nv_mov_b32 v25, v24")
    A("v_mul_f32 v26, v24, v24\nv_fma_f32 v26, v26, s56, v45")
    A("v_permlane32_swap_b32 v27, v25")
    A.L.pop()
    A("v_mul_f32 v26, v26, v24\nv_exp_f32 v26, v26\nv_mov_b32 v27, v24\nv_add_f32 v26, 1.0, v26\nv_rcp_f32 v26, v26\nv_permlane32_swap_b32 v27, v25")
    A("v_mul_f32 v26, v26, v24\nv_cvt_pk_bf16_f32 v26, v26, v26\nv_lshlrev_b32 v26, 16, v26\nv_mul_f32 v26, v26, v25\nv_cvt_pk_bf16_f32 v26, v26, v26")
    A("s_mov_b64 exec, 0x00ff00ff\nds_write_b16 v254, v26 offset:%d\ns_mov_b64 exec, -1" % L_ACT)
    A("L_f2:")
    if dlate: down_frags()
    A("s_waitcnt lgkmcnt(%d)\ns_barrier" % (8 if dlate else 0))
    A.stamp(19)
    A("ds_read_b128 v[24:27], v23 offset:%d\ns_waitcnt lgkmcnt(0)" % L_ACT)
    for t in range(4):
        A("v_mfma_f32_16x16x32_bf16 v[%d:%d], v[%d:%d], v[24:27], 0" % (48 + 4 * t, 51 + 4 * t, DA + 4 * t, DA + 4 * t + 3))
    A("s_mov_b64 exec, s[66:67]")
    A.nop(5)
    for k in range(4):
        A("v_cndmask_b32 v%d, v%d, v%d, s[48:49]" % (48 + k, 48 + k, 52 + k))
    for k in range(4):
        A("v_cndmask_b32 v%d, v%d, v%d, s[48:49]" % (56 + k, 56 + k, 60 + k))
    for k in range(4):
        A("v_cndmask_b32 v%d, v%d, v%d, s[50:51]" % (48 + k, 48 + k, 56 + k))
    A.tag4(48, 48)
    A("buffer_store_dwordx4 v[48:51], v245, s[52:55], s61 offen sc1")
    A.stamp(15)
    if ack == 1: A("s_waitcnt vmcnt(0)")
    if ack == 2: A("s_cmp_lg_u32 s3, 0\ns_cbranch_scc1 L_noack\ns_waitcnt vmcnt(0)\nL_noack:")
    A.stamp(21)
    A("s_barrier")
    if stamps:
        A("s_cmp_lg_u32 s3, 0\ns_cbranch_scc1 L_end")
        A.stamp_flush([0, 6, 7, 17, 12, 13, 14, 18, 19, 15, 21])
    A("s_endpgm")
    A("L_final:")
    if dlate >= 2:
        A("s_sub_u32 s60, s60, 28672\ns_mov_b32 m0, %d\ns_mov_b32 s46, 0\nL_dl:" % R_D)
        for j in range(4):
            A("buffer_load_dwordx4 v246, s[36:39], s60 offen offset:%d nt lds" % (j * 1024))
        A("s_add_u32 m0, m0, 4096\ns_add_u32 s60, s60, 4096\ns_add_u32 s46, s46, 1\ns_cmp_lt_u32 s46, 7\ns_cbranch_scc1 L_dl")
    A("s_lshr_b32 s45, s65, 1\ns_lshl_b32 s45, s45, 7\ns_and_b32 s56, s65, 1\ns_lshl_b32 s56, s56, 4\ns_add_u32 s45, s45, s56\ns_add_u32 s45, s45, %d" % WS_FP)
    A("v_lshrrev_b32 v12, 2, v0\nv_mul_u32_u24 v8, 3584, v12\nv_lshl_add_u32 v8, v10, 5, v8")
    A("v_add_u32 v9, %d, v8\nv_add_u32 v13, %d, v8\nv_add_u32 v11, %d, v8\nv_cmp_gt_u32 vcc, 8, v12" % (16 * 3584, 32 * 3584, 48 * 3584))
    A("v_lshlrev_b32 v16, 3, v10\nv_lshl_add_u32 v16, v%d, 1, v16\ns_lshr_b32 s46, s65, 1\ns_lshl_b32 s46, s46, 5\ns_and_b32 s56, s65, 1" % V_G)
    A("v_cndmask_b32 v11, v8, v11, vcc\nv_cndmask_b32 v12, 0, 1.0, vcc\nv_mov_b32 v18, 0")
    A("s_mul_i32 s57, s56, %d\ns_add_u32 s57, s57, s46\nv_add3_u32 v17, v16, s57, v%d\ns_mul_i32 s56, s56, 896\ns_add_u32 s46, s46, s56" % (HSTR, V_MISC))
    A("s_mov_b32 s40, s22\ns_mov_b32 s41, s23\ns_mov_b32 s66, 0x000f000f\ns_mov_b32 s67, s66")
    if dlate == 2: A("s_waitcnt vmcnt(0)")
    A("s_barrier")
    A("ds_read_u16_d16_hi v18, v17 offset:%d" % L_H)
    A("s_cmp_lg_u32 s65, 0\ns_cbranch_scc1 L_noE")
    A("s_mov_b64 exec, 1\nv_mov_b32 v14, 0\nbuffer_store_dwordx4 v[%d:%d], v14, s[52:55], 0 offen offset:%d\ns_mov_b64 exec, -1" % (V_TAG, V_TAG + 3, WS_E))
    A("L_noE:")
    A("s_barrier\ns_barrier")
    if ack >= 3: A("s_sleep %d" % ack)
    A.gather2([[(8, 0), (9, 0)], [(13, 0), (11, 0)]] if fp1 else [[(8, 0)], [(9, 0)], [(13, 0)], [(11, 0)]], 24, 20, "s45", sleep=ps3, first=bool(fp1))
    A("v_pk_add_f32 v[24:25], v[24:25], v[28:29]\nv_pk_add_f32 v[26:27], v[26:27], v[30:31]")
    A("v_pk_fma_f32 v[32:33], v[36:37], v[12:13], v[32:33] op_sel_hi:[1,0,1]\nv_pk_fma_f32 v[34:35], v[38:39], v[12:13], v[34:35] op_sel_hi:[1,0,1]")
    A("v_pk_add_f32 v[24:25], v[24:25], v[32:33]\nv_pk_add_f32 v[26:27], v[26:27], v[34:35]")
    A.swapreduce(24)
    for r in (4, 8):
        A.nop(2)
        A("v_add_f32_dpp v24, v24, v24 row_ror:%d %s" % (r, DPP))
    A("s_waitcnt lgkmcnt(0)")
    A("v_cvt_pk_bf16_f32 v24, v24, v24\nv_lshlrev_b32 v24, 16, v24\nv_add_f32 v24, v18, v24\nv_cvt_pk_bf16_f32 v24, v24, v24")
    A("s_mov_b64 exec, s[66:67]")
    A("buffer_store_short v24, v16, s[40:43], s46 offen")
    if stamps:
        A.stamp(20)
        A("s_waitcnt vmcnt(0)")
        A.stamp(16)
        A.stamp_flush([20, 16])
    A("L_end:\ns_endpgm")
    A.L.append('.section .rodata,"a"\n.p2align 6\n.amdhsa_kernel %s_kernel' % NAME)
    A.L.append("  .amdhsa_next_free_vgpr 256\n  .amdhsa_next_free_sgpr 100\n  .amdhsa_accum_offset 256")
    A.L.append("  .amdhsa_group_segment_fixed_size 0\n  .amdhsa_kernarg_size 96\n  .amdhsa_user_sgpr_count 2\n  .amdhsa_user_sgpr_kernarg_segment_ptr 1\n  .amdhsa_system_sgpr_workgroup_id_x 1\n  .amdhsa_float_denorm_mode_32 3\n.end_amdhsa_kernel")
    return "\n".join(A.L) + "\n"

if __name__ == "__main__":
    out = sys.argv[1]
    kw = {}
    for a in sys.argv[2:]:
        k, v = a.split("="); kw[k] = int(v)
    open(out, "w").write(build(**kw))
```

```python
import sys, math, struct
NAME = "sequential_preLN__gqa_block_cached__geglu_ffn__decode"
HEADER = open("cdna_kernels/%s.s.ref" % NAME).read().split("; Override launch")[0]

NA = 12
NSL = 22
WS_E = 0
WS_Q = 0x1000
WS_ML = 0x9000
WS_AP = 0xA000
WS_OP = 0x20000
WS_FP = 0xA0000
WS_END = 0x800000
STAMP_OFF = 128 << 20
RING = 8
MISC = RING * 16384
L_Q = 0; L_P = 1024; PSTR = 1536; L_O = 4096; L_LSUM = 4608; L_MX = 4736; L_W = 4752
L_LAND = 4816; L_QF = 4820; L_C1 = 4824; L_C2 = 4828; L_WF = 4832; L_C3 = 4836
L_PROG = 4848
R_A = 0; R_B = 57344
L_LN = 0; L_H = 2048; L_ONES = 3072; L_ACT = 4096; L_SO = 4352; L_SW = 5376
LDS_TOTAL = MISC + 8192
TAGM = 0x3ff
SPIN = 1 << 17
V_G = 1; V_N = 2; V_MISC = 3; V_TAG = 4
DPP = "row_mask:0xf bank_mask:0xf"
C1 = 0.0625 * math.log2(math.e)

def f32(x): return "0x%08x" % struct.unpack("<I", struct.pack("<f", x))[0]

class Gen:
    def __init__(self, stamps):
        self.L = []; self.uid = 0; self.stamps = stamps
    def __call__(self, s):
        for line in s.split("\n"):
            line = line.strip()
            if line: self.L.append(("" if line.endswith(":") else "    ") + line)
    def lab(self, p="L"):
        self.uid += 1
        return "%s_%d" % (p, self.uid)
    def nop(self, n):
        while n > 0:
            k = min(n, 16); self("s_nop %d" % (k - 1)); n -= k
    def mask(self, m32, dst="s[56:57]"):
        self("s_mov_b32 s56, 0x%08x\ns_mov_b32 s57, s56" % m32)
        if dst == "exec": self("s_mov_b64 exec, s[56:57]")
    def stamp(self, idx):
        if not self.stamps: return
        self("s_memrealtime s[%d:%d]\ns_waitcnt lgkmcnt(0)" % (68 + 2 * (idx % 16), 69 + 2 * (idx % 16)))
    def stamp_flush(self, idxs):
        if not self.stamps: return
        if self.stamps == 2:
            DBGMAP = {0: 0, 1: 1, 4: 2, 5: 3, 6: 4, 7: 5, 8: 6, 10: 7, 11: 8, 12: 9, 13: 10, 14: 11, 19: 12, 15: 13, 16: 14, 17: 15}
            self("s_mov_b64 exec, 1\nv_mov_b32 v255, 0")
            for idx in idxs:
                if idx not in DBGMAP: continue
                if idx == 0: self("s_not_b32 s68, s68")
                self("v_mov_b32 v250, s%d" % (68 + 2 * (idx % 16)))
                self("global_atomic_umax v255, v250, s[24:25] offset:%d\ns_nop 1" % (DBGMAP[idx] * 4))
            self("s_mov_b64 exec, -1")
            return
        self("s_mov_b64 exec, 1\ns_mul_i32 s60, s2, 256\ns_add_u32 s60, s60, %d\nv_mov_b32 v255, s60" % STAMP_OFF)
        for idx in idxs:
            self("v_mov_b32 v250, s%d\nv_mov_b32 v251, s%d" % (68 + 2 * (idx % 16), 69 + 2 * (idx % 16)))
            self("global_store_dwordx2 v255, v[250:251], s[26:27] offset:%d\ns_nop 1" % (idx * 8))
        self("s_mov_b64 exec, -1")
    def lds_wait_ge(self, off, sreg, target, vt, cached=True, sleep=1):
        d = self.lab("Lw"); l = self.lab("Lw")
        if cached:
            self("s_cmp_ge_u32 s%d, %s\ns_cbranch_scc1 %s" % (sreg, target, d))
        self("%s:" % l)
        self("ds_read_b32 v%d, v%d offset:%d\ns_waitcnt lgkmcnt(0)" % (vt, V_MISC, off))
        self("v_readfirstlane_b32 s%d, v%d\ns_cmp_ge_u32 s%d, %s\ns_cbranch_scc1 %s" % (sreg, vt, sreg, target, d))
        if sleep: self("s_sleep %d" % sleep)
        self("s_sub_u32 s64, s64, 1\ns_cbranch_scc0 %s\ns_mov_b32 s64, 0" % l)
        self("%s:" % d)
    def lds_signal_add(self, off, vt):
        self("s_mov_b64 exec, 1\nv_mov_b32 v%d, 1\nds_add_u32 v%d, v%d offset:%d\ns_mov_b64 exec, -1" % (vt, V_MISC, vt, off))
    def gather(self, offs, vd, vt, soff, sleep=2):
        l = self.lab("Lg"); d = self.lab("Lg")
        self("s_mov_b32 s58, 0\n%s:" % l)
        for i, (va, oo) in enumerate(offs):
            self("buffer_load_dwordx4 v[%d:%d], v%d, s[52:55], %s offen offset:%d sc1" % (vd + 4 * i, vd + 4 * i + 3, va, soff, oo))
        for i in range(len(offs)):
            self("s_waitcnt vmcnt(%d)" % (len(offs) - 1 - i))
            for k in range(4):
                self("v_xor_b32 v%d, s%d, v%d" % (vd + 4 * i + k, 28 + k, vd + 4 * i + k))
            if i == 0:
                self("v_or3_b32 v%d, v%d, v%d, v%d\nv_or_b32 v%d, v%d, v%d" % (vt, vd, vd + 1, vd + 2, vt, vt, vd + 3))
            else:
                self("v_or3_b32 v%d, v%d, v%d, v%d" % (vt, vt, vd + 4 * i, vd + 4 * i + 1))
                self("v_or3_b32 v%d, v%d, v%d, v%d" % (vt, vt, vd + 4 * i + 2, vd + 4 * i + 3))
        self("v_and_b32 v%d, %d, v%d\nv_cmp_ne_u32 vcc, 0, v%d\ns_cbranch_vccz %s" % (vt, TAGM, vt, vt, d))
        if sleep: self("s_sleep %d" % sleep)
        self("s_add_u32 s58, s58, 1\ns_cmp_lt_u32 s58, %d\ns_cbranch_scc1 %s\n%s:" % (SPIN, l, d))
    def gather2(self, offs, vd, vt, soff, sleep=0, sentinel=None, MS=(4, 6, 8, 10)):
        n = len(offs)
        def load(i):
            va, oo = offs[i]
            self("buffer_load_dwordx4 v[%d:%d], v%d, s[52:55], %s offen offset:%d sc1" % (vd + 4 * i, vd + 4 * i + 3, va, soff, oo))
        def check(i, dst):
            r = vd + 4 * i
            for k in range(4):
                self("v_xor_b32 v%d, s%d, v%d" % (r + k, 28 + k, r + k))
            self("v_or3_b32 v%d, v%d, v%d, v%d\nv_bitop3_b32 v%d, v%d, v%d, s12 bitop3:0xa8" % (vt, r, r + 1, r + 2, vt, vt, r + 3))
            self("v_cmp_ne_u32 %s, 0, v%d" % (dst, vt))
        self("s_mov_b32 s58, 0")
        if sentinel is not None:
            l = self.lab("Ls"); d = self.lab("Ls")
            self.mask(sentinel, "exec")
            self("%s:" % l)
            load(0)
            self("s_waitcnt vmcnt(0)")
            check(0, "vcc")
            self("s_cmp_lg_u64 vcc, exec\ns_cbranch_scc1 %s\ns_sleep 6" % d)
            self("s_add_u32 s58, s58, 1\ns_cmp_lt_u32 s58, %d\ns_cbranch_scc1 %s\n%s:" % (SPIN, l, d))
        for i in range(n):
            self("s_mov_b64 s[%d:%d], -1" % (MS[i], MS[i] + 1))
        l = self.lab("Lg"); d = self.lab("Lg")
        self("%s:" % l)
        for i in range(n):
            k = self.lab("Lk")
            self("s_mov_b64 exec, s[%d:%d]\ns_cbranch_execz %s" % (MS[i], MS[i] + 1, k))
            load(i)
            self("%s:" % k)
        self("s_waitcnt vmcnt(0)")
        for i in range(n):
            k = self.lab("Lk")
            self("s_mov_b64 exec, s[%d:%d]\ns_cbranch_execz %s" % (MS[i], MS[i] + 1, k))
            check(i, "s[%d:%d]" % (MS[i], MS[i] + 1))
            self("%s:" % k)
        self("s_or_b64 s[14:15], s[%d:%d], s[%d:%d]" % (MS[0], MS[0] + 1, MS[1], MS[1] + 1))
        for i in range(2, n):
            self("s_or_b64 s[14:15], s[14:15], s[%d:%d]" % (MS[i], MS[i] + 1))
        self("s_cbranch_scc0 %s" % d)
        if sleep: self("s_sleep %d" % sleep)
        self("s_add_u32 s58, s58, 1\ns_cmp_lt_u32 s58, %d\ns_cbranch_scc1 %s\n%s:" % (SPIN, l, d))
        self("s_mov_b64 exec, -1")
    def tag4(self, vs, vd):
        for k in range(4):
            self("v_and_or_b32 v%d, v%d, s59, v%d" % (vd + k, vs + k, V_TAG + k))
    def swapreduce(self, v):
        self.nop(2)
        self("v_permlane16_swap_b32 v%d, v%d\nv_permlane16_swap_b32 v%d, v%d" % (v, v + 1, v + 2, v + 3))
        self("v_add_f32 v%d, v%d, v%d\nv_add_f32 v%d, v%d, v%d" % (v, v, v + 1, v + 2, v + 2, v + 3))
        self.nop(2)
        self("v_permlane32_swap_b32 v%d, v%d" % (v, v + 2))
        self("v_add_f32 v%d, v%d, v%d" % (v, v, v + 2))
    def ln_stats_list(self, vs, vq, vm, vr, t):
        return ["v_mul_f32 v%d, %s, v%d" % (vs, f32(1.0 / 448), vs), "v_mul_f32 v%d, %s, v%d" % (vq, f32(1.0 / 448), vq),
                "v_fma_f32 v%d, -v%d, v%d, v%d" % (vq, vs, vs, vq), "v_max_f32 v%d, 0, v%d" % (vq, vq),
                "v_cvt_pk_bf16_f32 v%d, v%d, v%d" % (t, vs, vq),
                "v_and_b32 v%d, 0xffff0000, v%d" % (vq, t), "v_lshlrev_b32 v%d, 16, v%d" % (vm, t),
                "v_add_f32 v%d, %s, v%d" % (vq, f32(1e-5), vq), "v_cvt_pk_bf16_f32 v%d, v%d, v%d" % (t, vq, vq),
                "v_lshlrev_b32 v%d, 16, v%d" % (vq, t), "v_sqrt_f32 v%d, v%d" % (vq, vq), "s_nop 0",
                "v_cvt_pk_bf16_f32 v%d, v%d, v%d" % (t, vq, vq), "v_lshlrev_b32 v%d, 16, v%d" % (vq, t),
                "v_rcp_f32 v%d, v%d" % (vr, vq), "s_nop 0"]
    def tags_setup(self):
        for k in range(4):
            self("s_add_u32 s%d, s%d, 1\ns_and_b32 s%d, s%d, %d\nv_mov_b32 v%d, s%d" % (28 + k, 28 + k, 28 + k, 28 + k, TAGM, V_TAG + k, 28 + k))

def build(stamps=0, win=48, qp=8, qslp=16, fast=1, ps1=1, ps2=0, ps3=0, astr=256, fstr=256, cpf=0, pw=0, pret=0, bar=0, diag=0, lin=0):
    global WS_AP, WS_FP
    if astr != 256: WS_AP = 0x100000
    if fstr != 256: WS_FP = 0x200000
    A = Gen(stamps)
    A.L.append(HEADER.rstrip())
    A.L.append("; @launch grid=(256,1,1) block=(512,1,1) lds=%d" % LDS_TOTAL)
    A.L.append('.amdgcn_target "amdgcn-amd-amdhsa--gfx950"')
    A.L.append(".text\n.globl %s_kernel\n.p2align 8\n.type %s_kernel,@function\n%s_kernel:" % (NAME, NAME, NAME))
    A("s_cmp_ge_u32 s2, 256\ns_cbranch_scc1 L_end")
    A("s_load_dwordx16 s[4:19], s[0:1], 0\ns_load_dwordx8 s[20:27], s[0:1], 64")
    if stamps: A("s_memrealtime s[68:69]")
    if diag: A("s_memrealtime s[90:91]")
    A("v_lshrrev_b32 v1, 6, v0\nv_and_b32 v0, 63, v0\nv_readfirstlane_b32 s3, v1")
    A("s_and_b32 s32, s2, 15\ns_lshr_b32 s33, s2, 4\ns_lshr_b32 s34, s32, 3\ns_and_b32 s35, s32, 7")
    A("v_mov_b32 v%d, %d\ns_mov_b32 s64, %d" % (V_MISC, MISC, 1 << 20))
    A("s_cmp_ge_u32 s33, %d\ns_cbranch_scc1 L_service" % NA)
    A("s_mul_i32 s65, s33, 43691\ns_add_u32 s66, s65, 43691\ns_lshr_b32 s65, s65, 6\ns_lshr_b32 s66, s66, 6")
    for a in range(NA + 1): assert (a * 43691) >> 6 == a * 8192 // NA
    A("s_cmp_lg_u32 s3, 1\ns_cbranch_scc1 L_notloader")
    A("s_setprio 3")
    A("v_lshrrev_b32 v1, 5, v0\nv_and_b32 v2, 31, v0\nv_xor_b32 v4, v2, v1\nv_lshlrev_b32 v4, 4, v4\nv_lshl_or_b32 v8, v1, 9, v4")
    for j in range(1, 8):
        A("v_xor_b32 v%d, %d, v8" % (8 + j, 32 * j))
    A("s_lshl_b32 s45, s32, 22\ns_lshl_b32 s44, s65, 9\ns_add_u32 s44, s44, s45\ns_lshl_b32 s38, s66, 9\ns_add_u32 s38, s38, s45")
    A("s_mov_b32 s45, s44\ns_mov_b32 s46, 0\ns_mov_b32 s47, 0\ns_mov_b32 s48, 0\ns_mov_b32 s50, 3\ns_mov_b32 m0, 0")
    A("s_mov_b32 s39, 0x20000")
    A("s_waitcnt lgkmcnt(0)")
    A.stamp(2)
    A("s_mov_b32 s36, s6\ns_mov_b32 s37, s7")
    W = win
    lag = W // 16 - 1
    def land(k):
        A("s_sub_i32 s56, s46, %d\ns_max_i32 s48, s48, s56\nv_mov_b32 v20, s48\nds_write_b32 v%d, v20 offset:%d" % (k, V_MISC, L_LAND))
    A("L_slot:")
    A("s_add_u32 s56, s47, %d\ns_cmp_lt_u32 s46, s56\ns_cbranch_scc0 L_waitfree" % RING)
    A("L_go:")
    A("s_waitcnt vmcnt(%d)" % (W - 8))
    for j in range(16):
        if j == 8:
            A("s_waitcnt vmcnt(%d)" % (W - 8))
            land(lag)
        A("buffer_load_dwordx4 v%d, s[36:39], s45 offen nt lds" % (8 + j % 8))
        A("s_add_u32 m0, m0, 1024\ns_add_u32 s45, s45, 1024")
    A("s_and_b32 m0, m0, %d" % (MISC - 1))
    A("s_add_u32 s46, s46, 1\ns_cmp_lg_u32 s46, s50\ns_cbranch_scc1 L_slot")
    A("s_cmp_lg_u32 s46, 3\ns_cbranch_scc1 L_evV")
    A.stamp(29)
    A("s_barrier")
    A.stamp(30)
    if stamps:
        A("s_waitcnt vmcnt(40)")
        A.stamp(31)
    A("s_mov_b32 s50, %d\ns_branch L_slot" % NSL)
    A("L_evV:\ns_cmp_lg_u32 s46, %d\ns_cbranch_scc1 L_ldone" % NSL)
    A.stamp(1)
    A("v_lshlrev_b32 v4, 1, v1\nv_xor_b32 v4, v2, v4\nv_lshlrev_b32 v4, 4, v4\nv_lshl_or_b32 v8, v1, 9, v4")
    for j in range(1, 8):
        A("v_xor_b32 v%d, %d, v8" % (8 + j, 64 * (j & 3)))
    A("s_mov_b32 s36, s8\ns_mov_b32 s37, s9\ns_mov_b32 s45, s44\ns_mov_b32 s50, %d\ns_branch L_slot" % (2 * NSL))
    A("L_ldone:")
    A.stamp(3)
    for k in range(lag, -1, -1):
        A("s_waitcnt vmcnt(%d)" % (16 * k))
        land(k)
    A.stamp(4)
    A.stamp_flush([0, 1, 2, 3, 4, 29, 30, 31])
    A("s_endpgm")
    A("L_waitfree:")
    def prog_check():
        A("ds_read_b128 v[20:23], v%d offset:%d\ns_waitcnt lgkmcnt(0)" % (V_MISC, L_PROG))
        A("v_min3_u32 v20, v20, v21, v22\nv_min_u32 v20, v20, v23\ns_nop 0\nv_readfirstlane_b32 s47, v20")
        A("s_add_u32 s56, s47, %d\ns_cmp_lt_u32 s46, s56\ns_cbranch_scc1 L_go" % RING)
    for k in range(lag, -1, -1):
        prog_check()
        A("s_waitcnt vmcnt(%d)" % (16 * k))
        land(k)
    A("L_wf2:")
    prog_check()
    A("s_sleep 1\ns_sub_u32 s64, s64, 1\ns_cbranch_scc0 L_wf2\ns_mov_b32 s64, 0\ns_branch L_go")

    def common_setup():
        A("v_lshrrev_b32 v%d, 4, v0\nv_and_b32 v%d, 15, v0" % (V_G, V_N))
        A("s_waitcnt lgkmcnt(0)")
        A("s_load_dwordx4 s[28:31], s[26:27], %d" % WS_E)
        A("s_mov_b32 s52, s26\ns_mov_b32 s53, s27\ns_mov_b32 s54, %d\ns_mov_b32 s55, 0x20000" % WS_END)
        A("s_mov_b32 s59, %d" % (0xffffffff & ~TAGM))
    A("L_notloader:")
    common_setup()
    A("s_cmp_lg_u32 s3, 3\ns_cbranch_scc1 L_noinit")
    A("v_mov_b32 v8, 0\nv_lshl_add_u32 v9, v0, 2, v%d" % V_MISC)
    A("s_mov_b64 exec, 0xff\nds_write_b32 v9, v8 offset:%d" % L_LAND)
    A("s_mov_b64 exec, 0xf\nds_write_b32 v9, v0 offset:%d" % L_PROG)
    A("s_mov_b64 exec, 0x3\nv_mov_b32 v10, 0xff800000\nds_write_b32 v9, v10 offset:%d" % L_MX)
    A("s_waitcnt lgkmcnt(0)\ns_barrier\ns_endpgm")
    A("L_noinit:")
    A("s_sub_u32 s61, s3, 4")
    A("s_waitcnt lgkmcnt(0)")
    A.tags_setup()
    A("s_mov_b32 s48, 0\ns_barrier")
    A("s_cmp_ge_u32 s3, 4\ns_cbranch_scc1 L_cons")
    A("s_cmp_eq_u32 s3, 2\ns_cbranch_scc1 L_end")
    A("s_lshl_b32 s45, s34, 14\ns_lshl_b32 s46, s35, 11\ns_add_u32 s45, s45, s46\ns_add_u32 s45, s45, %d" % WS_Q)
    A("v_lshlrev_b32 v16, 4, v0")
    A.lds_wait_ge(L_LAND, 48, str(qp), 17)
    A.stamp(7)
    A.gather([(16, 0), (16, 1024)], 20, 17, "s45", sleep=qslp)
    A("s_mov_b32 s56, 0x07060302")
    for i in range(4):
        A("v_perm_b32 v%d, v%d, v%d, s56" % (28 + i, 21 + 2 * i, 20 + 2 * i))
    A("v_lshl_add_u32 v16, v0, 3, v%d" % V_MISC)
    A("ds_write_b64 v16, v[28:29] offset:%d\nds_write_b64 v16, v[30:31] offset:%d" % (L_Q, L_Q + 512))
    A("s_getreg_b32 s56, hwreg(HW_REG_XCC_ID)\ns_and_b32 s56, s56, 15\nv_bfe_u32 v18, v20, 10, 4\nv_bfe_u32 v19, v24, 10, 4")
    A("v_cmp_ne_u32 vcc, s56, v18\nv_cmp_ne_u32 s[44:45], s56, v19\ns_nop 0\ns_or_b64 vcc, vcc, s[44:45]\ns_cselect_b32 s56, 1, %d" % (2 if fast else 1))
    A("v_mov_b32 v17, s56\nds_write_b32 v%d, v17 offset:%d" % (V_MISC, L_QF))
    A.stamp(8)
    A.lds_wait_ge(L_C2, 47, "4", 8, cached=False, sleep=4)
    A("v_and_b32 v9, 31, v0\nv_lshl_add_u32 v9, v9, 2, v%d" % V_MISC)
    A("ds_read_b32 v10, v9 offset:%d\nds_read_b64 v[12:13], v%d offset:%d\ns_waitcnt lgkmcnt(0)" % (L_LSUM, V_MISC, L_MX))
    for r in (1, 2, 4, 8):
        A("v_add_f32_dpp v10, v10, v10 row_ror:%d %s" % (r, DPP))
        A.nop(2)
    A("v_readlane_b32 s56, v10, 0\nv_readlane_b32 s57, v10, 16")
    A.nop(2)
    A("v_mov_b32 v14, s56\nv_mov_b32 v15, s57")
    A.tag4(12, 12)
    A("s_lshl_b32 s45, s32, 8\ns_add_u32 s45, s45, %d\ns_lshl_b32 s46, s33, 4\nv_mov_b32 v9, s46" % WS_ML)
    A("s_mov_b64 exec, 1\nbuffer_store_dwordx4 v[12:15], v9, s[52:55], s45 offen sc1\ns_mov_b64 exec, -1")
    A.stamp_flush([7, 8])
    A("s_endpgm")

    A("L_cons:")
    KA = 8; KT = 244; KD = [16, 80, 144, 16, 80, 144]; QB = 208; AC = 240; S0 = 248; S1 = 252
    A("v_xor_b32 v12, v%d, v%d\nv_lshlrev_b32 v12, 4, v12\nv_lshl_or_b32 v12, v%d, 9, v12" % (V_G, V_N, V_N))
    A("s_lshl_b32 s56, s61, 14\nv_add_u32 v%d, s56, v12" % KA)
    for k in range(1, 4):
        A("v_xor_b32 v%d, %d, v%d" % (KA + k, 64 * k, KA))
    A("s_add_u32 s46, s61, 1")
    A("s_lshl_b32 s62, s61, 2\nv_add_u32 v13, s62, v%d" % V_MISC)
    def kread(i):
        A.lds_wait_ge(L_LAND, 48, "s46", 12)
        for tt in range(2):
            for kk in range(8):
                r = KD[i] + 32 * tt + 4 * kk
                A("ds_read_b128 v[%d:%d], v%d offset:%d" % (r, r + 3, KA + (kk & 3), tt * 8192 + (kk >> 2) * 256))
        A("s_add_u32 s56, s46, 3\ns_min_u32 s56, s56, %d\nv_mov_b32 v12, s56\ns_add_u32 s46, s46, 4" % NSL)
        for k in range(4):
            A("v_xor_b32 v%d, 0x10000, v%d" % (KA + k, KA + k))
        A("s_waitcnt lgkmcnt(0)")
        A("ds_write_b32 v13, v12 offset:%d" % L_PROG)
    def kcomp(i):
        S = S0 if i < 4 else S1
        for kk in range(8):
            for tt in range(2):
                r = KD[i] + 32 * tt + 4 * kk
                A("v_mfma_f32_16x16x32_bf16 v[%d:%d], v[%d:%d], v[%d:%d], %s" % (AC + 4 * tt, AC + 4 * tt + 3, r, r + 3, QB + 4 * kk, QB + 4 * kk + 3, "0" if kk == 0 else "v[%d:%d]" % (AC + 4 * tt, AC + 4 * tt + 3)))
        A.mask(0x00030003 << (4 * (i & 3)))
        A.nop(5)
        for k in range(4):
            A("v_cndmask_b32 v%d, v%d, v%d, s[56:57]" % (S + k, S + k, AC + k))
        A("s_lshl_b64 s[56:57], s[56:57], 2")
        for k in range(4):
            A("v_cndmask_b32 v%d, v%d, v%d, s[56:57]" % (S + k, S + k, AC + 4 + k))
    for i in range(3):
        kread(i)
    A.lds_wait_ge(L_QF, 67, "1", 12, cached=False)
    A("v_and_b32 v12, 1, v%d\nv_lshlrev_b32 v12, 9, v12\nv_lshl_add_u32 v12, v%d, 4, v12\nv_add_u32 v12, v%d, v12" % (V_N, V_G, V_MISC))
    for kk in range(8):
        A("ds_read_b128 v[%d:%d], v12 offset:%d" % (QB + 4 * kk, QB + 4 * kk + 3, L_Q + kk * 64))
    A("s_waitcnt lgkmcnt(0)")
    for i in range(3):
        kcomp(i)
    kread(3); kcomp(3); kread(4); kcomp(4)
    A("s_cmp_gt_u32 s46, %d\ns_cbranch_scc1 L_kdone" % NSL)
    kread(5); kcomp(5)
    A("L_kdone:")
    A.stamp(9)
    A("v_lshrrev_b32 v16, 2, v%d\nv_lshlrev_b32 v16, 7, v16\nv_and_b32 v22, 2, v%d\nv_lshl_add_u32 v16, v22, 3, v16\nv_lshl_add_u32 v16, v%d, 2, v16" % (V_N, V_N, V_G))
    A("s_sub_u32 s44, s66, s65\ns_lshl_b32 s45, s61, 5\ns_sub_u32 s44, s44, s45\ns_sub_u32 s44, s44, 512\nv_mov_b32 v17, 0xff800000")
    for k in range(4):
        A("v_cmp_gt_u32 vcc, s44, v16\nv_add_u32 v16, 1, v16\ns_nop 0\nv_cndmask_b32 v%d, v17, v%d, vcc" % (S1 + k, S1 + k))
    for k in range(4):
        A("v_cvt_pk_bf16_f32 v%d, v%d, v%d" % (16 + k, S0 + 2 * k, S0 + 2 * k + 1))
    for k in range(4):
        A("v_lshlrev_b32 v%d, 16, v%d\nv_and_b32 v%d, 0xffff0000, v%d" % (S0 + 2 * k, 16 + k, S0 + 2 * k + 1, 16 + k))
    A("v_max3_f32 v16, v%d, v%d, v%d\nv_max3_f32 v16, v16, v%d, v%d\nv_max3_f32 v16, v16, v%d, v%d\nv_max_f32 v16, v16, v%d" % tuple(S0 + k for k in range(8)))
    for r in (2, 4, 8):
        A.nop(2)
        A("v_max_f32_dpp v16, v16, v16 row_ror:%d %s" % (r, DPP))
    A("v_and_b32 v17, 1, v%d\nv_lshl_add_u32 v18, v17, 2, v%d" % (V_N, V_MISC))
    A.mask(0x00030003, "exec")
    A("ds_max_f32 v18, v16 offset:%d" % L_MX)
    A.lds_signal_add(L_C1, 12)
    A.lds_wait_ge(L_C1, 47, "4", 12, cached=False)
    A("ds_read_b32 v16, v18 offset:%d\ns_waitcnt lgkmcnt(0)" % L_MX)
    for k in range(8):
        A("v_sub_f32 v%d, v%d, v16\nv_mul_f32 v%d, %s, v%d\nv_exp_f32 v%d, v%d" % (S0 + k, S0 + k, S0 + k, f32(C1), S0 + k, S0 + k, S0 + k))
    A("v_add_f32 v16, v%d, v%d" % (S0, S0 + 1))
    for k in range(2, 8):
        A("v_add_f32 v16, v16, v%d" % (S0 + k))
    for k in range(4):
        A("v_cvt_pk_bf16_f32 v%d, v%d, v%d" % (24 + k, S0 + 2 * k, S0 + 2 * k + 1))
    for r in (2, 4, 8):
        A("v_add_f32_dpp v16, v16, v16 row_ror:%d %s" % (r, DPP))
        A.nop(2)
    A("v_lshrrev_b32 v19, 2, v%d\nv_lshlrev_b32 v19, 8, v19\nv_mul_u32_u24 v14, %d, v17\nv_lshl_add_u32 v14, v%d, 4, v14\nv_add_u32 v14, v%d, v14" % (V_N, PSTR, V_G, V_MISC))
    A("v_lshl_add_u32 v19, v22, 2, v19\ns_lshl_b32 s62, s61, 6\nv_add3_u32 v19, v19, s62, v14")
    A("ds_write_b64 v19, v[24:25] offset:%d" % L_P)
    A("s_mov_b32 s44, 0x00ff00ff\ns_mov_b32 s45, s44\ns_mov_b64 exec, s[44:45]\nds_write_b64 v19, v[26:27] offset:%d\ns_mov_b64 exec, -1" % (L_P + 1024))
    A("v_lshlrev_b32 v19, 6, v17\nv_lshl_add_u32 v19, v%d, 2, v19\ns_lshl_b32 s62, s61, 4\nv_add3_u32 v19, v19, s62, v%d" % (V_G, V_MISC))
    A("s_mov_b64 exec, s[56:57]\nds_write_b32 v19, v16 offset:%d" % L_LSUM)
    A.lds_signal_add(L_C2, 12)
    VA = 8; VT = 16; VD = 24; PB = 40; OA = 96
    A("v_lshrrev_b32 v16, 2, v0\nv_and_b32 v18, 7, v16\ns_lshl_b32 s62, s61, 2\nv_xor_b32 v18, s62, v18\nv_lshlrev_b32 v18, 5, v18")
    A("v_lshl_or_b32 v18, v16, 9, v18\nv_and_b32 v16, 3, v0\nv_lshl_or_b32 v%d, v16, 3, v18" % VA)
    for tt in range(1, 4):
        A("v_xor_b32 v%d, %d, v%d" % (VA + tt, 32 * tt, VA))
    for k in range(16):
        A("v_mov_b32 v%d, 0" % (OA + k))
    A("v_and_b32 v17, 1, v%d\nv_lshlrev_b32 v112, 14, v17\nv_lshrrev_b32 v17, 1, v%d\nv_lshl_add_u32 v112, v17, 6, v112\nv_lshl_add_u32 v112, v%d, 4, v112" % (V_N, V_N, V_G))
    A("s_lshl_b32 s41, s32, 15\ns_lshl_b32 s56, s61, 8\ns_add_u32 s41, s41, s56\ns_add_u32 s41, s41, %d" % WS_OP)
    A("s_lshl_b32 s56, s33, 10\ns_add_u32 s40, s41, s56")
    A.lds_wait_ge(L_C2, 47, "4", 12, cached=False)
    A.stamp(10)
    A("s_mov_b32 s46, %d\ns_mov_b32 s44, %d" % (NSL + 1, (NSL % RING) * 16384))
    A("L_vloop:")
    A("ds_read_b128 v[%d:%d], v14 offset:%d" % (PB, PB + 3, L_P))
    for tt in range(4):
        A("v_add_u32 v%d, s44, v%d" % (VT + tt, VA + tt))
    A.lds_wait_ge(L_LAND, 48, "s46", 12, sleep=0)
    for tt in range(4):
        A("ds_read_b64_tr_b16 v[%d:%d], v%d" % (VD + 4 * tt, VD + 4 * tt + 1, VT + tt))
        A("ds_read_b64_tr_b16 v[%d:%d], v%d offset:8192" % (VD + 4 * tt + 2, VD + 4 * tt + 3, VT + tt))
    A("v_mov_b32 v12, s46\nv_add_u32 v14, 64, v14\ns_add_u32 s44, s44, 16384\ns_and_b32 s44, s44, %d" % (MISC - 1))
    for tt in range(4):
        A("s_waitcnt lgkmcnt(%d)" % (6 - 2 * tt))
        A("v_mfma_f32_16x16x32_bf16 v[%d:%d], v[%d:%d], v[%d:%d], v[%d:%d]" % (OA + 4 * tt, OA + 4 * tt + 3, VD + 4 * tt, VD + 4 * tt + 3, PB, PB + 3, OA + 4 * tt, OA + 4 * tt + 3))
    A("ds_write_b32 v13, v12 offset:%d" % L_PROG)
    A("s_add_u32 s46, s46, 1\ns_cmp_le_u32 s46, %d\ns_cbranch_scc1 L_vloop" % (2 * NSL))
    for tt in range(1, 4):
        A.mask(0x00030003 << (2 * tt))
        for k in range(4):
            A("v_cndmask_b32 v%d, v%d, v%d, s[56:57]" % (OA + k, OA + k, OA + 4 * tt + k))
    A.tag4(OA, OA)
    A.mask(0x00ff00ff, "exec")
    A("s_cmp_eq_u32 s67, 2\ns_cbranch_scc1 L_fastpub")
    A("buffer_store_dwordx4 v[%d:%d], v112, s[52:55], s40 offen sc1" % (OA, OA + 3))
    A("s_branch L_pubdone\nL_fastpub:")
    A("buffer_store_dwordx4 v[%d:%d], v112, s[52:55], s40 offen" % (OA, OA + 3))
    A("L_pubdone:")
    if stamps:
        A.stamp(11)
        A("s_cmp_lg_u32 s3, 4\ns_cbranch_scc1 L_end")
        A.stamp_flush([9, 10, 11])
    A("s_endpgm")

    A("L_service:")
    common_setup()
    A("s_sub_u32 s33, s2, %d\ns_lshr_b32 s33, s33, 3\ns_and_b32 s34, s33, 1" % (16 * NA))
    A("s_lshl_b32 s65, s35, 2\ns_lshr_b32 s56, s33, 1\ns_add_u32 s65, s65, s56")
    A("s_mov_b32 s40, s4\ns_mov_b32 s41, s5\ns_mov_b32 s42, 1792\ns_mov_b32 s43, 0x20000")
    A("s_cmp_lg_u32 s3, 0\ns_cbranch_scc1 L_s1")
    A("v_lshrrev_b32 v8, 5, v0\nv_and_b32 v9, 31, v0\nv_mul_u32_u24 v10, 896, v8\nv_lshl_add_u32 v10, v9, 4, v10")
    A("v_cmp_gt_u32 vcc, 28, v9\nv_mov_b32 v11, 0x1000\ns_nop 0\nv_cndmask_b32 v11, v11, v10, vcc")
    A("buffer_load_dwordx4 v[16:19], v11, s[40:43], 0 offen\nbuffer_load_dwordx4 v[20:23], v11, s[40:43], 0 offen offset:448")
    A("L_s1:")
    def dma7(vaddr, gstep, lds):
        A("s_mul_i32 s56, s3, 7168\ns_add_u32 m0, s56, %d" % lds)
        for j in range(7):
            if j: A("s_add_u32 m0, m0, 1024\ns_add_u32 s45, s45, %d" % gstep)
            else: A("s_nop 0")
            A("buffer_load_dwordx4 v%d, s[36:39], s45 offen nt lds" % vaddr)
    A("v_lshrrev_b32 v12, 3, v0\nv_and_b32 v13, 7, v0\nv_lshlrev_b32 v13, 4, v13\nv_lshl_add_u32 v14, v12, 13, v13\nv_mul_u32_u24 v12, 3584, v12\nv_add_u32 v15, v12, v13")
    A("s_mov_b32 s36, s10\ns_mov_b32 s37, s11\ns_mov_b32 s38, %d\ns_mov_b32 s39, 0x20000" % (448 * 8192))
    A("s_lshl_b32 s44, s35, 3\ns_add_u32 s44, s44, s33\ns_lshl_b32 s45, s44, 7\ns_mul_i32 s56, s3, %d\ns_add_u32 s45, s45, s56" % (56 * 8192))
    if lin & 1:
        A("v_lshlrev_b32 v14, 4, v0\ns_mul_i32 s45, s44, 57344\ns_mul_i32 s56, s3, 7168\ns_add_u32 s45, s45, s56")
    dma7(14, 1024 if lin & 1 else 8 * 8192, R_A)
    if lin & 2: A("v_lshlrev_b32 v15, 4, v0")
    A("s_lshl_b32 s56, s3, 7\ns_mul_i32 s57, s34, 896\ns_add_u32 s56, s56, s57")
    A("v_lshlrev_b32 v252, 3, v%d\nv_lshl_add_u32 v252, v%d, 1, v252\nv_mov_b32 v253, 0" % (V_N, V_G))
    A("buffer_load_short_d16_hi v253, v252, s[40:43], s56 offen")
    A("s_waitcnt lgkmcnt(0)")
    A.tags_setup()
    A("s_cmp_lg_u32 s3, 1\ns_cbranch_scc1 L_s2")
    A("v_lshl_add_u32 v9, v0, 4, v%d\nv_mov_b32 v24, 0x3f803f80\nv_mov_b32 v25, v24\nv_mov_b32 v26, v24\nv_mov_b32 v27, v24" % V_MISC)
    A("ds_write_b128 v9, v[24:27] offset:%d" % L_ONES)
    A("v_mov_b32 v28, 0\nv_mov_b32 v29, 0\nv_mov_b32 v30, 0\nv_mov_b32 v31, 0\nds_write_b128 v9, v[28:31] offset:%d" % L_H)
    A("L_s2:")
    A("s_cmp_lg_u32 s3, 0\ns_cbranch_scc1 L_s3")
    A("s_waitcnt vmcnt(8)")
    A.stamp(5)
    X = 24
    for i in range(8):
        A("v_lshlrev_b32 v%d, 16, v%d\nv_and_b32 v%d, 0xffff0000, v%d" % (X + 2 * i, 16 + i, X + 2 * i + 1, 16 + i))
    A("v_add_f32 v40, v%d, v%d\nv_mul_f32 v41, v%d, v%d\nv_fmac_f32 v41, v%d, v%d" % (X, X + 1, X, X, X + 1, X + 1))
    for i in range(2, 16):
        A("v_add_f32 v40, v40, v%d\nv_fmac_f32 v41, v%d, v%d" % (X + i, X + i, X + i))
    for r in (1, 2, 4, 8):
        A.nop(1)
        A("v_add_f32_dpp v40, v40, v40 row_ror:%d %s\nv_add_f32_dpp v41, v41, v41 row_ror:%d %s" % (r, DPP, r, DPP))
    A("v_mov_b32 v42, v40\nv_mov_b32 v43, v41")
    A.nop(2)
    A("v_permlane16_swap_b32 v40, v42\nv_permlane16_swap_b32 v41, v43")
    A("v_add_f32 v40, v40, v42\nv_add_f32 v41, v41, v43")
    A("\n".join(A.ln_stats_list(40, 41, 42, 43, 44)))
    for i in range(8):
        a, b = X + 2 * i, X + 2 * i + 1
        A("v_sub_f32 v%d, v%d, v42\nv_sub_f32 v%d, v%d, v42\nv_cvt_pk_bf16_f32 v44, v%d, v%d" % (a, a, b, b, a, b))
        A("v_lshlrev_b32 v%d, 16, v44\nv_and_b32 v%d, 0xffff0000, v44" % (a, b))
        A("v_mul_f32 v%d, v%d, v43\nv_mul_f32 v%d, v%d, v43\nv_cvt_pk_bf16_f32 v%d, v%d, v%d" % (a, a, b, b, 16 + i, a, b))
    A("v_add_u32 v10, v%d, v10" % V_MISC)
    A.mask(0x0fffffff, "exec")
    A("ds_write_b128 v10, v[16:19] offset:%d\nds_write_b128 v10, v[20:23] offset:%d" % (L_LN, L_LN + 448))
    A("s_mov_b64 exec, -1")
    A("L_s3:")
    A("v_lshrrev_b32 v9, 2, v%d\nv_lshl_add_u32 v9, v%d, 3, v9\nv_lshlrev_b32 v11, 7, v9\nv_and_b32 v10, 3, v0" % (V_N, V_G))
    A("s_waitcnt vmcnt(1) lgkmcnt(0)\ns_barrier")
    A.stamp(6)
    A("s_cmp_ge_u32 s3, 4\ns_cbranch_scc1 L_s4")
    BQ = 16; AQ = 72
    A("v_and_b32 v8, 1, v%d\nv_mul_u32_u24 v8, 896, v8\nv_lshl_add_u32 v8, v%d, 4, v8\nv_add_u32 v8, v%d, v8" % (V_N, V_G, V_MISC))
    A("v_lshl_add_u32 v12, v10, 3, v11\ns_lshl_b32 s56, s3, 5\nv_add_u32 v12, s56, v12")
    for kk in range(14):
        A("ds_read_b128 v[%d:%d], v8 offset:%d" % (BQ + 4 * kk, BQ + 4 * kk + 3, L_LN + kk * 64))
        A("ds_read_b64_tr_b16 v[%d:%d], v12 offset:%d" % (AQ + 4 * kk, AQ + 4 * kk + 1, R_A + kk * 4096))
        A("ds_read_b64_tr_b16 v[%d:%d], v12 offset:%d" % (AQ + 4 * kk + 2, AQ + 4 * kk + 3, R_A + kk * 4096 + 512))
    A("s_waitcnt lgkmcnt(0)")
    for kk in range(14):
        A("v_mfma_f32_16x16x32_bf16 v[128:131], v[%d:%d], v[%d:%d], %s" % (AQ + 4 * kk, AQ + 4 * kk + 3, BQ + 4 * kk, BQ + 4 * kk + 3, "0" if kk == 0 else "v[128:131]"))
    A("v_and_b32 v16, 1, v%d\nv_lshlrev_b32 v16, 14, v16\nv_lshl_add_u32 v16, v%d, 4, v16" % (V_N, V_G))
    A("s_lshl_b32 s45, s44, 8\ns_lshl_b32 s56, s3, 6\ns_add_u32 s45, s45, s56\ns_add_u32 s45, s45, %d" % WS_Q)
    A("s_getreg_b32 s46, hwreg(HW_REG_XCC_ID)\ns_and_b32 s46, s46, 15\ns_lshl_b32 s46, s46, 10")
    A("v_cvt_pk_bf16_f32 v12, v128, v129\nv_cvt_pk_bf16_f32 v13, v130, v131")
    A("v_lshl_or_b32 v128, v12, 16, v%d\nv_and_b32 v129, 0xffff0000, v12\nv_or_b32 v129, v129, v%d" % (V_TAG, V_TAG + 1))
    A("v_lshl_or_b32 v130, v13, 16, v%d\nv_and_b32 v131, 0xffff0000, v13\nv_or_b32 v131, v131, v%d" % (V_TAG + 2, V_TAG + 3))
    A("v_or_b32 v128, s46, v128")
    A.mask(0x00030003, "exec")
    A("buffer_store_dwordx4 v[128:131], v16, s[52:55], s45 offen sc1")
    A("s_mov_b64 exec, -1")
    A.stamp(7)
    A("L_s4:")
    A("s_cmp_lt_u32 s35, 7\ns_cselect_b32 s38, %d, 0\ns_mov_b32 s36, s16\ns_mov_b32 s37, s17" % (448 * 3584))
    A("s_lshl_b32 s66, s65, 7\ns_mul_i32 s56, s3, %d\ns_add_u32 s66, s66, s56\ns_mov_b32 s45, s66" % (56 * 3584))
    if lin & 2: A("s_mul_i32 s66, s65, 57344\ns_mul_i32 s56, s3, 7168\ns_add_u32 s66, s66, s56\ns_mov_b32 s45, s66")
    dma7(15, 1024 if lin & 2 else 8 * 3584, R_B)
    A("s_barrier")
    A("s_mov_b32 s36, s18\ns_mov_b32 s37, s19\ns_mov_b32 s45, s66")
    dma7(15, 1024 if lin & 2 else 8 * 3584, R_A)
    A("v_and_b32 v12, 1, v0\nv_lshl_add_u32 v12, v12, 3, v11\ns_lshl_b32 s56, s3, 5\nv_add_u32 v12, s56, v12\nv_add_u32 v13, %d, v12" % R_B)
    A("v_cmp_gt_u32 vcc, 2, v10")
    A.nop(2)
    A("v_cndmask_b32 v12, v12, v13, vcc")
    A("s_waitcnt vmcnt(0)\ns_barrier")
    GA = 136
    A("s_cmp_ge_u32 s3, 4\ns_cbranch_scc1 L_s5")
    for T in range(2):
        for kk in range(14):
            r = GA + 56 * T + 4 * kk
            A("ds_read_b64_tr_b16 v[%d:%d], v12 offset:%d" % (r, r + 1, kk * 4096 + 16 * T))
            A("ds_read_b64_tr_b16 v[%d:%d], v12 offset:%d" % (r + 2, r + 3, kk * 4096 + 512 + 16 * T))
    A("L_s5:")
    if cpf:
        A("s_getpc_b64 s[56:57]\nL_pc:\nv_lshlrev_b32 v14, 4, v0\ns_lshl_b32 s46, s3, 10\nv_add_u32 v14, s46, v14\nv_min_u32 v14, L_end-L_pc-12, v14")
        A("global_load_dwordx4 v[28:31], v14, s[56:57]")
    A("s_waitcnt lgkmcnt(0)\ns_barrier")
    A("s_lshr_b32 s67, s33, 2\ns_lshl_b32 s63, s35, 1\ns_add_u32 s63, s63, s67\ns_and_b32 s61, s33, 3")
    A("s_mov_b32 s36, s12\ns_mov_b32 s37, s13\ns_mov_b32 s38, %d" % (4096 * 896))
    A("s_mul_i32 s45, s63, %d\ns_mul_i32 s56, s3, %d\ns_add_u32 s45, s45, s56\ns_mul_i32 s56, s61, 224\ns_add_u32 s45, s45, s56" % (256 * 896, 32 * 896))
    if lin & 2: A("s_mul_i32 s45, s44, 57344\ns_mul_i32 s56, s3, 7168\ns_add_u32 s45, s45, s56")
    A("s_mul_i32 s56, s3, 7168\ns_add_u32 m0, s56, %d" % R_B)
    for j in range(7):
        for l in range(64): assert ((64 * j + l) * 2341) >> 15 == (64 * j + l) // 14
        A("v_add_u32 v14, %d, v0\nv_mul_u32_u24 v13, 2341, v14\nv_lshrrev_b32 v13, 15, v13\nv_mul_u32_u24 v13, %d, v13\nv_lshl_add_u32 v14, v14, 4, v13" % (64 * j, 0 if lin & 2 else 896 - 224))
        A("buffer_load_dwordx4 v14, s[36:39], s45 offen nt lds\ns_add_u32 m0, m0, 1024")
    A("s_cmp_lt_u32 s35, 7\ns_cselect_b32 s38, %d, 0\ns_mov_b32 s36, s20\ns_mov_b32 s37, s21" % (1792 * 896))
    A("s_mul_i32 s45, s65, 57344\ns_mul_i32 s56, s3, 7168\ns_add_u32 s45, s45, s56\nv_lshlrev_b32 v14, 4, v0")
    dma7(14, 1024, R_A)
    A("v_mul_u32_u24 v12, 896, v9\nv_lshl_add_u32 v12, v10, 5, v12\ns_lshl_b32 s56, s3, 7\nv_add_u32 v12, s56, v12")
    A("v_mul_u32_u24 v13, 224, v9\nv_lshl_add_u32 v13, v10, 3, v13\ns_lshl_b32 s56, s3, 5\ns_add_u32 s56, s56, %d\nv_add_u32 v13, s56, v13" % R_B)
    A("s_waitcnt vmcnt(0)\ns_barrier")
    DA = 104; WA = 40
    A("s_cmp_eq_u32 s3, 7\ns_cbranch_scc1 L_s6")
    for t in range(4):
        for kk in range(2):
            r = DA + 8 * t + 4 * kk
            A("ds_read_b64_tr_b16 v[%d:%d], v12 offset:%d" % (r, r + 1, t * 8 + kk * 32 * 896))
            A("ds_read_b64_tr_b16 v[%d:%d], v12 offset:%d" % (r + 2, r + 3, t * 8 + kk * 32 * 896 + 4 * 896))
    for kk in range(8):
        A("ds_read_b64_tr_b16 v[%d:%d], v13 offset:%d" % (WA + 4 * kk, WA + 4 * kk + 1, kk * 32 * 224))
        A("ds_read_b64_tr_b16 v[%d:%d], v13 offset:%d" % (WA + 4 * kk + 2, WA + 4 * kk + 3, kk * 32 * 224 + 4 * 224))
    A("s_branch L_s7")
    A("L_s6:")
    A("s_lshl_b32 s45, s35, 8\ns_add_u32 s45, s45, %d" % WS_ML)
    A("v_min_u32 v9, %d, v%d\nv_lshlrev_b32 v9, 4, v9\nv_and_b32 v11, 1, v%d\nv_lshl_add_u32 v9, v11, 11, v9" % (NA - 1, V_N, V_G))
    A.gather([(9, 0)], 16, 10, "s45", sleep=16)
    A("s_cmp_eq_u32 s67, 1\ns_cselect_b64 vcc, -1, 0")
    A.nop(2)
    A("v_cndmask_b32 v16, v16, v17, vcc\nv_cndmask_b32 v18, v18, v19, vcc\nv_cmp_gt_u32 vcc, %d, v%d\nv_mov_b32 v20, v16" % (NA, V_N))
    A.nop(1)
    A("v_cndmask_b32 v18, 0, v18, vcc")
    for r in (1, 2, 4, 8):
        A("v_max_f32_dpp v20, v20, v20 row_ror:%d %s" % (r, DPP))
        A.nop(2)
    A("v_sub_f32 v16, v16, v20\nv_mul_f32 v16, %s, v16\nv_exp_f32 v16, v16\ns_nop 0\nv_mul_f32 v18, v16, v18" % f32(C1))
    for r in (1, 2, 4, 8):
        A.nop(2)
        A("v_add_f32_dpp v18, v18, v18 row_ror:%d %s" % (r, DPP))
    A("v_rcp_f32 v18, v18\ns_nop 0\nv_mul_f32 v16, v16, v18")
    A("v_mul_u32_u24 v9, 43, v%d\nv_lshrrev_b32 v9, 7, v9\nv_add_u32 v9, v9, v%d\nv_lshl_add_u32 v9, v11, 4, v9\nv_lshl_add_u32 v9, v9, 2, v%d" % (V_N, V_N, V_MISC))
    A("s_mov_b64 exec, 0x%x\nds_write_b32 v9, v16 offset:%d\ns_mov_b64 exec, -1" % (((1 << NA) - 1) * 0x10001, L_SW))
    A("L_s7:")
    A("s_lshr_b32 s56, s3, 2\ns_lshl_b32 s47, s56, 3\ns_add_u32 s47, s47, s35\ns_lshl_b32 s47, s47, 15\ns_lshl_b32 s57, s67, 14\ns_add_u32 s47, s47, s57")
    A("s_and_b32 s57, s3, 3\ns_lshl_b32 s57, s57, 8\ns_add_u32 s47, s47, s57\ns_add_u32 s47, s47, %d" % WS_OP)
    A("v_mul_u32_u24 v8, 3072, v%d\nv_lshl_add_u32 v8, v%d, 4, v8" % (V_G, V_N))
    A("s_lshl_b32 s56, s56, 6\nv_lshlrev_b32 v21, 4, v%d\nv_add_u32 v22, v21, v%d\nv_add_u32 v9, s56, v22" % (V_G, V_MISC))
    A("s_lshl_b32 s56, s3, 7\nv_add3_u32 v13, v252, s56, v%d" % V_MISC)
    A("v_and_b32 v10, 1, v%d\nv_lshl_add_u32 v11, v10, 9, v22" % V_N)
    A("s_mul_i32 s56, s61, 7\ns_add_u32 s56, s56, s3\ns_mul_i32 s48, s63, 28\ns_add_u32 s48, s48, s56\ns_lshl_b32 s48, s48, 7\ns_add_u32 s48, s48, %d" % WS_AP)
    A("v_lshl_add_u32 v12, v10, 6, v21")
    A("s_lshl_b32 s45, s34, 6\ns_lshl_b32 s56, s3, 9\ns_add_u32 s45, s45, s56\ns_add_u32 s45, s45, %d" % WS_AP)
    A("v_mul_u32_u24 v16, 14336, v%d\nv_and_b32 v17, 12, v%d\nv_lshl_add_u32 v16, v17, 5, v16\nv_and_b32 v17, 3, v%d\nv_lshl_add_u32 v16, v17, 4, v16\nv_add_u32 v17, 7168, v16" % (V_G, V_N, V_N))
    A("v_cmp_eq_u32 vcc, 1, v10\nv_mov_b32 v15, %d\nv_add_u32 v15, v15, v%d\nv_cndmask_b32 v14, v22, v15, vcc" % (L_ONES - L_H, V_MISC))
    A("v_lshl_add_u32 v15, v0, 4, v%d" % V_MISC)
    A("v_and_b32 v18, 8, v%d\nv_lshlrev_b32 v18, 1, v18\nv_and_b32 v19, 6, v%d\nv_add_u32 v18, v18, v19\nv_lshl_add_u32 v18, v%d, 3, v18\ns_lshl_b32 s56, s3, 5\nv_add3_u32 v18, v18, s56, v%d" % (V_N, V_N, V_G, V_MISC))
    A("s_mul_i32 s62, s34, 28\ns_add_u32 s62, s62, s65\ns_mul_i32 s62, s62, 7\ns_add_u32 s62, s62, s3\ns_mul_i32 s62, s62, %d\ns_add_u32 s62, s62, %d" % (fstr, WS_FP))
    A("v_lshlrev_b32 v19, 6, v%d\nv_lshl_add_u32 v19, v%d, 4, v19" % (V_G, V_N))
    A("s_mov_b32 s36, 0xcccccccc\ns_mov_b32 s37, s36\ns_mov_b32 s38, 0xf0f0f0f0\ns_mov_b32 s39, s38\ns_mov_b32 s50, 0xff00ff00\ns_mov_b32 s51, s50\ns_mov_b32 s44, 0x3f803f80\ns_mov_b32 s12, %d" % TAGM)
    A("s_waitcnt lgkmcnt(0)\ns_barrier")
    A("ds_read_b128 v[36:39], v9 offset:%d" % L_SW)
    if pret:
        for va in (16, 17):
            A("buffer_load_dwordx4 v[24:27], v%d, s[52:55], s45 offen sc1\nbuffer_load_dwordx4 v[24:27], v%d, s[52:55], s45 offen offset:3584 sc1" % (va, va))
    A.stamp(17)
    A.gather2([(8, 0), (8, 1024), (8, 2048)], 24, 20, "s47", sleep=ps1, sentinel=0x00010001)
    A.stamp(12)
    A("s_waitcnt lgkmcnt(0)")
    for k in range(4):
        A("v_mul_f32 v%d, v36, v%d" % (24 + k, 24 + k))
    for i in range(1, 3):
        for k in range(4):
            A("v_fmac_f32 v%d, v%d, v%d" % (24 + k, 36 + i, 24 + 4 * i + k))
    A.swapreduce(24)
    A("v_cvt_pk_bf16_f32 v24, v24, v24\nds_write_b16 v13, v24 offset:%d" % L_SO)
    A("s_waitcnt lgkmcnt(0)\ns_barrier")
    A("s_cmp_eq_u32 s3, 7\ns_cbranch_scc1 L_s8")
    for kk in range(8):
        A("ds_read_b128 v[%d:%d], v11 offset:%d" % (72 + 4 * kk, 75 + 4 * kk, L_SO + kk * 64))
    for kk in range(8):
        A("s_waitcnt lgkmcnt(%d)" % (7 - kk))
        A("v_mfma_f32_16x16x32_bf16 v[24:27], v[%d:%d], v[%d:%d], %s" % (WA + 4 * kk, WA + 4 * kk + 3, 72 + 4 * kk, 75 + 4 * kk, "0" if kk == 0 else "v[24:27]"))
    A.mask(0x00030003)
    A.nop(6)
    A.tag4(24, 24)
    A("s_mov_b64 exec, s[56:57]")
    A("buffer_store_dwordx4 v[24:27], v12, s[52:55], s48 offen sc1")
    A("s_mov_b64 exec, -1")
    A.stamp(13)
    A("s_cmp_lt_u32 s35, 7\ns_cbranch_scc1 L_s9")
    if stamps:
        A("s_cmp_lg_u32 s3, 0\ns_cbranch_scc1 L_end")
        A.stamp_flush([0, 5, 6, 7, 17, 12, 13])
    A("s_cmp_lg_u32 s2, 255\ns_cbranch_scc1 L_end\ns_cmp_lg_u32 s3, 0\ns_cbranch_scc1 L_end")
    A("v_and_b32 v8, 1, v0\nv_mul_u32_u24 v8, %d, v8\ns_mov_b32 s45, %d" % (196 * fstr, WS_FP))
    A.gather([(8, 0)], 28, 10, "s45", sleep=8)
    A("s_mov_b64 exec, 1\nv_mov_b32 v8, 0\nbuffer_store_dwordx4 v[%d:%d], v8, s[52:55], 0 offen offset:%d" % (V_TAG, V_TAG + 3, WS_E))
    if diag:
        A("L_diag:\ns_memrealtime s[92:93]\ns_waitcnt lgkmcnt(0)\ns_sub_u32 s92, s92, s90\ns_cmp_lt_u32 s92, %d\ns_cbranch_scc1 L_diag" % diag)
    A("s_endpgm")
    A("L_s9:")
    if bar & 1: A("s_barrier")
    if bar & 4: A("s_waitcnt vmcnt(0)")
    A.gather2([(16, 0), (16, 3584), (17, 0), (17, 3584)], 28, 20, "s45", sleep=ps2)
    A.stamp(14)
    for k in range(4):
        A("v_add_f32 v%d, v%d, v%d\nv_add_f32 v%d, v%d, v%d" % (28 + k, 28 + k, 32 + k, 36 + k, 36 + k, 40 + k))
    for k in range(4):
        A("v_add_f32 v%d, v%d, v%d" % (28 + k, 28 + k, 36 + k))
    A.swapreduce(28)
    A("v_cvt_pk_bf16_f32 v28, v28, v28\nv_lshlrev_b32 v28, 16, v28\nv_add_f32 v28, v253, v28\nv_cvt_pk_bf16_f32 v28, v28, v28")
    A("ds_write_b16 v13, v28 offset:%d" % L_H)
    A("s_waitcnt lgkmcnt(0)\ns_barrier")
    A.stamp(18)
    A("s_cmp_ge_u32 s3, 4\ns_cbranch_scc1 L_s10")
    HB = 44
    A("ds_read_b128 v[32:35], v15 offset:%d" % L_H)
    for kk in range(14):
        A("ds_read_b128 v[%d:%d], v14 offset:%d" % (HB + 4 * kk, HB + 4 * kk + 3, L_H + kk * 64))
    side = ["v_dot2_f32_bf16 v36, v32, s44, 0", "v_dot2_f32_bf16 v37, v32, v32, 0"]
    for k in range(1, 4):
        side += ["v_dot2_f32_bf16 v36, v%d, s44, v36" % (32 + k), "v_dot2_f32_bf16 v37, v%d, v%d, v37" % (32 + k, 32 + k)]
    side += ["s_nop 2"]
    for r in (1, 2, 4, 8):
        side += ["v_add_f32_dpp v36, v36, v36 row_ror:%d %s" % (r, DPP), "v_add_f32_dpp v37, v37, v37 row_ror:%d %s" % (r, DPP), "s_nop 0"]
    side += ["v_mov_b32 v38, v36", "v_mov_b32 v39, v37", "s_nop 1", "v_permlane16_swap_b32 v36, v38", "v_permlane16_swap_b32 v37, v39",
             "v_add_f32 v36, v36, v38", "v_add_f32 v37, v37, v39", "v_mov_b32 v38, v36", "v_mov_b32 v39, v37", "s_nop 1",
             "v_permlane32_swap_b32 v36, v38", "v_permlane32_swap_b32 v37, v39", "v_add_f32 v36, v36, v38", "v_add_f32 v37, v37, v39"]
    side += A.ln_stats_list(36, 37, 38, 39, 40) + ["v_sub_f32 v38, 0, v38"]
    ga = 2 * math.sqrt(2 / math.pi) * math.log2(math.e); gb = ga * 0.044715
    side += ["v_mov_b32 v41, %s" % f32(-ga), "s_mov_b32 s56, %s" % f32(-gb)]
    per = -(-len(side) // 27)
    n = 0
    for kk in range(14):
        A("s_waitcnt lgkmcnt(%d)" % (13 - kk))
        for T in range(2):
            r = GA + 56 * T + 4 * kk
            A("v_mfma_f32_16x16x32_bf16 v[%d:%d], v[%d:%d], v[%d:%d], %s" % (24 + 4 * T, 27 + 4 * T, r, r + 3, HB + 4 * kk, HB + 4 * kk + 3, "0" if kk == 0 else "v[%d:%d]" % (24 + 4 * T, 27 + 4 * T)))
            A("\n".join(side[n * per:(n + 1) * per])); n += 1
    assert 27 * per >= len(side)
    A.nop(7)
    A("v_cndmask_b32 v24, v24, v25, s[36:37]\nv_cndmask_b32 v26, v26, v27, s[36:37]\nv_cndmask_b32 v28, v28, v29, s[36:37]\nv_cndmask_b32 v30, v30, v31, s[36:37]")
    A("v_cndmask_b32 v24, v24, v26, s[38:39]\nv_cndmask_b32 v28, v28, v30, s[38:39]\nv_cndmask_b32 v24, v24, v28, s[50:51]")
    A.nop(2)
    A("v_fmac_f32_dpp v24, v24, v38 quad_perm:[1,1,3,3] %s" % DPP)
    A("v_mul_f32 v24, v24, v39\nv_cvt_pk_bf16_f32 v24, v24, v24\nv_lshlrev_b32 v24, 16, v24\nv_mov_b32 v25, v24")
    A.nop(2)
    A("v_permlane32_swap_b32 v24, v25")
    A("v_mul_f32 v26, v24, v24\nv_fma_f32 v26, v26, s56, v41\nv_mul_f32 v26, v26, v24\nv_exp_f32 v26, v26\ns_nop 0\nv_add_f32 v26, 1.0, v26\nv_rcp_f32 v26, v26\ns_nop 0")
    A("v_mul_f32 v26, v26, v24\nv_cvt_pk_bf16_f32 v26, v26, v26\nv_lshlrev_b32 v26, 16, v26\nv_mul_f32 v26, v26, v25\nv_cvt_pk_bf16_f32 v26, v26, v26")
    A("s_mov_b64 exec, 0x55555555\nds_write_b16 v18, v26 offset:%d\ns_mov_b64 exec, -1" % L_ACT)
    A("L_s10:")
    A("s_waitcnt lgkmcnt(0)\ns_barrier")
    A.stamp(19)
    A("ds_read_b128 v[24:27], v22 offset:%d\nds_read_b128 v[28:31], v22 offset:%d" % (L_ACT, L_ACT + 64))
    for kk in range(2):
        A("s_waitcnt lgkmcnt(%d)" % (1 - kk))
        for t in range(4):
            r = DA + 8 * t + 4 * kk
            A("v_mfma_f32_16x16x32_bf16 v[%d:%d], v[%d:%d], v[%d:%d], %s" % (44 + 4 * t, 47 + 4 * t, r, r + 3, 24 + 4 * kk, 27 + 4 * kk, "0" if kk == 0 else "v[%d:%d]" % (44 + 4 * t, 47 + 4 * t)))
    A.nop(4)
    for t in range(1, 4):
        A.mask(0x00010001 << t)
        for k in range(4):
            A("v_cndmask_b32 v%d, v%d, v%d, s[56:57]" % (44 + k, 44 + k, 44 + 4 * t + k))
    A.tag4(44, 44)
    A.mask(0x000f000f, "exec")
    A("buffer_store_dwordx4 v[44:47], v19, s[52:55], s62 offen sc1")
    if bar & 8:
        A.stamp(15)
        A("s_waitcnt vmcnt(0)")
        A.stamp(21)
    if bar & 2: A("s_barrier")
    if stamps:
        if not bar & 8: A.stamp(15)
        if pw:
            A("s_mov_b64 exec, 1\ns_mul_i32 s60, s2, 256\ns_lshl_b32 s56, s3, 3\ns_add_u32 s60, s60, s56\ns_add_u32 s60, s60, %d\nv_mov_b32 v255, s60" % (STAMP_OFF + 22 * 8))
            A("v_mov_b32 v250, s%d\nv_mov_b32 v251, s%d\nglobal_store_dwordx2 v255, v[250:251], s[26:27]\ns_nop 1" % (68 + 2 * (pw % 16), 69 + 2 * (pw % 16)))
        A("s_cmp_lg_u32 s3, 0\ns_cbranch_scc1 L_end")
        A.stamp_flush([0, 6, 7, 17, 12, 13, 14, 18, 19, 15, 21])
    A("s_endpgm")
    A("L_s8:")
    A("s_cmp_ge_u32 s35, 7\ns_cbranch_scc1 L_end")
    A("s_mul_i32 s45, s34, 196\ns_lshr_b32 s56, s65, 2\ns_add_u32 s45, s45, s56\ns_mul_i32 s45, s45, %d\ns_and_b32 s56, s65, 3\ns_lshl_b32 s56, s56, 6\ns_add_u32 s45, s45, s56\ns_add_u32 s45, s45, %d" % (fstr, WS_FP))
    A("v_lshrrev_b32 v10, 2, v0\nv_and_b32 v15, 3, v0\nv_mul_u32_u24 v8, %d, v10\nv_lshl_add_u32 v8, v15, 4, v8" % (7 * fstr))
    A("v_add_u32 v9, %d, v8\nv_cmp_gt_u32 vcc, 12, v10" % (112 * fstr))
    A("v_lshlrev_b32 v16, 3, v15\nv_lshl_add_u32 v16, v%d, 1, v16\ns_lshl_b32 s56, s65, 5\nv_add3_u32 v17, v16, s56, v%d" % (V_G, V_MISC))
    A("v_cndmask_b32 v9, v8, v9, vcc\nv_cndmask_b32 v11, 0, 1.0, vcc\nv_mov_b32 v18, 0")
    A("s_mul_i32 s57, s34, 896\ns_add_u32 s46, s56, s57\ns_mov_b32 s40, s22\ns_mov_b32 s41, s23")
    if pret:
        A("buffer_load_dwordx4 v[24:27], v8, s[52:55], s45 offen sc1\nbuffer_load_dwordx4 v[28:31], v9, s[52:55], s45 offen sc1")
    if bar & 1: A("s_barrier")
    A("s_barrier")
    A("ds_read_u16_d16_hi v18, v17 offset:%d" % L_H)
    A("s_barrier")
    if bar & 2: A("s_barrier")
    A.gather2([(8, 0), (9, 0)], 24, 20, "s45", sleep=ps3)
    for k in range(4):
        A("v_fmac_f32 v%d, v%d, v11" % (24 + k, 28 + k))
    A.swapreduce(24)
    for r in (4, 8):
        A.nop(2)
        A("v_add_f32_dpp v24, v24, v24 row_ror:%d %s" % (r, DPP))
    A("s_waitcnt lgkmcnt(0)")
    A("v_cvt_pk_bf16_f32 v24, v24, v24\nv_lshlrev_b32 v24, 16, v24\nv_add_f32 v24, v18, v24\nv_cvt_pk_bf16_f32 v24, v24, v24")
    A.mask(0x000f000f, "exec")
    A("buffer_store_short v24, v16, s[40:43], s46 offen")
    if stamps:
        A.stamp(20)
        A("s_waitcnt vmcnt(0)")
        A.stamp(16)
        A.stamp_flush([20, 16])
    A("L_end:\ns_endpgm")
    A.L.append('.section .rodata,"a"\n.p2align 6\n.amdhsa_kernel %s_kernel' % NAME)
    A.L.append("  .amdhsa_next_free_vgpr 256\n  .amdhsa_next_free_sgpr 100\n  .amdhsa_accum_offset 256")
    A.L.append("  .amdhsa_group_segment_fixed_size 0\n  .amdhsa_kernarg_size 96\n  .amdhsa_user_sgpr_count 2\n  .amdhsa_user_sgpr_kernarg_segment_ptr 1\n  .amdhsa_system_sgpr_workgroup_id_x 1\n  .amdhsa_float_denorm_mode_32 3\n.end_amdhsa_kernel")
    return "\n".join(A.L) + "\n"

if __name__ == "__main__":
    out = sys.argv[1]
    kw = {}
    for a in sys.argv[2:]:
        k, v = a.split("="); kw[k] = int(v)
    open(out, "w").write(build(**kw))
```

```python
import sys, math, struct
NAME = "sequential_preLN__gqa_block_cached__geglu_ffn__decode"
HEADER = open("cdna_kernels/%s.s.ref" % NAME).read().split("; Override launch")[0]

NA = 12
NSL = 22
WS_E = 0
WS_Q = 0x1000
WS_ML = 0x9000
WS_AP = 0xA000
WS_OP = 0x20000
WS_FP = 0xA0000
WS_END = 0x140000
STAMP_OFF = 128 << 20
RING = 8
MISC = RING * 16384
L_Q = 0; L_P = 1024; PSTR = 1536; L_LSUM = 4096; L_MX = 4736
L_LAND = 4816; L_QF = 4820; L_C1 = 4824; L_C2 = 4828; L_WF = 4832; L_C3 = 4836
L_PROG = 4848
R_A = 0; R_G = 65536; R_U = R_G + 28672; R_D = R_U + 28672; SMISC = R_D + 28672
L_LN = 0; L_SO = 0; OSTR = 1088; L_H = 2304; HSTR = 960; L_ACT = 4352; L_ST = 4480
LDS_TOTAL = SMISC + 5120
assert MISC + 8192 <= LDS_TOTAL <= 163840
TAGM = 0x3ff
SPIN = 1 << 17
V_G = 1; V_N = 2; V_MISC = 3; V_TAG = 4
DPP = "row_mask:0xf bank_mask:0xf"
C1 = 0.0625 * math.log2(math.e)

def f32(x): return "0x%08x" % struct.unpack("<I", struct.pack("<f", x))[0]

class Gen:
    def __init__(self, stamps):
        self.L = []; self.uid = 0; self.stamps = stamps
    def __call__(self, s):
        for line in s.split("\n"):
            line = line.strip()
            if line: self.L.append(("" if line.endswith(":") else "    ") + line)
    def lab(self, p="L"):
        self.uid += 1
        return "%s_%d" % (p, self.uid)
    def nop(self, n):
        while n > 0:
            k = min(n, 16); self("s_nop %d" % (k - 1)); n -= k
    def mask(self, m32, dst="s[56:57]"):
        self("s_mov_b32 s56, 0x%08x\ns_mov_b32 s57, s56" % m32)
        if dst == "exec": self("s_mov_b64 exec, s[56:57]")
    def stamp(self, idx):
        if not self.stamps: return
        self("s_memrealtime s[%d:%d]\ns_waitcnt lgkmcnt(0)" % (68 + 2 * (idx % 16), 69 + 2 * (idx % 16)))
    def stamp_flush(self, idxs):
        if not self.stamps: return
        if self.stamps == 2:
            DBGMAP = {0: 0, 1: 1, 4: 2, 5: 3, 6: 4, 7: 5, 8: 6, 10: 7, 11: 8, 12: 9, 13: 10, 14: 11, 19: 12, 15: 13, 16: 14, 17: 15}
            self("s_mov_b64 exec, 1\nv_mov_b32 v255, 0")
            for idx in idxs:
                if idx not in DBGMAP: continue
                if idx == 0: self("s_not_b32 s68, s68")
                self("v_mov_b32 v250, s%d" % (68 + 2 * (idx % 16)))
                self("global_atomic_umax v255, v250, s[24:25] offset:%d\ns_nop 1" % (DBGMAP[idx] * 4))
            self("s_mov_b64 exec, -1")
            return
        self("s_mov_b64 exec, 1\ns_mul_i32 s60, s2, 256\ns_add_u32 s60, s60, %d\nv_mov_b32 v255, s60" % STAMP_OFF)
        for idx in idxs:
            self("v_mov_b32 v250, s%d\nv_mov_b32 v251, s%d" % (68 + 2 * (idx % 16), 69 + 2 * (idx % 16)))
            self("global_store_dwordx2 v255, v[250:251], s[26:27] offset:%d\ns_nop 1" % (idx * 8))
        self("s_mov_b64 exec, -1")
    def lds_wait_ge(self, off, sreg, target, vt, cached=True, sleep=1):
        d = self.lab("Lw"); l = self.lab("Lw")
        if cached:
            self("s_cmp_ge_u32 s%d, %s\ns_cbranch_scc1 %s" % (sreg, target, d))
        self("%s:" % l)
        self("ds_read_b32 v%d, v%d offset:%d\ns_waitcnt lgkmcnt(0)" % (vt, V_MISC, off))
        self("v_readfirstlane_b32 s%d, v%d\ns_cmp_ge_u32 s%d, %s\ns_cbranch_scc1 %s" % (sreg, vt, sreg, target, d))
        if sleep: self("s_sleep %d" % sleep)
        self("s_sub_u32 s64, s64, 1\ns_cbranch_scc0 %s\ns_mov_b32 s64, 0" % l)
        self("%s:" % d)
    def lds_signal_add(self, off, vt):
        self("s_mov_b64 exec, 1\nv_mov_b32 v%d, 1\nds_add_u32 v%d, v%d offset:%d\ns_mov_b64 exec, -1" % (vt, V_MISC, vt, off))
    def gather(self, offs, vd, vt, soff, sleep=2, reh=False):
        l = self.lab("Lg"); d = self.lab("Lg")
        self("s_mov_b32 s58, 0\n%s:" % l)
        for i, (va, oo) in enumerate(offs):
            self("buffer_load_dwordx4 v[%d:%d], v%d, s[52:55], %s offen offset:%d sc1" % (vd + 4 * i, vd + 4 * i + 3, va, soff, oo))
        for i in range(len(offs)):
            self("s_waitcnt vmcnt(%d)" % (len(offs) - 1 - i))
            for k in range(4):
                self("v_xor_b32 v%d, s%d, v%d" % (vd + 4 * i + k, 28 + k, vd + 4 * i + k))
            if i == 0:
                self("v_or3_b32 v%d, v%d, v%d, v%d\nv_or_b32 v%d, v%d, v%d" % (vt, vd, vd + 1, vd + 2, vt, vt, vd + 3))
            else:
                self("v_or3_b32 v%d, v%d, v%d, v%d" % (vt, vt, vd + 4 * i, vd + 4 * i + 1))
                self("v_or3_b32 v%d, v%d, v%d, v%d" % (vt, vt, vd + 4 * i + 2, vd + 4 * i + 3))
        self("v_and_b32 v%d, %d, v%d\nv_cmp_ne_u32 vcc, 0, v%d" % (vt, TAGM, vt, vt))
        if reh: self("s_and_b64 vcc, vcc, s[20:21]\ns_cbranch_scc0 %s" % d)
        else: self("s_cbranch_vccz %s" % d)
        if sleep: self("s_sleep %d" % sleep)
        self("s_add_u32 s58, s58, 1\ns_cmp_lt_u32 s58, %d\ns_cbranch_scc1 %s\n%s:" % (SPIN, l, d))
    def gather2(self, groups, vd, vt, soff, sleep=0, sentinel=None, MS=(4, 6, 8, 10), between=None, hold=None, first=False):
        regs = []; r = vd
        for g in groups:
            regs.append([r + 4 * k for k in range(len(g))]); r += 4 * len(g)
        def load(i, only=None):
            for (va, oo), rr in list(zip(groups[i], regs[i]))[:only]:
                self("buffer_load_dwordx4 v[%d:%d], v%d, s[52:55], %s offen offset:%d sc1" % (rr, rr + 3, va, soff, oo))
        def check(i, dst, only=None):
            w = []
            for rr in regs[i][:only]:
                for k in range(4):
                    self("v_xor_b32 v%d, s%d, v%d" % (rr + k, 28 + k, rr + k)); w.append(rr + k)
            self("v_or3_b32 v%d, v%d, v%d, v%d" % (vt, w[0], w[1], w[2])); w = w[3:]
            while len(w) > 1:
                self("v_or3_b32 v%d, v%d, v%d, v%d" % (vt, vt, w[0], w[1])); w = w[2:]
            self("v_bitop3_b32 v%d, v%d, v%d, s12 bitop3:0xa8\nv_cmp_ne_u32 %s, 0, v%d" % (vt, vt, w[0], dst, vt))
        n = len(groups)
        self("s_mov_b32 s58, 0")
        if sentinel is not None:
            l = self.lab("Ls"); d = self.lab("Ls")
            self.mask(sentinel, "exec")
            self("%s:" % l)
            load(0, 1)
            self("s_waitcnt vmcnt(0)")
            check(0, "vcc", 1)
            self("s_and_b64 vcc, vcc, s[0:1]\ns_cmp_lg_u64 vcc, exec\ns_cbranch_scc1 %s\ns_sleep 6" % d)
            self("s_add_u32 s58, s58, 1\ns_cmp_lt_u32 s58, %d\ns_cbranch_scc1 %s\n%s:" % (SPIN, l, d))
        if between:
            self("s_mov_b64 exec, -1")
            between()
            self("s_mov_b32 s58, 0")
        l = self.lab("Lg"); d = self.lab("Lg"); dd = self.lab("Lg")
        if first:
            for i in range(n): load(i)
            left = sum(len(g) for g in groups)
            for i in range(n):
                left -= len(groups[i])
                self("s_waitcnt vmcnt(%d)" % left)
                check(i, "s[%d:%d]" % (MS[i], MS[i] + 1))
            self("s_or_b64 s[14:15], s[%d:%d], s[%d:%d]" % (MS[0], MS[0] + 1, MS[1], MS[1] + 1))
            for i in range(2, n):
                self("s_or_b64 s[14:15], s[14:15], s[%d:%d]" % (MS[i], MS[i] + 1))
            self("s_cbranch_scc0 %s" % dd)
        for i in range(n if not first else 0):
            if hold: self("s_not_b64 s[%d:%d], s[%d:%d]" % (MS[i], MS[i] + 1, hold[i], hold[i] + 1))
            else: self("s_mov_b64 s[%d:%d], -1" % (MS[i], MS[i] + 1))
        self("%s:" % l)
        for i in range(n):
            k = self.lab("Lk")
            self("s_mov_b64 exec, s[%d:%d]\ns_cbranch_execz %s" % (MS[i], MS[i] + 1, k))
            load(i)
            self("%s:" % k)
        self("s_waitcnt vmcnt(0)")
        for i in range(n):
            k = self.lab("Lk")
            self("s_mov_b64 exec, s[%d:%d]\ns_cbranch_execz %s" % (MS[i], MS[i] + 1, k))
            check(i, "s[%d:%d]" % (MS[i], MS[i] + 1))
            self("%s:" % k)
        if hold:
            for i in range(n):
                self("s_or_b64 s[%d:%d], s[%d:%d], s[%d:%d]\ns_mov_b64 s[%d:%d], 0" % (MS[i], MS[i] + 1, MS[i], MS[i] + 1, hold[i], hold[i] + 1, hold[i], hold[i] + 1))
        self("s_or_b64 s[14:15], s[%d:%d], s[%d:%d]" % (MS[0], MS[0] + 1, MS[1], MS[1] + 1))
        for i in range(2, n):
            self("s_or_b64 s[14:15], s[14:15], s[%d:%d]" % (MS[i], MS[i] + 1))
        self("s_cbranch_scc0 %s" % d)
        if sleep: self("s_sleep %d" % sleep)
        self("s_add_u32 s58, s58, 1\ns_cmp_lt_u32 s58, s0\ns_cbranch_scc1 %s\n%s:" % (l, d))
        self("s_mov_b64 exec, -1\n%s:" % dd)
    def tag4(self, vs, vd):
        for k in range(4):
            self("v_and_or_b32 v%d, v%d, s59, v%d" % (vd + k, vs + k, V_TAG + k))
    def swapreduce(self, v):
        self.nop(2)
        self("v_permlane16_swap_b32 v%d, v%d\nv_permlane16_swap_b32 v%d, v%d" % (v, v + 1, v + 2, v + 3))
        self("v_add_f32 v%d, v%d, v%d\nv_add_f32 v%d, v%d, v%d" % (v, v, v + 1, v + 2, v + 2, v + 3))
        self.nop(2)
        self("v_permlane32_swap_b32 v%d, v%d" % (v, v + 2))
        self("v_add_f32 v%d, v%d, v%d" % (v, v, v + 2))
    def swapreduce2(self, v, u):
        self.nop(1)
        self("v_permlane16_swap_b32 v%d, v%d\nv_permlane16_swap_b32 v%d, v%d" % (v, v + 1, v + 2, v + 3))
        self("v_permlane16_swap_b32 v%d, v%d\nv_permlane16_swap_b32 v%d, v%d" % (u, u + 1, u + 2, u + 3))
        self("v_add_f32 v%d, v%d, v%d\nv_add_f32 v%d, v%d, v%d" % (v, v, v + 1, v + 2, v + 2, v + 3))
        self("v_add_f32 v%d, v%d, v%d\nv_add_f32 v%d, v%d, v%d" % (u, u, u + 1, u + 2, u + 2, u + 3))
        self("v_permlane32_swap_b32 v%d, v%d" % (v, v + 2))
        self.nop(1)
        self("v_permlane32_swap_b32 v%d, v%d" % (u, u + 2))
        self("v_add_f32 v%d, v%d, v%d\nv_add_f32 v%d, v%d, v%d" % (v, v, v + 2, u, u, u + 2))
    def ln_stats_list(self, vs, vq, vm, vr, t):
        return ["v_mul_f32 v%d, %s, v%d" % (vs, f32(1.0 / 448), vs), "v_mul_f32 v%d, %s, v%d" % (vq, f32(1.0 / 448), vq),
                "v_fma_f32 v%d, -v%d, v%d, v%d" % (vq, vs, vs, vq), "v_max_f32 v%d, 0, v%d" % (vq, vq),
                "v_cvt_pk_bf16_f32 v%d, v%d, v%d" % (t, vs, vq),
                "v_and_b32 v%d, 0xffff0000, v%d" % (vq, t), "v_lshlrev_b32 v%d, 16, v%d" % (vm, t),
                "v_add_f32 v%d, %s, v%d" % (vq, f32(1e-5), vq), "v_cvt_pk_bf16_f32 v%d, v%d, v%d" % (t, vq, vq),
                "v_lshlrev_b32 v%d, 16, v%d" % (vq, t), "v_sqrt_f32 v%d, v%d" % (vq, vq), "s_nop 0",
                "v_cvt_pk_bf16_f32 v%d, v%d, v%d" % (t, vq, vq), "v_lshlrev_b32 v%d, 16, v%d" % (vq, t),
                "v_rcp_f32 v%d, v%d" % (vr, vq), "s_nop 0"]
    def tags_setup(self):
        for k in range(4):
            self("s_add_u32 s%d, s%d, 1\ns_and_b32 s%d, s%d, %d\nv_mov_b32 v%d, s%d" % (28 + k, 28 + k, 28 + k, 28 + k, TAGM, V_TAG + k, 28 + k))

def build(stamps=0, win=48, qp=13, qslp=16, fast=1, ps1=0, ps2=0, ps3=0, cpf=1, ack=14, gate=0, pret=2, mls=32, prew=0, dlate=0, thr=0, off=0, diag=-1, rep=0, rot=0, lastbar=2, lite=0, fp1=1, pre=4, lin=0, l2p=3, ppol=0, reh=0, wink=32, stk=8):
    global WS_AP
    if rep: WS_AP = 0x100000
    EV0 = wink // 16
    A = Gen(stamps)
    A.L.append(HEADER.rstrip())
    A.L.append("; @launch grid=(256,1,1) block=(512,1,1) lds=%d" % LDS_TOTAL)
    A.L.append('.amdgcn_target "amdgcn-amd-amdhsa--gfx950"')
    A.L.append(".text\n.globl %s_kernel\n.p2align 8\n.type %s_kernel,@function\n%s_kernel:" % (NAME, NAME, NAME))
    A("s_cmp_ge_u32 s2, 256\ns_cbranch_scc1 L_end")
    A("s_load_dwordx16 s[4:19], s[0:1], 0\ns_load_dwordx8 s[20:27], s[0:1], 64")
    if stamps: A("s_memrealtime s[68:69]")
    if diag >= 0: A("s_memrealtime s[90:91]")
    A("v_lshrrev_b32 v1, 6, v0\nv_and_b32 v0, 63, v0\nv_readfirstlane_b32 s3, v1")
    A("s_and_b32 s32, s2, 15\ns_lshr_b32 s33, s2, 4\ns_lshr_b32 s34, s32, 3\ns_and_b32 s35, s32, 7")
    A("v_mov_b32 v%d, %d\ns_mov_b32 s64, %d" % (V_MISC, MISC, 1 << 20))
    A("s_cmp_ge_u32 s33, %d\ns_cbranch_scc1 L_service" % NA)
    A("s_mul_i32 s65, s33, 43691\ns_add_u32 s66, s65, 43691\ns_lshr_b32 s65, s65, 6\ns_lshr_b32 s66, s66, 6")
    for a in range(NA + 1): assert (a * 43691) >> 6 == a * 8192 // NA
    A("s_cmp_lg_u32 s3, 1\ns_cbranch_scc1 L_notloader")
    A("s_setprio 3")
    A("v_lshrrev_b32 v1, 5, v0\nv_and_b32 v2, 31, v0\nv_xor_b32 v4, v2, v1\nv_lshlrev_b32 v4, 4, v4\nv_lshl_or_b32 v8, v1, 9, v4")
    for j in range(1, 8):
        A("v_xor_b32 v%d, %d, v8" % (8 + j, 32 * j))
    A("s_lshl_b32 s45, s32, 22\ns_lshl_b32 s44, s65, 9\ns_add_u32 s44, s44, s45\ns_lshl_b32 s38, s66, 9\ns_add_u32 s38, s38, s45")
    if rot:
        A("s_mul_i32 s51, s32, %d\ns_mul_i32 s56, s51, 3121\ns_lshr_b32 s56, s56, 16\ns_mul_i32 s56, s56, 21\ns_sub_u32 s51, s51, s56" % rot)
        for g in range(16): assert (g * rot * 3121) >> 16 == g * rot // 21
        A("s_lshl_b32 s51, s51, 14\ns_add_u32 s51, s51, s44\ns_add_u32 s49, s44, %d" % (21 * 16384))
    else:
        A("s_mov_b32 s51, s44")
    A("s_mov_b32 s45, s51\ns_mov_b32 s46, 0\ns_mov_b32 s47, 0\ns_mov_b32 s48, 0\ns_mov_b32 s50, %d\ns_mov_b32 m0, 0" % EV0)
    A("s_mov_b32 s39, 0x20000")
    A("s_waitcnt lgkmcnt(0)")
    A.stamp(2)
    A("s_mov_b32 s36, s6\ns_mov_b32 s37, s7")
    W = win
    lag = 2
    def land(k):
        A("s_sub_i32 s56, s46, %d\ns_max_i32 s48, s48, s56\nv_mov_b32 v20, s48\nds_write_b32 v%d, v20 offset:%d" % (k, V_MISC, L_LAND))
    A("L_slot:")
    A("s_add_u32 s56, s47, %d\ns_cmp_lt_u32 s46, s56\ns_cbranch_scc0 L_waitfree" % RING)
    A("L_go:")
    def body(W, st=8):
        for j in range(16):
            if j % st == 0:
                A("s_waitcnt vmcnt(%d)" % (W - st))
                if (j - (W - st)) % 16 == 0: land((W - st - j) // 16)
            A("buffer_load_dwordx4 v%d, s[36:39], s45 offen nt lds" % (8 + j % 8))
            A("s_add_u32 m0, m0, 1024\ns_add_u32 s45, s45, 1024")
    if wink != W:
        A("s_cmp_ge_u32 s46, %d\ns_cbranch_scc1 L_go2" % NSL)
        body(wink, stk)
        A("s_branch L_go3\nL_go2:")
    body(W)
    A("L_go3:")
    A("s_and_b32 m0, m0, %d" % (MISC - 1))
    if rot:
        A("s_cmp_eq_u32 s45, s49\ns_cselect_b32 s45, s44, s45\ns_cmp_eq_u32 s45, s51\ns_cselect_b32 s45, s49, s45")
    A("s_add_u32 s46, s46, 1\ns_cmp_lg_u32 s46, s50\ns_cbranch_scc1 L_slot")
    A("s_cmp_lg_u32 s46, %d\ns_cbranch_scc1 L_evV" % EV0)
    A.stamp(29)
    A("s_barrier")
    A.stamp(30)
    if stamps:
        A("s_waitcnt vmcnt(40)")
        A.stamp(31)
    A("s_mov_b32 s50, %d\ns_branch L_slot" % NSL)
    A("L_evV:\ns_cmp_lg_u32 s46, %d\ns_cbranch_scc1 L_ldone" % NSL)
    A.stamp(1)
    A("v_lshlrev_b32 v4, 1, v1\nv_xor_b32 v4, v2, v4\nv_lshlrev_b32 v4, 4, v4\nv_lshl_or_b32 v8, v1, 9, v4")
    for j in range(1, 8):
        A("v_xor_b32 v%d, %d, v8" % (8 + j, 64 * (j & 3)))
    A("s_mov_b32 s36, s8\ns_mov_b32 s37, s9\ns_mov_b32 s45, s51\ns_mov_b32 s50, %d\ns_branch L_slot" % (2 * NSL))
    A("L_ldone:")
    A.stamp(3)
    for k in range(lag, -1, -1):
        A("s_waitcnt vmcnt(%d)" % (16 * k))
        if k < lastbar: A("s_barrier")
        else: land(k)
    A.stamp(4)
    A.stamp_flush([0, 1, 2, 3, 4, 29, 30, 31])
    A("s_endpgm")
    A("L_waitfree:")
    def prog_check():
        A("ds_read_b128 v[20:23], v%d offset:%d\nds_read_b64 v[24:25], v%d offset:%d\ns_waitcnt lgkmcnt(0)" % (V_MISC, L_PROG, V_MISC, L_PROG + 16))
        A("v_min3_u32 v20, v20, v21, v22\nv_min3_u32 v23, v23, v24, v25\nv_min_u32 v20, v20, v23\ns_nop 0\nv_readfirstlane_b32 s47, v20")
        A("s_add_u32 s56, s47, %d\ns_cmp_lt_u32 s46, s56\ns_cbranch_scc1 L_go" % RING)
    for k in range(lag, -1, -1):
        prog_check()
        A("s_waitcnt vmcnt(%d)" % (16 * k))
        land(k)
    A("L_wf2:")
    prog_check()
    A("s_sleep 1\ns_sub_u32 s64, s64, 1\ns_cbranch_scc0 L_wf2\ns_mov_b32 s64, 0\ns_branch L_go")

    def common_setup():
        A("v_lshrrev_b32 v%d, 4, v0\nv_and_b32 v%d, 15, v0" % (V_G, V_N))
        A("s_waitcnt lgkmcnt(0)")
        A("s_load_dwordx4 s[28:31], s[26:27], %d" % WS_E)
        A("s_mov_b32 s52, s26\ns_mov_b32 s53, s27\ns_mov_b32 s54, %d\ns_mov_b32 s55, 0x20000" % WS_END)
        A("s_mov_b32 s59, %d" % (0xffffffff & ~TAGM))
    A("L_notloader:")
    common_setup()
    A("s_cmp_lg_u32 s3, 0\ns_cbranch_scc1 L_noinit")
    A("v_mov_b32 v8, 0\nv_lshl_add_u32 v9, v0, 2, v%d\nds_write_b32 v9, v8 offset:%d" % (V_MISC, L_LSUM))
    A("s_mov_b64 exec, 0xff\nds_write_b32 v9, v8 offset:%d\nds_write_b32 v9, v0 offset:%d" % (L_LAND, L_PROG))
    A("s_mov_b64 exec, 0x3\nv_mov_b32 v10, 0xff800000\nds_write_b32 v9, v10 offset:%d\ns_mov_b64 exec, -1" % L_MX)
    A("L_noinit:")
    A("s_sub_u32 s61, s3, 2")
    A("s_waitcnt lgkmcnt(0)")
    A.tags_setup()
    A("s_mov_b32 s48, 0\ns_barrier")
    A("s_cmp_ge_u32 s3, 2\ns_cbranch_scc1 L_cons")
    A("s_lshl_b32 s45, s34, 14\ns_lshl_b32 s46, s35, 11\ns_add_u32 s45, s45, s46\ns_add_u32 s45, s45, %d" % WS_Q)
    A("v_lshlrev_b32 v16, 4, v0")
    A.lds_wait_ge(L_LAND, 48, str(qp), 17)
    A.stamp(7)
    A.gather([(16, 0), (16, 1024)], 20, 17, "s45", sleep=qslp)
    A("s_mov_b32 s56, 0x07060302")
    for i in range(4):
        A("v_perm_b32 v%d, v%d, v%d, s56" % (28 + i, 21 + 2 * i, 20 + 2 * i))
    A("v_lshl_add_u32 v16, v0, 3, v%d" % V_MISC)
    A("ds_write_b64 v16, v[28:29] offset:%d\nds_write_b64 v16, v[30:31] offset:%d" % (L_Q, L_Q + 512))
    A("s_getreg_b32 s56, hwreg(HW_REG_XCC_ID)\ns_and_b32 s56, s56, 15\nv_bfe_u32 v18, v20, 10, 4\nv_bfe_u32 v19, v24, 10, 4")
    A("v_cmp_ne_u32 vcc, s56, v18\nv_cmp_ne_u32 s[44:45], s56, v19\ns_nop 0\ns_or_b64 vcc, vcc, s[44:45]\ns_cselect_b32 s56, 1, %d" % (2 if fast else 1))
    A("s_mov_b32 s67, s56\nv_mov_b32 v17, s56\nds_write_b32 v%d, v17 offset:%d" % (V_MISC, L_QF))
    A.stamp(8)
    A.lds_wait_ge(L_C2, 47, "6", 8, cached=False, sleep=4)
    A("ds_read_b32 v10, v9 offset:%d\nds_read_b64 v[12:13], v%d offset:%d\ns_waitcnt lgkmcnt(0)" % (L_LSUM, V_MISC, L_MX))
    for r in (1, 2, 4, 8):
        A("v_add_f32_dpp v10, v10, v10 row_ror:%d %s" % (r, DPP))
        A.nop(2)
    A("v_readlane_b32 s56, v10, 16\nv_readlane_b32 s57, v10, 32\nv_readlane_b32 s58, v10, 48")
    A.nop(1)
    A("v_add_f32 v14, s56, v10\nv_mov_b32 v15, s57\nv_add_f32 v15, s58, v15")
    A.tag4(12, 12)
    A("s_lshl_b32 s45, s32, 8\ns_add_u32 s45, s45, %d\ns_lshl_b32 s46, s33, 4\nv_mov_b32 v9, s46" % WS_ML)
    A("s_mov_b64 exec, 1\ns_cmp_eq_u32 s67, 2\ns_cbranch_scc1 L_mlfast")
    A("buffer_store_dwordx4 v[12:15], v9, s[52:55], s45 offen sc1\ns_branch L_mldone\nL_mlfast:")
    A("buffer_store_dwordx4 v[12:15], v9, s[52:55], s45 offen\nL_mldone:")
    A.stamp_flush([7, 8])
    A("s_endpgm")

    A("L_cons:")
    KA = 8; KT = 244; KD = [16, 80, 144, 16]; QB = 208; AC = 240; S = 248
    A("v_xor_b32 v12, v%d, v%d\nv_lshlrev_b32 v12, 4, v12\nv_lshl_or_b32 v%d, v%d, 9, v12" % (V_G, V_N, KA, V_N))
    for k in range(1, 4):
        A("v_xor_b32 v%d, %d, v%d" % (KA + k, 64 * k, KA))
    A("s_add_u32 s46, s61, 1\ns_lshl_b32 s44, s61, 14")
    A("s_lshl_b32 s62, s61, 2\nv_add_u32 v13, s62, v%d" % V_MISC)
    def kread(i):
        for k in range(4):
            A("v_add_u32 v%d, s44, v%d" % (KT + k, KA + k))
        A.lds_wait_ge(L_LAND, 48, "s46", 12)
        for tt in range(2):
            for kk in range(8):
                r = KD[i] + 32 * tt + 4 * kk
                A("ds_read_b128 v[%d:%d], v%d offset:%d" % (r, r + 3, KT + (kk & 3), tt * 8192 + (kk >> 2) * 256))
        A("s_add_u32 s56, s46, 5\ns_min_u32 s56, s56, %d\nv_mov_b32 v12, s56\ns_add_u32 s46, s46, 6" % NSL)
        A("s_add_u32 s44, s44, %d\ns_and_b32 s44, s44, %d" % (6 * 16384, MISC - 1))
        A("s_waitcnt lgkmcnt(0)")
        A("ds_write_b32 v13, v12 offset:%d" % L_PROG)
    def kcomp(i):
        for kk in range(8):
            for tt in range(2):
                r = KD[i] + 32 * tt + 4 * kk
                A("v_mfma_f32_16x16x32_bf16 v[%d:%d], v[%d:%d], v[%d:%d], %s" % (AC + 4 * tt, AC + 4 * tt + 3, r, r + 3, QB + 4 * kk, QB + 4 * kk + 3, "0" if kk == 0 else "v[%d:%d]" % (AC + 4 * tt, AC + 4 * tt + 3)))
        A.mask(0x00030003 << (4 * i))
        A.nop(5)
        for k in range(4):
            A("v_cndmask_b32 v%d, v%d, v%d, s[56:57]" % (S + k, S + k, AC + k))
        A("s_lshl_b64 s[56:57], s[56:57], 2")
        for k in range(4):
            A("v_cndmask_b32 v%d, v%d, v%d, s[56:57]" % (S + k, S + k, AC + 4 + k))
    for i in range(3):
        kread(i)
    A.lds_wait_ge(L_QF, 67, "1", 12, cached=False)
    A("v_and_b32 v12, 1, v%d\nv_lshlrev_b32 v12, 9, v12\nv_lshl_add_u32 v12, v%d, 4, v12\nv_add_u32 v12, v%d, v12" % (V_N, V_G, V_MISC))
    for kk in range(8):
        A("ds_read_b128 v[%d:%d], v12 offset:%d" % (QB + 4 * kk, QB + 4 * kk + 3, L_Q + kk * 64))
    A("s_waitcnt lgkmcnt(0)")
    for i in range(3):
        kcomp(i)
    A("s_cmp_gt_u32 s46, %d\ns_cbranch_scc1 L_kdone" % NSL)
    kread(3); kcomp(3)
    A("L_kdone:")
    A.stamp(9)
    A("v_lshrrev_b32 v23, 2, v%d\nv_mul_u32_u24 v16, 192, v23\nv_and_b32 v22, 2, v%d\nv_lshl_add_u32 v16, v22, 3, v16\nv_lshl_add_u32 v16, v%d, 2, v16" % (V_N, V_N, V_G))
    A("s_sub_u32 s44, s66, s65\ns_lshl_b32 s45, s61, 5\ns_sub_u32 s44, s44, s45\nv_mov_b32 v17, 0xff800000")
    for k in range(4):
        A("v_cmp_gt_u32 vcc, s44, v16\nv_add_u32 v16, 1, v16\ns_nop 0\nv_cndmask_b32 v%d, v17, v%d, vcc" % (S + k, S + k))
    A("v_cvt_pk_bf16_f32 v16, v%d, v%d\nv_cvt_pk_bf16_f32 v17, v%d, v%d" % (S, S + 1, S + 2, S + 3))
    A("v_lshlrev_b32 v%d, 16, v16\nv_and_b32 v%d, 0xffff0000, v16\nv_lshlrev_b32 v%d, 16, v17\nv_and_b32 v%d, 0xffff0000, v17" % (S, S + 1, S + 2, S + 3))
    A("v_max3_f32 v16, v%d, v%d, v%d\nv_max_f32 v16, v16, v%d" % (S, S + 1, S + 2, S + 3))
    for r in (2, 4, 8):
        A.nop(2)
        A("v_max_f32_dpp v16, v16, v16 row_ror:%d %s" % (r, DPP))
    A("v_and_b32 v17, 1, v%d\nv_lshl_add_u32 v18, v17, 2, v%d" % (V_N, V_MISC))
    A.mask(0x00030003, "exec")
    A("ds_max_f32 v18, v16 offset:%d" % L_MX)
    A.lds_signal_add(L_C1, 12)
    A("v_mul_u32_u24 v19, 384, v23\nv_mul_u32_u24 v14, %d, v17\nv_lshl_add_u32 v14, v%d, 4, v14\nv_add_u32 v14, v%d, v14" % (PSTR, V_G, V_MISC))
    A("v_lshl_add_u32 v19, v22, 2, v19\ns_lshl_b32 s62, s61, 6\nv_add3_u32 v19, v19, s62, v14")
    A("v_lshlrev_b32 v20, 7, v17\nv_lshl_add_u32 v20, v%d, 2, v20\ns_lshl_b32 s62, s61, 4\nv_add3_u32 v20, v20, s62, v%d" % (V_G, V_MISC))
    A.lds_wait_ge(L_C1, 47, "6", 12, cached=False, sleep=0)
    A("ds_read_b32 v16, v18 offset:%d\ns_waitcnt lgkmcnt(0)" % L_MX)
    for k in range(4):
        A("v_sub_f32 v%d, v%d, v16\nv_mul_f32 v%d, %s, v%d\nv_exp_f32 v%d, v%d" % (S + k, S + k, S + k, f32(C1), S + k, S + k, S + k))
    A("v_add_f32 v16, v%d, v%d\nv_add_f32 v16, v16, v%d\nv_add_f32 v16, v16, v%d" % (S, S + 1, S + 2, S + 3))
    A("v_cvt_pk_bf16_f32 v24, v%d, v%d\nv_cvt_pk_bf16_f32 v25, v%d, v%d" % (S, S + 1, S + 2, S + 3))
    A("ds_write_b64 v19, v[24:25] offset:%d" % L_P)
    for r in (2, 4, 8):
        A("v_add_f32_dpp v16, v16, v16 row_ror:%d %s" % (r, DPP))
        A.nop(2)
    A("s_mov_b64 exec, s[56:57]\nds_write_b32 v20, v16 offset:%d" % L_LSUM)
    A.lds_signal_add(L_C2, 12)
    A("s_cmp_ge_u32 s3, 4\ns_cbranch_scc1 L_pv")
    A("v_mov_b32 v12, 0x7fff\nds_write_b32 v13, v12 offset:%d" % L_PROG)
    A("s_endpgm")
    A("L_pv:")
    A("s_sub_u32 s61, s3, 4")
    VA = 8; VT = 16; VD = 24; PB = 40; OA = 96
    A("v_lshrrev_b32 v16, 2, v0\nv_and_b32 v18, 7, v16\ns_lshl_b32 s62, s61, 2\nv_xor_b32 v18, s62, v18\nv_lshlrev_b32 v18, 5, v18")
    A("v_lshl_or_b32 v18, v16, 9, v18\nv_and_b32 v16, 3, v0\nv_lshl_or_b32 v%d, v16, 3, v18" % VA)
    for tt in range(1, 4):
        A("v_xor_b32 v%d, %d, v%d" % (VA + tt, 32 * tt, VA))
    for k in range(4):
        A("v_mov_b32 v%d, 0" % (OA + k))
    for k in range(16):
        A("v_mov_b32 v%d, 0" % (PB + k))
    A("v_lshlrev_b32 v112, 7, v%d\nv_lshl_add_u32 v112, v%d, 4, v112" % (V_G, V_N))
    A("s_lshl_b32 s41, s32, 15\ns_lshl_b32 s56, s61, 9\ns_add_u32 s41, s41, s56\ns_add_u32 s41, s41, %d" % WS_OP)
    A("s_lshl_b32 s56, s33, 11\ns_add_u32 s40, s41, s56")
    for tt in range(4):
        A("s_mov_b32 s%d, 0x%08x\ns_mov_b32 s%d, s%d" % (4 + 2 * tt, 0x00030003 << (2 * tt), 5 + 2 * tt, 4 + 2 * tt))
    A("s_mov_b32 s12, 0x00ff00ff\ns_mov_b32 s13, s12")
    if prew:
        A("s_cmp_lg_u32 s67, 2\ns_cbranch_scc1 L_noprew")
        for k in range(4):
            A("v_xor_b32 v%d, 1, v%d" % (100 + k, V_TAG + k))
        A("s_mov_b64 exec, s[12:13]\nbuffer_store_dwordx4 v[100:103], v112, s[52:55], s40 offen\ns_mov_b64 exec, -1\nL_noprew:")
    A.lds_wait_ge(L_C2, 47, "6", 12, cached=False, sleep=0)
    A.stamp(10)
    A("s_mov_b32 s46, %d\ns_mov_b32 s44, %d" % (NSL + 1, (NSL % RING) * 16384))
    A("L_vloop:")
    for tt in range(4):
        A("s_mov_b64 exec, s[%d:%d]\nds_read_b128 v[%d:%d], v14 offset:%d" % (4 + 2 * tt, 5 + 2 * tt, PB + 4 * tt, PB + 4 * tt + 3, L_P))
    A("s_mov_b64 exec, -1")
    for tt in range(4):
        A("v_add_u32 v%d, s44, v%d" % (VT + tt, VA + tt))
    if lastbar == 2: A("s_cmp_lg_u32 s46, %d\ns_cbranch_scc1 L_vw\ns_barrier\ns_branch L_vg\nL_vw:" % (2 * NSL - 1))
    A.lds_wait_ge(L_LAND, 48, "s46", 12, sleep=0)
    if lastbar == 2: A("L_vg:")
    for tt in range(4):
        A("ds_read_b64_tr_b16 v[%d:%d], v%d" % (VD + 4 * tt, VD + 4 * tt + 1, VT + tt))
        A("ds_read_b64_tr_b16 v[%d:%d], v%d offset:8192" % (VD + 4 * tt + 2, VD + 4 * tt + 3, VT + tt))
    A("v_mov_b32 v12, s46\nv_add_u32 v14, 64, v14\ns_add_u32 s44, s44, 16384\ns_and_b32 s44, s44, %d" % (MISC - 1))
    A("s_add_u32 s46, s46, 1\ns_cmp_le_u32 s46, %d" % (2 * NSL - min(lastbar, 1)))
    for tt in range(4):
        A("s_waitcnt lgkmcnt(%d)" % (6 - 2 * tt))
        A("v_mfma_f32_16x16x32_bf16 v[%d:%d], v[%d:%d], v[%d:%d], v[%d:%d]" % (OA, OA + 3, VD + 4 * tt, VD + 4 * tt + 3, PB + 4 * tt, PB + 4 * tt + 3, OA, OA + 3))
    A("ds_write_b32 v13, v12 offset:%d" % L_PROG)
    A("s_cbranch_scc1 L_vloop")
    if lastbar:
        for tt in range(4):
            A("s_mov_b64 exec, s[%d:%d]\nds_read_b64 v[%d:%d], v14 offset:%d" % (4 + 2 * tt, 5 + 2 * tt, PB + 4 * tt, PB + 4 * tt + 1, L_P))
        A("s_mov_b64 exec, -1")
        for tt in range(4):
            A("v_add_u32 v%d, s44, v%d" % (VT + tt, VA + tt))
        A("s_cmp_eq_u32 s67, 2\ns_barrier")
        for tt in range(4):
            A("ds_read_b64_tr_b16 v[%d:%d], v%d" % (VD + 4 * tt, VD + 4 * tt + 1, VT + tt))
        for tt in range(4):
            A("s_waitcnt lgkmcnt(%d)" % (3 - tt))
            A("v_mfma_f32_16x16x16_bf16 v[%d:%d], v[%d:%d], v[%d:%d], v[%d:%d]" % (OA, OA + 3, VD + 4 * tt, VD + 4 * tt + 1, PB + 4 * tt, PB + 4 * tt + 1, OA, OA + 3))
        A("s_mov_b64 exec, s[12:13]")
        A.nop(7)
    else:
        A("s_mov_b64 exec, s[12:13]\ns_cmp_eq_u32 s67, 2")
        A.nop(4)
    A.tag4(OA, OA)
    A("s_cbranch_scc0 L_slowpub")
    A("buffer_store_dwordx4 v[%d:%d], v112, s[52:55], s40 offen" % (OA, OA + 3))
    A("s_branch L_pubdone\nL_slowpub:")
    A("buffer_store_dwordx4 v[%d:%d], v112, s[52:55], s40 offen sc1" % (OA, OA + 3))
    A("L_pubdone:")
    if stamps:
        A.stamp(11)
        A("s_cmp_lg_u32 s3, 4\ns_cbranch_scc1 L_end")
        A.stamp_flush([9, 10, 11])
    A("s_endpgm")

    A("L_service:")
    A("v_mov_b32 v%d, %d" % (V_MISC, SMISC))
    common_setup()
    A("s_sub_u32 s33, s2, %d\ns_lshr_b32 s33, s33, 3" % (16 * NA))
    A("s_mov_b32 s40, s4\ns_mov_b32 s41, s5\ns_mov_b32 s42, 1792\ns_mov_b32 s43, 0x20000")
    A("s_cmp_lg_u32 s3, 0\ns_cbranch_scc1 L_s1")
    A("v_lshrrev_b32 v8, 5, v0\nv_and_b32 v9, 31, v0\nv_mul_u32_u24 v10, 896, v8\nv_lshl_add_u32 v10, v9, 4, v10")
    A("v_cmp_gt_u32 vcc, 28, v9\nv_mov_b32 v11, 0x1000\ns_nop 0\nv_cndmask_b32 v11, v11, v10, vcc")
    A("buffer_load_dwordx4 v[16:19], v11, s[40:43], 0 offen\nbuffer_load_dwordx4 v[20:23], v11, s[40:43], 0 offen offset:448")
    A("L_s1:")
    def dma7(vaddr, gstep, lds, t=0):
        A("s_mul_i32 s56, s3, 7168\ns_add_u32 m0, s56, %d" % lds)
        for j in range(7):
            if j: A("s_add_u32 m0, m0, 1024\ns_add_u32 s45, s45, %d" % gstep)
            else: A("s_nop 0")
            A("buffer_load_dwordx4 v%d, s[36:39], s45 offen nt lds" % vaddr)
            if t: A("s_waitcnt vmcnt(%d)" % (t - 1))
    A("v_lshrrev_b32 v12, 3, v0\nv_and_b32 v13, 7, v0\nv_lshlrev_b32 v13, 4, v13\nv_lshl_add_u32 v14, v12, 13, v13\nv_mul_u32_u24 v12, 896, v12\nv_add_u32 v15, v12, v13")
    A("s_mov_b32 s36, s10\ns_mov_b32 s37, s11\ns_mov_b32 s38, %d\ns_mov_b32 s39, 0x20000" % (0 if off & 1 else 448 * 8192))
    A("s_lshl_b32 s44, s35, 3\ns_add_u32 s44, s44, s33\ns_lshl_b32 s45, s44, 7\ns_mul_i32 s56, s3, %d\ns_add_u32 s45, s45, s56" % (56 * 8192))
    PP = ["", "nt"][ppol]
    if l2p & 1:
        A("v_lshrrev_b32 v12, 3, v0\nv_min_u32 v12, 6, v12\nv_lshlrev_b32 v12, 13, v12\nv_lshl_add_u32 v12, v13, 3, v12")
        A("s_mul_i32 s46, s33, 56\ns_mul_i32 s56, s3, 7\ns_add_u32 s46, s46, s56\ns_lshl_b32 s46, s46, 13\ns_lshl_b32 s56, s35, 10\ns_add_u32 s46, s46, s56")
        A("buffer_load_dword v45, v12, s[36:39], s46 offen %s\ns_waitcnt vmcnt(0)\ns_barrier" % PP)
    if lin & 1:
        A("v_lshlrev_b32 v14, 4, v0\ns_mul_i32 s45, s44, 57344\ns_mul_i32 s56, s3, 7168\ns_add_u32 s45, s45, s56")
    if lin & 4:
        A("v_lshlrev_b32 v14, 4, v0\ns_mul_i32 s45, s33, 56\ns_mul_i32 s56, s3, 7\ns_add_u32 s45, s45, s56\ns_lshl_b32 s45, s45, 13\ns_lshl_b32 s56, s35, 10\ns_add_u32 s45, s45, s56")
    dma7(14, 1024 if lin & 1 else 8192 if lin & 4 else 8 * 8192, R_A)
    A("s_waitcnt lgkmcnt(0)")
    A.tags_setup()
    A("s_cmp_lg_u32 s3, 1\ns_cbranch_scc1 L_s2")
    A("v_lshl_add_u32 v9, v0, 4, v%d" % V_MISC)
    A("v_mov_b32 v28, 0\nv_mov_b32 v29, 0\nv_mov_b32 v30, 0\nv_mov_b32 v31, 0\ns_mov_b64 exec, 0xffffffff\nds_write_b128 v9, v[28:31] offset:%d\ns_mov_b64 exec, -1" % L_ST)
    A("L_s2:")
    A("s_cmp_lg_u32 s3, 0\ns_cbranch_scc1 L_s3")
    A("s_waitcnt vmcnt(7)")
    A.stamp(5)
    X = 24
    for i in range(8):
        A("v_lshlrev_b32 v%d, 16, v%d\nv_and_b32 v%d, 0xffff0000, v%d" % (X + 2 * i, 16 + i, X + 2 * i + 1, 16 + i))
    A("v_add_f32 v40, v%d, v%d\nv_mul_f32 v41, v%d, v%d\nv_fmac_f32 v41, v%d, v%d" % (X, X + 1, X, X, X + 1, X + 1))
    for i in range(2, 16):
        A("v_add_f32 v40, v40, v%d\nv_fmac_f32 v41, v%d, v%d" % (X + i, X + i, X + i))
    for r in (1, 2, 4, 8):
        A.nop(1)
        A("v_add_f32_dpp v40, v40, v40 row_ror:%d %s\nv_add_f32_dpp v41, v41, v41 row_ror:%d %s" % (r, DPP, r, DPP))
    A("v_mov_b32 v42, v40\nv_mov_b32 v43, v41")
    A.nop(2)
    A("v_permlane16_swap_b32 v40, v42\nv_permlane16_swap_b32 v41, v43")
    A("v_add_f32 v40, v40, v42\nv_add_f32 v41, v41, v43")
    A("\n".join(A.ln_stats_list(40, 41, 42, 43, 44)))
    for i in range(8):
        a, b = X + 2 * i, X + 2 * i + 1
        A("v_sub_f32 v%d, v%d, v42\nv_sub_f32 v%d, v%d, v42\nv_cvt_pk_bf16_f32 v44, v%d, v%d" % (a, a, b, b, a, b))
        A("v_lshlrev_b32 v%d, 16, v44\nv_and_b32 v%d, 0xffff0000, v44" % (a, b))
        A("v_mul_f32 v%d, v%d, v43\nv_mul_f32 v%d, v%d, v43\nv_cvt_pk_bf16_f32 v%d, v%d, v%d" % (a, a, b, b, 16 + i, a, b))
    A("v_add_u32 v10, v%d, v10" % V_MISC)
    A.mask(0x0fffffff, "exec")
    A("ds_write_b128 v10, v[16:19] offset:%d\nds_write_b128 v10, v[20:23] offset:%d" % (L_LN, L_LN + 448))
    A("s_mov_b64 exec, -1")
    A("L_s3:")
    A("v_lshrrev_b32 v9, 2, v%d\nv_lshl_add_u32 v9, v%d, 3, v9\nv_lshlrev_b32 v11, 7, v9\nv_and_b32 v10, 3, v0" % (V_N, V_G))
    A("s_waitcnt vmcnt(0) lgkmcnt(0)\ns_barrier")
    A.stamp(6)
    A("s_cmp_ge_u32 s3, 4\ns_cbranch_scc1 L_s4")
    BQ = 16; AQ = 72
    A("v_and_b32 v8, 1, v%d\nv_mul_u32_u24 v8, 896, v8\nv_lshl_add_u32 v8, v%d, 4, v8\nv_add_u32 v8, v%d, v8" % (V_N, V_G, V_MISC))
    A("v_lshl_add_u32 v12, v10, 3, v11\ns_lshl_b32 s56, s3, 5\nv_add_u32 v12, s56, v12")
    for kk in range(14):
        A("ds_read_b128 v[%d:%d], v8 offset:%d" % (BQ + 4 * kk, BQ + 4 * kk + 3, L_LN + kk * 64))
        A("ds_read_b64_tr_b16 v[%d:%d], v12 offset:%d" % (AQ + 4 * kk, AQ + 4 * kk + 1, R_A + kk * 4096))
        A("ds_read_b64_tr_b16 v[%d:%d], v12 offset:%d" % (AQ + 4 * kk + 2, AQ + 4 * kk + 3, R_A + kk * 4096 + 512))
    A("s_waitcnt lgkmcnt(0)")
    for kk in range(14):
        A("v_mfma_f32_16x16x32_bf16 v[128:131], v[%d:%d], v[%d:%d], %s" % (AQ + 4 * kk, AQ + 4 * kk + 3, BQ + 4 * kk, BQ + 4 * kk + 3, "0" if kk == 0 else "v[128:131]"))
    A("v_and_b32 v16, 1, v%d\nv_lshlrev_b32 v16, 14, v16\nv_lshl_add_u32 v16, v%d, 4, v16" % (V_N, V_G))
    A("s_lshl_b32 s45, s44, 8\ns_lshl_b32 s56, s3, 6\ns_add_u32 s45, s45, s56\ns_add_u32 s45, s45, %d" % WS_Q)
    A("s_getreg_b32 s46, hwreg(HW_REG_XCC_ID)\ns_and_b32 s46, s46, 15\ns_lshl_b32 s46, s46, 10")
    A("v_cvt_pk_bf16_f32 v12, v128, v129\nv_cvt_pk_bf16_f32 v13, v130, v131")
    A("v_lshl_or_b32 v128, v12, 16, v%d\nv_and_b32 v129, 0xffff0000, v12\nv_or_b32 v129, v129, v%d" % (V_TAG, V_TAG + 1))
    A("v_lshl_or_b32 v130, v13, 16, v%d\nv_and_b32 v131, 0xffff0000, v13\nv_or_b32 v131, v131, v%d" % (V_TAG + 2, V_TAG + 3))
    A("v_or_b32 v128, s46, v128")
    A.mask(0x00030003, "exec")
    A("buffer_store_dwordx4 v[128:131], v16, s[52:55], s45 offen sc1")
    A("s_mov_b64 exec, -1")
    A.stamp(7)
    A("L_s4:")
    if diag >= 0:
        A("s_cmp_lg_u32 s2, %d\ns_cbranch_scc1 L_nodiag" % (248 + diag))
        A("L_diag:\ns_memrealtime s[92:93]\ns_waitcnt lgkmcnt(0)\ns_sub_u32 s92, s92, s90\ns_cmp_lt_u32 s92, 5000\ns_cbranch_scc1 L_diag\nL_nodiag:")
    if pret == 2:
        A("s_cmp_lt_u32 s33, 7\ns_cbranch_scc1 L_s4b")
        A("s_lshr_b32 s56, s3, 2\ns_lshl_b32 s47, s56, 3\ns_add_u32 s47, s47, s35\ns_lshl_b32 s47, s47, 15\ns_and_b32 s56, s3, 3\ns_mul_i32 s56, s56, 6144\ns_add_u32 s47, s47, s56\ns_add_u32 s47, s47, %d" % WS_OP)
        A("v_min_u32 v8, 47, v0\nv_lshlrev_b32 v8, 7, v8\nbuffer_load_dword v9, v8, s[52:55], s47 offen sc1\ns_endpgm\nL_s4b:")
    A("s_cmp_ge_u32 s33, 7\ns_cbranch_scc1 L_end")
    A("s_mul_i32 s65, s35, 7\ns_add_u32 s65, s65, s33")
    A("s_cmp_lt_u32 s3, 4\ns_cselect_b32 s36, s16, s18\ns_cselect_b32 s37, s17, s19\ns_mov_b32 s38, %d" % (0 if off & 2 else 448 * 3584))
    A("s_and_b32 s56, s3, 3\ns_mul_i32 s45, s56, %d\ns_lshl_b32 s56, s65, 6\ns_add_u32 s45, s45, s56" % (112 * 3584))
    A("v_lshrrev_b32 v14, 2, v0\nv_mul_u32_u24 v14, 3584, v14\nv_lshl_add_u32 v14, v10, 4, v14")
    if l2p & 2:
        A("v_lshrrev_b32 v12, 2, v0\nv_mul_u32_u24 v12, 3584, v12\nv_lshl_add_u32 v12, v10, 7, v12")
        A("s_lshl_b32 s46, s33, 2\ns_and_b32 s56, s3, 3\ns_add_u32 s46, s46, s56\ns_mul_i32 s46, s46, %d\ns_mul_i32 s56, s35, 448\ns_and_b32 s56, s56, 0xffffff80\ns_add_u32 s46, s46, s56" % (16 * 3584))
        A("buffer_load_dword v45, v12, s[36:39], s46 offen %s" % PP)
        A("s_mov_b32 s60, s12\ns_mov_b32 s61, s13\ns_mov_b32 s62, %d\ns_mov_b32 s63, 0x20000\nv_lshlrev_b32 v12, 7, v0" % (4096 * 896))
        A("s_lshl_b32 s46, s65, 16\ns_lshl_b32 s56, s3, 13\ns_add_u32 s46, s46, s56")
        A("buffer_load_dword v46, v12, s[60:63], s46 offen %s\ns_waitcnt vmcnt(1)\ns_barrier" % PP)
    if lin & 2:
        A("v_lshlrev_b32 v14, 4, v0\nv_lshlrev_b32 v15, 4, v0\ns_mul_i32 s45, s65, 28672\ns_and_b32 s56, s3, 3\ns_mul_i32 s56, s56, 7168\ns_add_u32 s45, s45, s56")
    dma7(14, 1024 if lin & 2 else 16 * 3584, R_G, thr)
    def down_dma(sreg, lab):
        A("s_cmp_eq_u32 s3, 7\ns_cbranch_scc1 %s" % lab)
        for j in range(4):
            A("buffer_load_dwordx4 v246, s[36:39], s%d offen offset:%d nt lds" % (sreg, j * 1024))
            if thr: A("s_waitcnt vmcnt(%d)" % (thr - 1))
        A("%s:" % lab)
    def down_setup():
        A("s_mul_i32 s60, s65, 28672\ns_add_u32 s38, s60, 28672\ns_mov_b32 s36, s20\ns_mov_b32 s37, s21\ns_lshl_b32 s56, s3, 12\ns_add_u32 s60, s60, s56\ns_add_u32 m0, s56, %d" % R_D)
        if off & 8: A("s_mov_b32 s38, 0")
    A("v_lshlrev_b32 v14, 4, v0\nv_lshlrev_b32 v246, 4, v0")
    if not dlate:
        down_setup(); down_dma(60, "L_s5a")
    A("L_s5:")
    A("s_barrier")
    A("s_mov_b32 s36, s12\ns_mov_b32 s37, s13\ns_mov_b32 s38, %d" % (0 if off & 4 else 4096 * 896))
    A("s_mul_i32 s45, s35, %d\ns_mul_i32 s56, s3, %d\ns_add_u32 s45, s45, s56\ns_lshl_b32 s56, s33, 7\ns_add_u32 s45, s45, s56" % (512 * 896, 64 * 896))
    A("s_lshl_b32 s56, s3, 13\ns_mov_b32 m0, s56")
    if lin & 2: A("s_lshl_b32 s45, s65, 16\ns_add_u32 s45, s45, s56")
    for j in range(8):
        if j: A("s_add_u32 m0, m0, 1024\ns_add_u32 s45, s45, %d" % (1024 if lin & 2 else 8 * 896))
        else: A("s_nop 0")
        A("buffer_load_dwordx4 v15, s[36:39], s45 offen nt lds")
        if thr: A("s_waitcnt vmcnt(%d)" % (thr - 1))
    if dlate: down_setup()
    if cpf:
        A("s_getpc_b64 s[56:57]\nL_pc:\ns_lshl_b32 s46, s3, 10\nv_add_u32 v14, s46, v14\nv_min_u32 v14, L_end-L_pc-12, v14")
        A("global_load_dwordx4 v[28:31], v14, s[56:57]")
    A("v_lshlrev_b32 v21, 4, v%d\nv_add_u32 v22, v21, v%d" % (V_G, V_MISC))
    A("s_mov_b32 s48, 0xcccccccc\ns_mov_b32 s49, s48\ns_mov_b32 s50, 0xf0f0f0f0\ns_mov_b32 s51, s50\ns_mov_b32 s62, 0xff00ff00\ns_mov_b32 s63, s62")
    A("v_and_b32 v12, 8, v%d\nv_lshlrev_b32 v12, 2, v12\nv_lshl_add_u32 v12, v10, 3, v12\nv_lshl_add_u32 v12, v%d, 1, v12\ns_lshl_b32 s56, s3, 7\nv_add_u32 v12, s56, v12" % (V_N, V_G))
    A("v_bfe_u32 v13, v%d, 2, 1\nv_mul_u32_u24 v248, %d, v13\nv_add3_u32 v248, v248, v12, v%d\nv_mul_u32_u24 v13, 896, v13\nv_add_u32 v12, v12, v13\nv_mov_b32 v252, 0\nv_mov_b32 v253, 0" % (V_N, HSTR, V_MISC))
    A("buffer_load_short_d16_hi v252, v12, s[40:43], 0 offen\nbuffer_load_short_d16_hi v253, v12, s[40:43], 0 offen offset:64")
    A("v_and_b32 v12, 1, v0\nv_lshlrev_b32 v12, 3, v12\nv_lshl_add_u32 v12, v9, 6, v12\nv_lshrrev_b32 v13, 1, v10\nv_mul_u32_u24 v13, 28672, v13\ns_lshl_b32 s56, s3, 4\ns_add_u32 s56, s56, %d\nv_add3_u32 v12, v12, v13, s56" % R_G)
    A("v_lshl_add_u32 v13, v10, 3, v11\ns_and_b32 s56, s3, 3\ns_lshl_b32 s56, s56, 5\nv_add_u32 v13, s56, v13")
    A("v_mul_u32_u24 v14, 896, v9\nv_lshl_add_u32 v14, v10, 5, v14\ns_lshl_b32 s56, s3, 7\ns_add_u32 s56, s56, %d\nv_add_u32 v14, s56, v14" % R_D)
    A("s_lshr_b32 s56, s3, 2\ns_lshl_b32 s47, s56, 3\ns_add_u32 s47, s47, s35\ns_lshl_b32 s46, s47, 8\ns_add_u32 s46, s46, %d\ns_lshl_b32 s47, s47, 15" % WS_ML)
    A("s_and_b32 s57, s3, 3\ns_lshl_b32 s44, s57, 9\ns_add_u32 s47, s47, s44\ns_add_u32 s47, s47, %d" % WS_OP)
    A("v_mul_u32_u24 v8, 6144, v%d\nv_lshl_add_u32 v8, v%d, 4, v8\nv_add_u32 v15, 4096, v8" % (V_G, V_N))
    A("v_mul_u32_u24 v16, 3, v%d\nv_min_u32 v17, 11, v%d\nv_add_u32 v16, v16, v17\nv_subrev_u32 v17, 12, v16\nv_min_u32 v16, v16, v17\nv_lshlrev_b32 v16, 4, v16" % (V_G, V_N))
    A("v_and_b32 v17, 8, v%d\nv_lshl_add_u32 v17, v%d, 1, v17\nv_and_b32 v9, 6, v%d\nv_lshl_add_u32 v17, v9, 4, v17\nv_and_b32 v9, 1, v%d\nv_lshl_add_u32 v17, v9, 9, v17" % (V_N, V_G, V_N, V_N))
    A("s_mul_i32 s56, s56, %d\ns_lshl_b32 s44, s57, 7\ns_add_u32 s56, s56, s44\nv_add3_u32 v17, v17, s56, v%d" % (OSTR, V_MISC))
    A("v_mul_u32_u24 v18, %d, v9\nv_add_u32 v18, v18, v22" % OSTR)
    A("s_mul_i32 s44, s35, 28\ns_lshl_b32 s56, s33, 2\ns_add_u32 s44, s44, s56\ns_add_u32 s44, s44, s57\ns_lshl_b32 s44, s44, 7\ns_add_u32 s44, s44, %d" % WS_AP)
    A("s_mul_i32 s61, s65, 3584\ns_lshl_b32 s56, s3, 9\ns_add_u32 s61, s61, s56\ns_add_u32 s61, s61, %d" % WS_FP)
    if rep:
        A("v_lshrrev_b32 v19, 1, v%d\nv_lshlrev_b32 v19, 15, v19\nv_lshl_add_u32 v19, v9, 6, v19\nv_add_u32 v19, v19, v21\ns_lshl_b32 s57, s35, 15\ns_add_u32 s56, s56, s57" % V_N)
    else:
        A("v_lshl_add_u32 v19, v%d, 6, v21" % V_N)
    A("v_lshlrev_b32 v245, 7, v%d\nv_lshl_add_u32 v245, v%d, 4, v245" % (V_G, V_N))
    A("s_add_u32 s45, s56, %d\nv_mul_u32_u24 v249, 7168, v%d\nv_lshl_add_u32 v249, v%d, 4, v249" % (WS_AP, V_G, V_N))
    A("v_mul_u32_u24 v250, %d, v9\nv_add_u32 v250, v250, v22" % HSTR)
    A("v_lshl_add_u32 v23, v9, 6, v22")
    A("v_and_b32 v251, 14, v%d\nv_lshlrev_b32 v251, 4, v251\nv_lshl_add_u32 v251, v9, 8, v251\nv_add_u32 v251, v251, v%d" % (V_N, V_MISC))
    A("v_and_b32 v247, 4, v%d\nv_lshlrev_b32 v247, 6, v247\nv_lshl_add_u32 v247, v%d, 3, v247\ns_lshl_b32 s56, s3, 5\nv_add3_u32 v247, v247, s56, v%d" % (V_N, V_G, V_MISC))
    A("v_and_b32 v254, 6, v%d\nv_lshl_add_u32 v254, v9, 6, v254\nv_lshl_add_u32 v254, v%d, 3, v254\ns_lshl_b32 s56, s3, 4\nv_add3_u32 v254, v254, s56, v%d" % (V_N, V_G, V_MISC))
    A("s_mov_b32 s20, 0x00110011\ns_mov_b32 s21, s20\ns_mov_b32 s12, %d\ns_mov_b32 s66, 0x00ff00ff\ns_mov_b32 s67, s66\ns_mov_b32 s34, 0x00030003\ns_mov_b32 s35, s34" % TAGM)
    A("s_lshr_b32 s19, s65, 1\ns_lshl_b32 s18, s19, 7\ns_and_b32 s56, s65, 1\ns_lshl_b32 s57, s56, 4\ns_add_u32 s18, s18, s57\ns_add_u32 s18, s18, %d" % WS_FP)
    A("v_lshrrev_b32 v9, 2, v0\nv_mul_u32_u24 v200, 3584, v9\nv_lshl_add_u32 v200, v10, 5, v200\nv_cmp_gt_u32 vcc, 8, v9")
    A("v_add_u32 v201, %d, v200\nv_add_u32 v202, %d, v200\nv_add_u32 v203, %d, v200" % (16 * 3584, 32 * 3584, 48 * 3584))
    A("v_cndmask_b32 v203, v200, v203, vcc\nv_cndmask_b32 v204, 0, 1.0, vcc\nv_mov_b32 v205, 0\nv_mov_b32 v208, 0")
    A("v_lshlrev_b32 v206, 3, v10\nv_lshl_add_u32 v206, v%d, 1, v206\ns_lshl_b32 s19, s19, 5" % V_G)
    A("s_mul_i32 s57, s56, %d\ns_add_u32 s57, s57, s19\nv_add3_u32 v207, v206, s57, v%d\ns_mul_i32 s56, s56, 896\ns_add_u32 s19, s19, s56" % (HSTR, V_MISC))
    A("s_mov_b32 s40, s22\ns_mov_b32 s41, s23\ns_mov_b32 s16, 0x000f000f\ns_mov_b32 s17, s16")
    A("s_waitcnt vmcnt(0)\ns_barrier")
    WA = 136; DA = 120
    def down_frags():
        for t in range(4):
            A("ds_read_b64_tr_b16 v[%d:%d], v14 offset:%d" % (DA + 4 * t, DA + 4 * t + 1, t * 8))
            A("ds_read_b64_tr_b16 v[%d:%d], v14 offset:%d" % (DA + 4 * t + 2, DA + 4 * t + 3, t * 8 + 4 * 896))
    if not dlate: down_frags()
    A("s_cmp_ge_u32 s3, 4\ns_cbranch_scc1 L_s6")
    for kk in range(14):
        A("ds_read_b64_tr_b16 v[%d:%d], v12 offset:%d" % (WA + 4 * kk, WA + 4 * kk + 1, kk * 2048))
        A("ds_read_b64_tr_b16 v[%d:%d], v12 offset:%d" % (WA + 4 * kk + 2, WA + 4 * kk + 3, kk * 2048 + 256))
    A("v_mov_b32 v56, 0x3f803f80\nv_mov_b32 v57, v56\nv_mov_b32 v58, v56\nv_mov_b32 v59, v56\ns_nop 1\ns_waitcnt lgkmcnt(0)")
    for kk in range(14):
        A("v_mfma_f32_16x16x32_bf16 v[24:27], v[%d:%d], v[56:59], %s" % (WA + 4 * kk, WA + 4 * kk + 3, "0" if kk == 0 else "v[24:27]"))
    A.nop(8)
    A("v_cndmask_b32 v24, v24, v25, s[48:49]\nv_cndmask_b32 v26, v26, v27, s[48:49]\nv_cndmask_b32 v244, v24, v26, s[50:51]")
    A("s_branch L_s7\nL_s6:")
    for kk in range(16):
        A("ds_read_b64_tr_b16 v[%d:%d], v13 offset:%d" % (WA + 4 * kk, WA + 4 * kk + 1, kk * 4096))
        A("ds_read_b64_tr_b16 v[%d:%d], v13 offset:%d" % (WA + 4 * kk + 2, WA + 4 * kk + 3, kk * 4096 + 512))
    A("L_s7:")
    A.stamp(17)
    def weights():
        A.gather([(16, 0)], 24, 20, "s46", sleep=mls)
        A("v_cmp_gt_u32 vcc, %d, v%d\nv_mov_b32 v28, v24\nv_mov_b32 v29, v25\nv_cndmask_b32 v26, 0, v26, vcc\nv_cndmask_b32 v27, 0, v27, vcc" % (NA, V_N))
        for r in (1, 2, 4, 8):
            A("v_max_f32_dpp v28, v28, v28 row_ror:%d %s\nv_max_f32_dpp v29, v29, v29 row_ror:%d %s" % (r, DPP, r, DPP))
            A.nop(1)
        A("v_sub_f32 v24, v24, v28\nv_sub_f32 v25, v25, v29\nv_mul_f32 v24, %s, v24\nv_mul_f32 v25, %s, v25\nv_exp_f32 v24, v24\nv_exp_f32 v25, v25\ns_nop 0" % (f32(C1), f32(C1)))
        A("v_mul_f32 v26, v24, v26\nv_mul_f32 v27, v25, v27")
        for r in (1, 2, 4, 8):
            A.nop(1)
            A("v_add_f32_dpp v26, v26, v26 row_ror:%d %s\nv_add_f32_dpp v27, v27, v27 row_ror:%d %s" % (r, DPP, r, DPP))
        A("v_rcp_f32 v26, v26\nv_rcp_f32 v27, v27\ns_nop 0\nv_mul_f32 v24, v24, v26\nv_mul_f32 v25, v25, v27")
        A.nop(2)
        for hh in range(2):
            for i in range(3):
                A("v_mov_b32_dpp v%d, v%d row_newbcast:%d %s" % (210 + 2 * i + hh, 24 + hh, i, DPP))
        A.mask(0xaaaaaaaa)
        for i in range(3):
            A("v_cndmask_b32 v%d, v%d, v%d, s[56:57]" % (210 + 2 * i, 210 + 2 * i, 211 + 2 * i))
    weights()
    if reh: A("s_mov_b64 s[0:1], 0\ns_mov_b32 s54, 0\ns_mov_b32 s42, 0")
    else: A("s_mov_b32 s0, %d\ns_mov_b32 s1, -1" % (SPIN * 2 - 1))
    A("L_tail:")
    OPL = [[(8, 0), (8, 256)], [(8, 2048), (8, 2304)], [(15, 0), (15, 256)]]
    if pret == 1:
        for g in OPL:
            for va, oo in g:
                A("buffer_load_dwordx4 v[24:27], v%d, s[52:55], s47 offen offset:%d sc1" % (va, oo))
    A.gather2(OPL, 24, 20, "s47", sleep=ps1, sentinel=0x00010001)
    A.stamp(12)
    for hh in range(2):
        for k in (0, 2):
            r = 24 + 4 * hh + k
            A("v_pk_mul_f32 v[%d:%d], v[%d:%d], v[210:211] op_sel_hi:[1,0]" % (r, r + 1, r, r + 1))
    for i in range(1, 3):
        for hh in range(2):
            for k in (0, 2):
                r = 24 + 4 * hh + k
                A("v_pk_fma_f32 v[%d:%d], v[%d:%d], v[%d:%d], v[%d:%d] op_sel_hi:[1,0,1]" % (r, r + 1, r + 8 * i, r + 8 * i + 1, 210 + 2 * i, 211 + 2 * i, r, r + 1))
    A.swapreduce2(24, 28)
    A("v_cvt_pk_bf16_f32 v24, v24, v28\nds_write_b16 v17, v24 offset:%d\nds_write_b16_d16_hi v17, v24 offset:%d" % (L_SO, L_SO + 16))
    A("s_waitcnt lgkmcnt(0)\ns_barrier")
    A("s_cmp_lt_u32 s3, 4\ns_cbranch_scc1 L_s8")
    def chain(n, rd, mf, side=None, older=0):
        for kk in range(min(pre, n)): rd(kk)
        for kk in range(n):
            if kk + pre < n: rd(kk + pre)
            A("s_waitcnt lgkmcnt(%d)" % (min(n - 1, kk + pre) - kk))
            mf(kk)
            if side: side(kk)
    chain(16, lambda kk: A("ds_read_b128 v[%d:%d], v18 offset:%d" % (56 + 4 * kk, 59 + 4 * kk, L_SO + kk * 64)),
          lambda kk: A("v_mfma_f32_16x16x32_bf16 v[24:27], v[%d:%d], v[%d:%d], %s" % (WA + 4 * kk, WA + 4 * kk + 3, 56 + 4 * kk, 59 + 4 * kk, "0" if kk == 0 else "v[24:27]")))
    if rep: A.nop(1)
    else: A("s_mov_b64 exec, s[34:35]")
    A.nop(7)
    A.tag4(24, 24)
    A("buffer_store_dwordx4 v[24:27], v19, s[52:55], s44 offen sc1")
    A("s_mov_b64 exec, -1")
    A("s_waitcnt vmcnt(0)")
    A("L_s8:")
    A("s_barrier")
    A.stamp(13)
    A("s_cmp_eq_u32 s3, 7\ns_cbranch_scc1 L_final")
    if dlate == 1:
        for j in range(4):
            A("buffer_load_dwordx4 v246, s[36:39], s60 offen offset:%d nt lds" % (j * 1024))
    A.gather2([[(249, 3584 * i), (249, 3584 * i + 256)] for i in range(2)], 28, 20, "s45", sleep=ps2)
    A.stamp(14)
    for k in range(0, 8, 2):
        A("v_pk_add_f32 v[%d:%d], v[%d:%d], v[%d:%d]" % (28 + k, 29 + k, 28 + k, 29 + k, 36 + k, 37 + k))
    A.swapreduce2(28, 32)
    A("v_cvt_pk_bf16_f32 v28, v28, v32\nv_lshlrev_b32 v29, 16, v28\nv_and_b32 v28, 0xffff0000, v28\nv_add_f32 v29, v252, v29\nv_add_f32 v28, v253, v28\nv_cvt_pk_bf16_f32 v28, v29, v28")
    A("ds_write_b16 v248, v28 offset:%d\nds_write_b16_d16_hi v248, v28 offset:%d" % (L_H, L_H + 64))
    A("v_lshlrev_b32 v29, 16, v28\nv_and_b32 v30, 0xffff0000, v28\nv_add_f32 v32, v29, v30\nv_mul_f32 v33, v29, v29\nv_fmac_f32 v33, v30, v30")
    for m in ("quad_perm:[1,0,3,2]", "quad_perm:[2,3,0,1]", "row_ror:8"):
        A("v_add_f32_dpp v32, v32, v32 %s %s\ns_nop 0\nv_add_f32_dpp v33, v33, v33 %s %s" % (m, DPP, m, DPP))
    A("s_mov_b64 exec, s[20:21]\nds_write_b64 v247, v[32:33] offset:%d\ns_mov_b64 exec, -1" % L_ST)
    A("s_waitcnt lgkmcnt(0)\ns_barrier")
    A.stamp(18)
    A("s_cmp_ge_u32 s3, 4\ns_cbranch_scc1 L_f2")
    HB = 56
    A("ds_read_b128 v[32:35], v251 offset:%d\nds_read_b128 v[36:39], v251 offset:%d" % (L_ST, L_ST + 16))
    side = ["v_pk_add_f32 v[32:33], v[32:33], v[34:35]", "v_pk_add_f32 v[36:37], v[36:37], v[38:39]", "v_pk_add_f32 v[40:41], v[32:33], v[36:37]", "s_nop 1"]
    for m in ("row_ror:2", "row_ror:4", "row_ror:8"):
        side += ["v_add_f32_dpp v40, v40, v40 %s %s" % (m, DPP), "v_add_f32_dpp v41, v41, v41 %s %s" % (m, DPP), "s_nop 0"]
    if lite:
        side += ["v_mul_f32 v42, %s, v40" % f32(-1.0 / 448), "v_mul_f32 v41, %s, v41" % f32(1.0 / 448), "v_fma_f32 v41, -v42, v42, v41",
                 "v_max_f32 v41, 0, v41", "v_add_f32 v41, %s, v41" % f32(1e-5), "v_rsq_f32 v43, v41"]
    else:
        side += A.ln_stats_list(40, 41, 42, 43, 44) + ["v_sub_f32 v42, 0, v42"]
    ga = 2 * math.sqrt(2 / math.pi) * math.log2(math.e); gb = ga * 0.044715
    side += ["v_mov_b32 v45, %s" % f32(-ga), "s_mov_b32 s56, %s" % f32(-gb)]
    tailn = 8
    cuts = [round((len(side) - tailn) * k / 13) for k in range(14)] + [len(side)]
    chain(14, lambda kk: A("ds_read_b128 v[%d:%d], v250 offset:%d" % (HB + 4 * kk, HB + 4 * kk + 3, L_H + kk * 64)),
          lambda kk: A("v_mfma_f32_16x16x32_bf16 v[24:27], v[%d:%d], v[%d:%d], %s" % (WA + 4 * kk, WA + 4 * kk + 3, HB + 4 * kk, HB + 4 * kk + 3, "0" if kk == 0 else "v[24:27]")),
          lambda kk: A("\n".join(side[cuts[kk]:cuts[kk + 1]])))
    A("v_cndmask_b32 v24, v24, v25, s[48:49]\nv_cndmask_b32 v26, v26, v27, s[48:49]\nv_cndmask_b32 v24, v24, v26, s[50:51]")
    A("v_fmac_f32 v24, v244, v42")
    A("v_mul_f32 v24, v24, v43\nv_cvt_pk_bf16_f32 v24, v24, v24\nv_lshlrev_b32 v24, 16, v24\nv_mov_b32 v25, v24")
    A("v_mul_f32 v26, v24, v24\nv_fma_f32 v26, v26, s56, v45")
    A("v_permlane32_swap_b32 v27, v25")
    A.L.pop()
    A("v_mul_f32 v26, v26, v24\nv_exp_f32 v26, v26\nv_mov_b32 v27, v24\nv_add_f32 v26, 1.0, v26\nv_rcp_f32 v26, v26\nv_permlane32_swap_b32 v27, v25")
    A("v_mul_f32 v26, v26, v24\nv_cvt_pk_bf16_f32 v26, v26, v26\nv_lshlrev_b32 v26, 16, v26\nv_mul_f32 v26, v26, v25\nv_cvt_pk_bf16_f32 v26, v26, v26")
    A("s_mov_b64 exec, 0x00ff00ff\nds_write_b16 v254, v26 offset:%d\ns_mov_b64 exec, -1" % L_ACT)
    A("L_f2:")
    if dlate: down_frags()
    A("s_waitcnt lgkmcnt(%d)\ns_barrier" % (8 if dlate else 0))
    A.stamp(19)
    A("ds_read_b128 v[24:27], v23 offset:%d\ns_waitcnt lgkmcnt(0)" % L_ACT)
    for t in range(4):
        A("v_mfma_f32_16x16x32_bf16 v[%d:%d], v[%d:%d], v[24:27], 0" % (48 + 4 * t, 51 + 4 * t, DA + 4 * t, DA + 4 * t + 3))
    A("s_mov_b64 exec, s[66:67]")
    A.nop(5)
    for k in range(4):
        A("v_cndmask_b32 v%d, v%d, v%d, s[48:49]" % (48 + k, 48 + k, 52 + k))
    for k in range(4):
        A("v_cndmask_b32 v%d, v%d, v%d, s[48:49]" % (56 + k, 56 + k, 60 + k))
    for k in range(4):
        A("v_cndmask_b32 v%d, v%d, v%d, s[50:51]" % (48 + k, 48 + k, 56 + k))
    A.tag4(48, 48)
    A("buffer_store_dwordx4 v[48:51], v245, s[52:55], s61 offen sc1")
    A.stamp(15)
    if ack == 1: A("s_waitcnt vmcnt(0)")
    if ack == 2: A("s_cmp_lg_u32 s3, 0\ns_cbranch_scc1 L_noack\ns_waitcnt vmcnt(0)\nL_noack:")
    A.stamp(21)
    A("s_barrier")
    A("s_cmp_eq_u32 s0, 0\ns_cbranch_scc1 L_again")
    if stamps:
        A("s_cmp_lg_u32 s3, 0\ns_cbranch_scc1 L_end")
        A.stamp_flush([0, 6, 7, 17, 12, 13, 14, 18, 19, 15, 21])
    A("s_endpgm")
    A("L_again:")
    A("s_mov_b32 s0, %d\ns_mov_b32 s1, -1\ns_mov_b32 s54, %d\ns_mov_b32 s42, 1792\ns_mov_b64 exec, -1\ns_branch L_tail" % (SPIN * 2 - 1, WS_END))
    A("L_final:")
    A("s_barrier")
    A("ds_read_u16_d16_hi v208, v207 offset:%d" % L_H)
    A("s_cmp_lg_u32 s65, 0\ns_cbranch_scc1 L_noE")
    A("s_mov_b64 exec, 1\nbuffer_store_dwordx4 v[%d:%d], v205, s[52:55], 0 offen offset:%d\ns_mov_b64 exec, -1" % (V_TAG, V_TAG + 3, WS_E))
    A("L_noE:")
    A("s_barrier\ns_barrier")
    if ack >= 3: A("s_sleep %d" % ack)
    A.gather2([[(200, 0), (201, 0)], [(202, 0), (203, 0)]], 24, 20, "s18", sleep=ps3, first=True)
    A("v_pk_add_f32 v[24:25], v[24:25], v[28:29]\nv_pk_add_f32 v[26:27], v[26:27], v[30:31]")
    A("v_pk_fma_f32 v[32:33], v[36:37], v[204:205], v[32:33] op_sel_hi:[1,0,1]\nv_pk_fma_f32 v[34:35], v[38:39], v[204:205], v[34:35] op_sel_hi:[1,0,1]")
    A("v_pk_add_f32 v[24:25], v[24:25], v[32:33]\nv_pk_add_f32 v[26:27], v[26:27], v[34:35]")
    A.swapreduce(24)
    for r in (4, 8):
        A.nop(2)
        A("v_add_f32_dpp v24, v24, v24 row_ror:%d %s" % (r, DPP))
    A("s_waitcnt lgkmcnt(0)")
    A("v_cvt_pk_bf16_f32 v24, v24, v24\nv_lshlrev_b32 v24, 16, v24\nv_add_f32 v24, v208, v24\nv_cvt_pk_bf16_f32 v24, v24, v24")
    A("s_mov_b64 exec, s[16:17]")
    A("buffer_store_short v24, v206, s[40:43], s19 offen")
    A("s_cmp_eq_u32 s0, 0\ns_cbranch_scc1 L_again")
    if stamps:
        A.stamp(20)
        A("s_waitcnt vmcnt(0)")
        A.stamp(16)
        A.stamp_flush([20, 16])
    A("L_end:\ns_endpgm")
    A.L.append('.section .rodata,"a"\n.p2align 6\n.amdhsa_kernel %s_kernel' % NAME)
    A.L.append("  .amdhsa_next_free_vgpr 256\n  .amdhsa_next_free_sgpr 100\n  .amdhsa_accum_offset 256")
    A.L.append("  .amdhsa_group_segment_fixed_size 0\n  .amdhsa_kernarg_size 96\n  .amdhsa_user_sgpr_count 2\n  .amdhsa_user_sgpr_kernarg_segment_ptr 1\n  .amdhsa_system_sgpr_workgroup_id_x 1\n  .amdhsa_float_denorm_mode_32 3\n.end_amdhsa_kernel")
    return "\n".join(A.L) + "\n"

if __name__ == "__main__":
    out = sys.argv[1]
    kw = {}
    for a in sys.argv[2:]:
        k, v = a.split("="); kw[k] = int(v)
    open(out, "w").write(build(**kw))
```

```python
import sys, math, struct
NAME = "sequential_preLN__gqa_block_cached__geglu_ffn__decode"
HEADER = open("cdna_kernels/%s.s.ref" % NAME).read().split("; Override launch")[0]

DOC = """
; ---------------------------------------------------------------------------------------------------------
; ---------------------------------------------------------------------------------------------------------"""

NA = 12
NSL = 22
WS_E = 0
WS_Q = 0x1000
WS_AP = 0xA000
WS_ML = 0x18000
WS_OP = 0x20000
WS_FP = 0xA0000
WS_END = 0x100000
STAMP_OFF = 128 << 20
RING = 8
MISC = RING * 16384
L_Q = 0; L_P = 1024; PSTR = 1536; L_LSUM = 4096; L_MX = 4736
L_LAND = 4816; L_QF = 4820; L_C1 = 4824; L_C2 = 4828
L_PROG = 4848
R_A = 0; R_G = 65536; R_U = R_G + 28672; R_D = R_U + 28672; SMISC = R_D + 28672
L_LN = 0; L_SO = 0; OSTR = 1088; L_H = 2304; HSTR = 960; L_ACT = 4352; L_ST = 4480
LDS_TOTAL = SMISC + 5120
assert MISC + 8192 <= LDS_TOTAL <= 163840
TAGM = 0x3ff
BUDGET = 1 << 22
V_G = 1; V_N = 2; V_MISC = 3; V_TAG = 4
DPP = "row_mask:0xf bank_mask:0xf"
C1 = 0.0625 * math.log2(math.e)

def f32(x): return "0x%08x" % struct.unpack("<I", struct.pack("<f", x))[0]

class Gen:
    def __init__(self, stamps):
        self.L = []; self.uid = 0; self.stamps = stamps
    def __call__(self, s):
        for line in s.split("\n"):
            line = line.strip()
            if line: self.L.append(("" if line.endswith(":") else "    ") + line)
    def c(self, s): self.L.append("    ; " + s)
    def lab(self, p="L"):
        self.uid += 1
        return "%s_%d" % (p, self.uid)
    def nop(self, n):
        while n > 0:
            k = min(n, 16); self("s_nop %d" % (k - 1)); n -= k
    def mask(self, m32, dst="s[56:57]"):
        self("s_mov_b32 s56, 0x%08x\ns_mov_b32 s57, s56" % m32)
        if dst == "exec": self("s_mov_b64 exec, s[56:57]")
    def stamp(self, idx):
        if not self.stamps: return
        self("s_memrealtime s[%d:%d]\ns_waitcnt lgkmcnt(0)" % (68 + 2 * (idx % 16), 69 + 2 * (idx % 16)))
    def stamp_flush(self, idxs):
        if not self.stamps: return
        self("s_mov_b64 exec, 1\ns_mul_i32 s60, s2, 256\ns_add_u32 s60, s60, %d\nv_mov_b32 v255, s60" % STAMP_OFF)
        for idx in idxs:
            self("v_mov_b32 v250, s%d\nv_mov_b32 v251, s%d" % (68 + 2 * (idx % 16), 69 + 2 * (idx % 16)))
            self("global_store_dwordx2 v255, v[250:251], s[26:27] offset:%d\ns_nop 1" % (idx * 8))
        self("s_mov_b64 exec, -1")
    def again(self, l, sleep):
        if sleep: self("s_sleep %d" % sleep)
        self("s_sub_u32 s64, s64, %d\ns_cbranch_scc0 %s\ns_mov_b32 s64, 0" % (1 + sleep // 2, l))
    def lds_wait_ge(self, off, sreg, target, vt, cached=True, sleep=1):
        d = self.lab("Lw"); l = self.lab("Lw")
        if cached:
            self("s_cmp_ge_u32 s%d, %s\ns_cbranch_scc1 %s" % (sreg, target, d))
        self("%s:" % l)
        self("ds_read_b32 v%d, v%d offset:%d\ns_waitcnt lgkmcnt(0)" % (vt, V_MISC, off))
        self("v_readfirstlane_b32 s%d, v%d\ns_cmp_ge_u32 s%d, %s\ns_cbranch_scc1 %s" % (sreg, vt, sreg, target, d))
        self.again(l, sleep)
        self("%s:" % d)
    def lds_signal_add(self, off, vt):
        self("s_mov_b64 exec, 1\nv_mov_b32 v%d, 1\nds_add_u32 v%d, v%d offset:%d\ns_mov_b64 exec, -1" % (vt, V_MISC, vt, off))
    def _load(self, rr, va, soff, oo):
        self("buffer_load_dwordx4 v[%d:%d], v%d, s[52:55], %s offen offset:%d sc1" % (rr, rr + 3, va, soff, oo))
    def _check(self, regs, vt, dst):
        w = []
        for rr in regs:
            for k in range(4):
                self("v_xor_b32 v%d, s%d, v%d" % (rr + k, 28 + k, rr + k)); w.append(rr + k)
        self("v_or3_b32 v%d, v%d, v%d, v%d" % (vt, w[0], w[1], w[2])); w = w[3:]
        while len(w) > 1:
            self("v_or3_b32 v%d, v%d, v%d, v%d" % (vt, vt, w[0], w[1])); w = w[2:]
        self("v_bitop3_b32 v%d, v%d, v%d, s58 bitop3:0xa8\nv_cmp_ne_u32 %s, 0, v%d" % (vt, vt, w[0], dst, vt))
    def gather(self, offs, vd, vt, soff, sleep):
        l = self.lab("Lg"); d = self.lab("Lg")
        self("%s:" % l)
        for i, (va, oo) in enumerate(offs): self._load(vd + 4 * i, va, soff, oo)
        self("s_waitcnt vmcnt(0)")
        self._check([vd + 4 * i for i in range(len(offs))], vt, "vcc")
        self("s_cbranch_vccz %s" % d)
        self.again(l, sleep)
        self("%s:" % d)
    def gather2(self, groups, vd, vt, soff, sentinel=None, first=False, MS=(4, 6, 8)):
        regs = []; r = vd
        for g in groups:
            regs.append([r + 4 * k for k in range(len(g))]); r += 4 * len(g)
        n = len(groups)
        M = ["s[%d:%d]" % (m, m + 1) for m in MS]
        def load(i):
            for (va, oo), rr in zip(groups[i], regs[i]): self._load(rr, va, soff, oo)
        def anyleft():
            self("s_or_b64 s[14:15], %s, %s" % (M[0], M[1]))
            for i in range(2, n): self("s_or_b64 s[14:15], s[14:15], %s" % M[i])
        if sentinel is not None:
            l = self.lab("Ls"); d = self.lab("Ls")
            self.mask(sentinel, "exec")
            self("%s:" % l)
            self._load(vd, groups[0][0][0], soff, groups[0][0][1])
            self("s_waitcnt vmcnt(0)")
            self._check([vd], vt, "vcc")
            self("s_cmp_lg_u64 vcc, exec\ns_cbranch_scc1 %s" % d)
            self.again(l, 6)
            self("%s:" % d)
        l = self.lab("Lg"); d = self.lab("Lg"); dd = self.lab("Lg")
        if first:
            for i in range(n): load(i)
            left = sum(len(g) for g in groups)
            for i in range(n):
                left -= len(groups[i])
                self("s_waitcnt vmcnt(%d)" % left)
                self._check(regs[i], vt, M[i])
            anyleft()
            self("s_cbranch_scc0 %s" % dd)
        else:
            for i in range(n): self("s_mov_b64 %s, -1" % M[i])
        self("%s:" % l)
        for i in range(n):
            k = self.lab("Lk")
            self("s_mov_b64 exec, %s\ns_cbranch_execz %s" % (M[i], k))
            load(i)
            self("%s:" % k)
        self("s_waitcnt vmcnt(0)")
        for i in range(n):
            k = self.lab("Lk")
            self("s_mov_b64 exec, %s\ns_cbranch_execz %s" % (M[i], k))
            self._check(regs[i], vt, M[i])
            self("%s:" % k)
        anyleft()
        self("s_cbranch_scc0 %s" % d)
        self.again(l, 0)
        self("%s:\ns_mov_b64 exec, -1\n%s:" % (d, dd))
    def tag4(self, v):
        for k in range(4):
            self("v_and_or_b32 v%d, v%d, s59, v%d" % (v + k, v + k, V_TAG + k))
    def swapreduce(self, v):
        self.nop(1)
        self("v_permlane16_swap_b32 v%d, v%d\nv_permlane16_swap_b32 v%d, v%d" % (v, v + 1, v + 2, v + 3))
        self("v_add_f32 v%d, v%d, v%d\nv_add_f32 v%d, v%d, v%d" % (v, v, v + 1, v + 2, v + 2, v + 3))
        self.nop(2)
        self("v_permlane32_swap_b32 v%d, v%d" % (v, v + 2))
        self("v_add_f32 v%d, v%d, v%d" % (v, v, v + 2))
    def swapreduce2(self, v, u):
        self("v_permlane16_swap_b32 v%d, v%d\nv_permlane16_swap_b32 v%d, v%d" % (v, v + 1, v + 2, v + 3))
        self("v_permlane16_swap_b32 v%d, v%d\nv_permlane16_swap_b32 v%d, v%d" % (u, u + 1, u + 2, u + 3))
        self("v_add_f32 v%d, v%d, v%d\nv_add_f32 v%d, v%d, v%d" % (v, v, v + 1, v + 2, v + 2, v + 3))
        self("v_add_f32 v%d, v%d, v%d\nv_add_f32 v%d, v%d, v%d" % (u, u, u + 1, u + 2, u + 2, u + 3))
        self("v_permlane32_swap_b32 v%d, v%d" % (v, v + 2))
        self.nop(1)
        self("v_permlane32_swap_b32 v%d, v%d" % (u, u + 2))
        self("v_add_f32 v%d, v%d, v%d\nv_add_f32 v%d, v%d, v%d" % (v, v, v + 2, u, u, u + 2))
    def ln_stats_list(self, vs, vq, vm, vr, t):
        return ["v_mul_f32 v%d, %s, v%d" % (vs, f32(1.0 / 448), vs), "v_mul_f32 v%d, %s, v%d" % (vq, f32(1.0 / 448), vq),
                "v_fma_f32 v%d, -v%d, v%d, v%d" % (vq, vs, vs, vq), "v_max_f32 v%d, 0, v%d" % (vq, vq),
                "v_cvt_pk_bf16_f32 v%d, v%d, v%d" % (t, vs, vq),
                "v_and_b32 v%d, 0xffff0000, v%d" % (vq, t), "v_lshlrev_b32 v%d, 16, v%d" % (vm, t),
                "v_add_f32 v%d, %s, v%d" % (vq, f32(1e-5), vq), "v_cvt_pk_bf16_f32 v%d, v%d, v%d" % (t, vq, vq),
                "v_lshlrev_b32 v%d, 16, v%d" % (vq, t), "v_sqrt_f32 v%d, v%d" % (vq, vq), "s_nop 0",
                "v_cvt_pk_bf16_f32 v%d, v%d, v%d" % (t, vq, vq), "v_lshlrev_b32 v%d, 16, v%d" % (vq, t),
                "v_rcp_f32 v%d, v%d" % (vr, vq), "s_nop 0"]
    def tags_setup(self):
        for k in range(4):
            self("s_add_u32 s%d, s%d, %d\ns_and_b32 s%d, s%d, %d\nv_mov_b32 v%d, s%d" % (28 + k, 28 + k, (1, 7, 19, 45)[k], 28 + k, 28 + k, TAGM, V_TAG + k, 28 + k))

def mfma(d, a, b, first, shape="16x16x32", w=4):
    return "v_mfma_f32_%s_bf16 v[%d:%d], v[%d:%d], v[%d:%d], %s" % (shape, d, d + 3, a, a + w - 1, b, b + w - 1, "0" if first else "v[%d:%d]" % (d, d + 3))

def build(stamps=0, wink=32, winv=48, qp=13, fast=1, back=18, pre=4, dpol=1, apf=1, dmask=1):
    A = Gen(stamps)
    A.L.append(HEADER.rstrip())
    A.L.append("; @launch grid=(256,1,1) block=(512,1,1) lds=%d" % LDS_TOTAL)
    A.L.append(DOC.strip())
    A.L.append('.amdgcn_target "amdgcn-amd-amdhsa--gfx950"')
    A.L.append(".text\n.globl %s_kernel\n.p2align 8\n.type %s_kernel,@function\n%s_kernel:" % (NAME, NAME, NAME))
    A("s_cmp_ge_u32 s2, 256\ns_cbranch_scc1 L_end")
    A("s_load_dwordx16 s[4:19], s[0:1], 0\ns_load_dwordx8 s[20:27], s[0:1], 64")
    if stamps: A("s_memrealtime s[68:69]")
    A("v_lshrrev_b32 v1, 6, v0\nv_and_b32 v0, 63, v0\nv_readfirstlane_b32 s3, v1")
    A.c("s3 = wave, s32 = group (batch*8 + kv head), s33 = split, s34 = batch, s35 = kv head")
    A("s_and_b32 s32, s2, 15\ns_lshr_b32 s33, s2, 4\ns_lshr_b32 s34, s32, 3\ns_and_b32 s35, s32, 7")
    A("v_mov_b32 v%d, %d\ns_mov_b32 s64, %d" % (V_MISC, MISC, BUDGET))
    A("s_cmp_ge_u32 s33, %d\ns_cbranch_scc1 L_service" % NA)
    A.c("keys [s65, s66) = [split*8192/12, (split+1)*8192/12)")
    A("s_mul_i32 s65, s33, 43691\ns_add_u32 s66, s65, 43691\ns_lshr_b32 s65, s65, 6\ns_lshr_b32 s66, s66, 6")
    for a in range(NA + 1): assert (a * 43691) >> 6 == a * 8192 // NA
    for a in range(NA): assert 0 < (a + 1) * 8192 // NA - a * 8192 // NA - 32 * (NSL - 1) <= 16
    A("s_cmp_lg_u32 s3, 1\ns_cbranch_scc1 L_notloader")
    A.c("======== attention WG, wave 1: loader. slot n (16 x 1KB) -> ring position n & 7; rows past the range read as 0")
    A("s_setprio 3")
    A.c("K rows: 16B chunk c of row r is stored at chunk c ^ (r & 15)")
    A("v_lshrrev_b32 v1, 5, v0\nv_and_b32 v2, 31, v0\nv_xor_b32 v4, v2, v1\nv_lshlrev_b32 v4, 4, v4\nv_lshl_or_b32 v8, v1, 9, v4")
    for j in range(1, 8):
        A("v_xor_b32 v%d, %d, v8" % (8 + j, 32 * j))
    A("s_lshl_b32 s45, s32, 22\ns_lshl_b32 s44, s65, 9\ns_add_u32 s44, s44, s45\ns_lshl_b32 s38, s66, 9\ns_add_u32 s38, s38, s45")
    EV0 = wink // 16
    A("s_mov_b32 s45, s44\ns_mov_b32 s46, 0\ns_mov_b32 s47, 0\ns_mov_b32 s48, 0\ns_mov_b32 s50, %d\ns_mov_b32 m0, 0\ns_mov_b32 s39, 0x20000" % EV0)
    A("s_waitcnt lgkmcnt(0)")
    A("s_mov_b32 s36, s6\ns_mov_b32 s37, s7")
    def land(k):
        A("s_sub_i32 s56, s46, %d\ns_max_i32 s48, s48, s56\nv_mov_b32 v20, s48\nds_write_b32 v%d, v20 offset:%d" % (k, V_MISC, L_LAND))
    def body(W):
        for j in range(16):
            if j % 8 == 0:
                A("s_waitcnt vmcnt(%d)" % (W - 8))
                if (j - (W - 8)) % 16 == 0: land((W - 8 - j) // 16)
            A("buffer_load_dwordx4 v%d, s[36:39], s45 offen nt lds" % (8 + j % 8))
            A("s_add_u32 m0, m0, 1024\ns_add_u32 s45, s45, 1024")
    A("L_slot:")
    A("s_add_u32 s56, s47, %d\ns_cmp_lt_u32 s46, s56\ns_cbranch_scc0 L_waitfree" % RING)
    A("L_go:")
    A("s_cmp_ge_u32 s46, %d\ns_cbranch_scc1 L_go2" % NSL)
    body(wink)
    A("s_branch L_go3\nL_go2:")
    body(winv)
    A("L_go3:")
    A("s_and_b32 m0, m0, %d" % (MISC - 1))
    A("s_add_u32 s46, s46, 1\ns_cmp_lg_u32 s46, s50\ns_cbranch_scc1 L_slot")
    A("s_cmp_lg_u32 s46, %d\ns_cbranch_scc1 L_evV" % EV0)
    A("s_barrier\ns_mov_b32 s50, %d\ns_branch L_slot" % NSL)
    A("L_evV:\ns_cmp_lg_u32 s46, %d\ns_cbranch_scc1 L_ldone" % NSL)
    A.stamp(1)
    A.c("V rows: 32B chunk c of row r is stored at chunk c ^ (r & 7)")
    A("v_lshlrev_b32 v4, 1, v1\nv_xor_b32 v4, v2, v4\nv_lshlrev_b32 v4, 4, v4\nv_lshl_or_b32 v8, v1, 9, v4")
    for j in range(1, 8):
        A("v_xor_b32 v%d, %d, v8" % (8 + j, 64 * (j & 3)))
    A("s_mov_b32 s36, s8\ns_mov_b32 s37, s9\ns_mov_b32 s45, s44\ns_mov_b32 s50, %d\ns_branch L_slot" % (2 * NSL))
    A("L_ldone:")
    A.stamp(3)
    A("s_waitcnt vmcnt(32)")
    land(2)
    A.c("the last two slots are handed over by barrier")
    A("s_waitcnt vmcnt(16)\ns_barrier\ns_waitcnt vmcnt(0)\ns_barrier")
    A.stamp(4)
    A.stamp_flush([0, 1, 3, 4])
    A("s_endpgm")
    A("L_waitfree:")
    A.c("ring position not known to be free: re-read the readers' progress, publishing landed slots meanwhile")
    def prog_check():
        A("ds_read_b128 v[20:23], v%d offset:%d\nds_read_b64 v[24:25], v%d offset:%d\ns_waitcnt lgkmcnt(0)" % (V_MISC, L_PROG, V_MISC, L_PROG + 16))
        A("v_min3_u32 v20, v20, v21, v22\nv_min3_u32 v23, v23, v24, v25\nv_min_u32 v20, v20, v23\ns_nop 0\nv_readfirstlane_b32 s47, v20")
        A("s_add_u32 s56, s47, %d\ns_cmp_lt_u32 s46, s56\ns_cbranch_scc1 L_go" % RING)
    for k in (2, 1, 0):
        prog_check()
        A("s_waitcnt vmcnt(%d)" % (16 * k))
        land(k)
    A("L_wf2:")
    prog_check()
    A.again("L_wf2", 1)
    A("s_branch L_go")

    def common_setup():
        A("v_lshrrev_b32 v%d, 4, v0\nv_and_b32 v%d, 15, v0" % (V_G, V_N))
        A("s_waitcnt lgkmcnt(0)")
        A("s_load_dwordx4 s[28:31], s[26:27], %d" % WS_E)
        A("s_mov_b32 s52, s26\ns_mov_b32 s53, s27\ns_mov_b32 s54, %d\ns_mov_b32 s55, 0x20000" % WS_END)
        A("s_mov_b32 s58, %d\ns_mov_b32 s59, %d" % (TAGM, 0xffffffff & ~TAGM))
    A("L_notloader:")
    common_setup()
    A("s_cmp_lg_u32 s3, 0\ns_cbranch_scc1 L_noinit")
    A("v_mov_b32 v8, 0\nv_lshl_add_u32 v9, v0, 2, v%d\nds_write_b32 v9, v8 offset:%d" % (V_MISC, L_LSUM))
    A("s_mov_b64 exec, 0xff\nds_write_b32 v9, v8 offset:%d\nds_write_b32 v9, v0 offset:%d" % (L_LAND, L_PROG))
    A("s_mov_b64 exec, 0x3\nv_mov_b32 v10, 0xff800000\nds_write_b32 v9, v10 offset:%d\ns_mov_b64 exec, -1" % L_MX)
    A("L_noinit:")
    A("s_sub_u32 s61, s3, 2")
    A("s_waitcnt lgkmcnt(0)")
    A.tags_setup()
    A("s_mov_b32 s48, 0\ns_barrier")
    A("s_cmp_ge_u32 s3, 2\ns_cbranch_scc1 L_cons")
    A.c("======== attention WG, wave 0: fetch q (once it has long been written), later publish (max, sum)")
    A("s_lshl_b32 s45, s34, 14\ns_lshl_b32 s46, s35, 11\ns_add_u32 s45, s45, s46\ns_add_u32 s45, s45, %d" % WS_Q)
    A("v_lshlrev_b32 v16, 4, v0")
    A.lds_wait_ge(L_LAND, 48, str(qp), 17)
    A.stamp(7)
    A.gather([(16, 0), (16, 1024)], 20, 17, "s45", 16)
    A("s_mov_b32 s56, 0x07060302")
    for i in range(4):
        A("v_perm_b32 v%d, v%d, v%d, s56" % (28 + i, 21 + 2 * i, 20 + 2 * i))
    A("v_lshl_add_u32 v16, v0, 3, v%d" % V_MISC)
    A("ds_write_b64 v16, v[28:29] offset:%d\nds_write_b64 v16, v[30:31] offset:%d" % (L_Q, L_Q + 512))
    A.c("flag = 2 if all eight writers of this q (the readers of our partials) run on our XCC, else 1")
    A("s_getreg_b32 s56, hwreg(HW_REG_XCC_ID)\ns_and_b32 s56, s56, 15\nv_bfe_u32 v18, v20, 10, 4\nv_bfe_u32 v19, v24, 10, 4")
    A("v_cmp_ne_u32 vcc, s56, v18\nv_cmp_ne_u32 s[44:45], s56, v19\ns_nop 0\ns_or_b64 vcc, vcc, s[44:45]\ns_cselect_b32 s67, 1, %d" % (2 if fast else 1))
    A("v_mov_b32 v17, s67\nds_write_b32 v%d, v17 offset:%d" % (V_MISC, L_QF))
    A.stamp(8)
    A.lds_wait_ge(L_C2, 47, "6", 8, cached=False, sleep=4)
    A("ds_read_b32 v10, v9 offset:%d\nds_read_b64 v[12:13], v%d offset:%d\ns_waitcnt lgkmcnt(0)" % (L_LSUM, V_MISC, L_MX))
    for r in (1, 2, 4, 8):
        A("v_add_f32_dpp v10, v10, v10 row_ror:%d %s" % (r, DPP))
        A.nop(2)
    A("v_readlane_b32 s56, v10, 16\nv_readlane_b32 s57, v10, 32\nv_readlane_b32 s60, v10, 48")
    A.nop(1)
    A("v_add_f32 v14, s56, v10\nv_mov_b32 v15, s57\nv_add_f32 v15, s60, v15")
    A.tag4(12)
    A("s_lshl_b32 s45, s32, 11\ns_add_u32 s45, s45, %d\ns_lshl_b32 s46, s33, 7\nv_mov_b32 v9, s46" % WS_ML)
    A("s_mov_b64 exec, 1\ns_cmp_eq_u32 s67, 2\ns_cbranch_scc1 L_mlfast")
    A("buffer_store_dwordx4 v[12:15], v9, s[52:55], s45 offen sc1\ns_branch L_mldone\nL_mlfast:")
    A("buffer_store_dwordx4 v[12:15], v9, s[52:55], s45 offen\nL_mldone:")
    A.stamp_flush([7, 8])
    A("s_endpgm")

    A("L_cons:")
    A.c("======== attention WG, waves 2..7 (c = s61): K slots c, c+6, ... -> registers, scores once q is there")
    KA = 8; KT = 244; KD = [16, 80, 144, 16]; QB = 208; AC = 240; S = 248
    A("v_xor_b32 v12, v%d, v%d\nv_lshlrev_b32 v12, 4, v12\nv_lshl_or_b32 v%d, v%d, 9, v12" % (V_G, V_N, KA, V_N))
    for k in range(1, 4):
        A("v_xor_b32 v%d, %d, v%d" % (KA + k, 64 * k, KA))
    A("s_add_u32 s46, s61, 1\ns_lshl_b32 s44, s61, 14")
    A("s_lshl_b32 s62, s61, 2\nv_add_u32 v13, s62, v%d" % V_MISC)
    def kread(i):
        for k in range(4):
            A("v_add_u32 v%d, s44, v%d" % (KT + k, KA + k))
        A.lds_wait_ge(L_LAND, 48, "s46", 12)
        for tt in range(2):
            for kk in range(8):
                r = KD[i] + 32 * tt + 4 * kk
                A("ds_read_b128 v[%d:%d], v%d offset:%d" % (r, r + 3, KT + (kk & 3), tt * 8192 + (kk >> 2) * 256))
        A("s_add_u32 s56, s46, 5\ns_min_u32 s56, s56, %d\nv_mov_b32 v12, s56\ns_add_u32 s46, s46, 6" % NSL)
        A("s_add_u32 s44, s44, %d\ns_and_b32 s44, s44, %d" % (6 * 16384, MISC - 1))
        A("s_waitcnt lgkmcnt(0)")
        A("ds_write_b32 v13, v12 offset:%d" % L_PROG)
    def kcomp(i):
        for kk in range(8):
            for tt in range(2):
                A(mfma(AC + 4 * tt, KD[i] + 32 * tt + 4 * kk, QB + 4 * kk, kk == 0))
        A.mask(0x00030003 << (4 * i))
        A.nop(5)
        for k in range(4):
            A("v_cndmask_b32 v%d, v%d, v%d, s[56:57]" % (S + k, S + k, AC + k))
        A("s_lshl_b64 s[56:57], s[56:57], 2")
        for k in range(4):
            A("v_cndmask_b32 v%d, v%d, v%d, s[56:57]" % (S + k, S + k, AC + 4 + k))
    for i in range(3):
        kread(i)
    A.lds_wait_ge(L_QF, 67, "1", 12, cached=False)
    A("v_and_b32 v12, 1, v%d\nv_lshlrev_b32 v12, 9, v12\nv_lshl_add_u32 v12, v%d, 4, v12\nv_add_u32 v12, v%d, v12" % (V_N, V_G, V_MISC))
    for kk in range(8):
        A("ds_read_b128 v[%d:%d], v12 offset:%d" % (QB + 4 * kk, QB + 4 * kk + 3, L_Q + kk * 64))
    A("s_waitcnt lgkmcnt(0)")
    for i in range(3):
        kcomp(i)
    A("s_cmp_gt_u32 s46, %d\ns_cbranch_scc1 L_kdone" % NSL)
    kread(3); kcomp(3)
    A("L_kdone:")
    A.stamp(9)
    A.c("softmax over this WG's keys. lane holds head n&1, keys 192*(n>>2) + 32c + 16*((n>>1)&1) + 4g + r; keys past the range -> -inf")
    A("v_lshrrev_b32 v23, 2, v%d\nv_mul_u32_u24 v16, 192, v23\nv_and_b32 v22, 2, v%d\nv_lshl_add_u32 v16, v22, 3, v16\nv_lshl_add_u32 v16, v%d, 2, v16" % (V_N, V_N, V_G))
    A("s_sub_u32 s44, s66, s65\ns_lshl_b32 s45, s61, 5\ns_sub_u32 s44, s44, s45\nv_mov_b32 v17, 0xff800000")
    for k in range(4):
        A("v_cmp_gt_u32 vcc, s44, v16\nv_add_u32 v16, 1, v16\ns_nop 0\nv_cndmask_b32 v%d, v17, v%d, vcc" % (S + k, S + k))
    A("v_cvt_pk_bf16_f32 v16, v%d, v%d\nv_cvt_pk_bf16_f32 v17, v%d, v%d" % (S, S + 1, S + 2, S + 3))
    A("v_lshlrev_b32 v%d, 16, v16\nv_and_b32 v%d, 0xffff0000, v16\nv_lshlrev_b32 v%d, 16, v17\nv_and_b32 v%d, 0xffff0000, v17" % (S, S + 1, S + 2, S + 3))
    A("v_max3_f32 v16, v%d, v%d, v%d\nv_max_f32 v16, v16, v%d" % (S, S + 1, S + 2, S + 3))
    for r in (2, 4, 8):
        A.nop(2)
        A("v_max_f32_dpp v16, v16, v16 row_ror:%d %s" % (r, DPP))
    A("v_and_b32 v17, 1, v%d\nv_lshl_add_u32 v18, v17, 2, v%d" % (V_N, V_MISC))
    A.mask(0x00030003, "exec")
    A("ds_max_f32 v18, v16 offset:%d" % L_MX)
    A.lds_signal_add(L_C1, 12)
    A("v_mul_u32_u24 v19, 384, v23\nv_mul_u32_u24 v14, %d, v17\nv_lshl_add_u32 v14, v%d, 4, v14\nv_add_u32 v14, v%d, v14" % (PSTR, V_G, V_MISC))
    A("v_lshl_add_u32 v19, v22, 2, v19\ns_lshl_b32 s62, s61, 6\nv_add3_u32 v19, v19, s62, v14")
    A("v_lshlrev_b32 v20, 7, v17\nv_lshl_add_u32 v20, v%d, 2, v20\ns_lshl_b32 s62, s61, 4\nv_add3_u32 v20, v20, s62, v%d" % (V_G, V_MISC))
    A.lds_wait_ge(L_C1, 47, "6", 12, cached=False, sleep=0)
    A("ds_read_b32 v16, v18 offset:%d\ns_waitcnt lgkmcnt(0)" % L_MX)
    for k in range(4):
        A("v_sub_f32 v%d, v%d, v16\nv_mul_f32 v%d, %s, v%d\nv_exp_f32 v%d, v%d" % (S + k, S + k, S + k, f32(C1), S + k, S + k, S + k))
    A("v_add_f32 v16, v%d, v%d\nv_add_f32 v16, v16, v%d\nv_add_f32 v16, v16, v%d" % (S, S + 1, S + 2, S + 3))
    A("v_cvt_pk_bf16_f32 v24, v%d, v%d\nv_cvt_pk_bf16_f32 v25, v%d, v%d" % (S, S + 1, S + 2, S + 3))
    A("ds_write_b64 v19, v[24:25] offset:%d" % L_P)
    for r in (2, 4, 8):
        A("v_add_f32_dpp v16, v16, v16 row_ror:%d %s" % (r, DPP))
        A.nop(2)
    A("s_mov_b64 exec, s[56:57]\nds_write_b32 v20, v16 offset:%d" % L_LSUM)
    A.lds_signal_add(L_C2, 12)
    A("s_cmp_ge_u32 s3, 4\ns_cbranch_scc1 L_pv")
    A("v_mov_b32 v12, 0x7fff\nds_write_b32 v13, v12 offset:%d\ns_endpgm" % L_PROG)
    A("L_pv:")
    A.c("======== waves 4..7: P.V for dims 64c..64c+63; dim tile t accumulates in columns 2t, 2t+1 (heads) of one D")
    A("s_sub_u32 s61, s3, 4")
    VA = 8; VT = 16; VD = 24; PB = 40; OA = 96
    A("v_lshrrev_b32 v16, 2, v0\nv_and_b32 v18, 7, v16\ns_lshl_b32 s62, s61, 2\nv_xor_b32 v18, s62, v18\nv_lshlrev_b32 v18, 5, v18")
    A("v_lshl_or_b32 v18, v16, 9, v18\nv_and_b32 v16, 3, v0\nv_lshl_or_b32 v%d, v16, 3, v18" % VA)
    for tt in range(1, 4):
        A("v_xor_b32 v%d, %d, v%d" % (VA + tt, 32 * tt, VA))
    for k in range(4):
        A("v_mov_b32 v%d, 0" % (OA + k))
    for k in range(16):
        A("v_mov_b32 v%d, 0" % (PB + k))
    A("v_lshlrev_b32 v112, 7, v%d\nv_lshl_add_u32 v112, v%d, 4, v112" % (V_G, V_N))
    A("s_lshl_b32 s40, s32, 15\ns_lshl_b32 s56, s61, 9\ns_add_u32 s40, s40, s56\ns_lshl_b32 s56, s33, 11\ns_add_u32 s40, s40, s56\ns_add_u32 s40, s40, %d" % WS_OP)
    for tt in range(4):
        A("s_mov_b32 s%d, 0x%08x\ns_mov_b32 s%d, s%d" % (4 + 2 * tt, 0x00030003 << (2 * tt), 5 + 2 * tt, 4 + 2 * tt))
    A("s_mov_b32 s12, 0x00ff00ff\ns_mov_b32 s13, s12")
    A.lds_wait_ge(L_C2, 47, "6", 12, cached=False, sleep=0)
    A.stamp(10)
    A("s_mov_b32 s46, %d\ns_mov_b32 s44, %d" % (NSL + 1, (NSL % RING) * 16384))
    A("L_vloop:")
    for tt in range(4):
        A("s_mov_b64 exec, s[%d:%d]\nds_read_b128 v[%d:%d], v14 offset:%d" % (4 + 2 * tt, 5 + 2 * tt, PB + 4 * tt, PB + 4 * tt + 3, L_P))
    A("s_mov_b64 exec, -1")
    for tt in range(4):
        A("v_add_u32 v%d, s44, v%d" % (VT + tt, VA + tt))
    A("s_cmp_lg_u32 s46, %d\ns_cbranch_scc1 L_vw\ns_barrier\ns_branch L_vg\nL_vw:" % (2 * NSL - 1))
    A.lds_wait_ge(L_LAND, 48, "s46", 12, sleep=0)
    A("L_vg:")
    for tt in range(4):
        A("ds_read_b64_tr_b16 v[%d:%d], v%d" % (VD + 4 * tt, VD + 4 * tt + 1, VT + tt))
        A("ds_read_b64_tr_b16 v[%d:%d], v%d offset:8192" % (VD + 4 * tt + 2, VD + 4 * tt + 3, VT + tt))
    A("v_mov_b32 v12, s46\nv_add_u32 v14, 64, v14\ns_add_u32 s44, s44, 16384\ns_and_b32 s44, s44, %d" % (MISC - 1))
    A("s_add_u32 s46, s46, 1\ns_cmp_le_u32 s46, %d" % (2 * NSL - 1))
    for tt in range(4):
        A("s_waitcnt lgkmcnt(%d)" % (6 - 2 * tt))
        A(mfma(OA, VD + 4 * tt, PB + 4 * tt, False))
    A("ds_write_b32 v13, v12 offset:%d" % L_PROG)
    A("s_cbranch_scc1 L_vloop")
    A.c("last slot: rows 0..15 only")
    for tt in range(4):
        A("s_mov_b64 exec, s[%d:%d]\nds_read_b64 v[%d:%d], v14 offset:%d" % (4 + 2 * tt, 5 + 2 * tt, PB + 4 * tt, PB + 4 * tt + 1, L_P))
    A("s_mov_b64 exec, -1")
    for tt in range(4):
        A("v_add_u32 v%d, s44, v%d" % (VT + tt, VA + tt))
    A("s_cmp_eq_u32 s67, 2\ns_barrier")
    for tt in range(4):
        A("ds_read_b64_tr_b16 v[%d:%d], v%d" % (VD + 4 * tt, VD + 4 * tt + 1, VT + tt))
    for tt in range(4):
        A("s_waitcnt lgkmcnt(%d)" % (3 - tt))
        A(mfma(OA, VD + 4 * tt, PB + 4 * tt, False, "16x16x16", 2))
    A("s_mov_b64 exec, s[12:13]")
    A.nop(7)
    A.tag4(OA)
    A("s_cbranch_scc0 L_slowpub")
    A("buffer_store_dwordx4 v[%d:%d], v112, s[52:55], s40 offen" % (OA, OA + 3))
    A("s_branch L_pubdone\nL_slowpub:")
    A("buffer_store_dwordx4 v[%d:%d], v112, s[52:55], s40 offen sc1" % (OA, OA + 3))
    A("L_pubdone:")
    if stamps:
        A.stamp(11)
        A("s_cmp_lg_u32 s3, 4\ns_cbranch_scc1 L_end")
        A.stamp_flush([9, 10, 11])
    A("s_endpgm")

    A("L_service:")
    A.c("======== service WG: x = wg&7 (s35), y = (wg-192)>>3 (s33). q columns 64*(8x+y); y<7: wo rows 512x.., columns 64y..; F = 7x+y")
    A("v_mov_b32 v%d, %d" % (V_MISC, SMISC))
    common_setup()
    A("s_sub_u32 s33, s2, %d\ns_lshr_b32 s33, s33, 3" % (16 * NA))
    A("s_mov_b32 s40, s4\ns_mov_b32 s41, s5\ns_mov_b32 s42, 1792\ns_mov_b32 s43, 0x20000")
    A("s_cmp_lg_u32 s3, 0\ns_cbranch_scc1 L_s1")
    A("v_lshrrev_b32 v8, 5, v0\nv_and_b32 v9, 31, v0\nv_mul_u32_u24 v10, 896, v8\nv_lshl_add_u32 v10, v9, 4, v10")
    A("v_cmp_gt_u32 vcc, 28, v9\nv_mov_b32 v11, 0x1000\ns_nop 0\nv_cndmask_b32 v11, v11, v10, vcc")
    A("buffer_load_dwordx4 v[16:19], v11, s[40:43], 0 offen\nbuffer_load_dwordx4 v[20:23], v11, s[40:43], 0 offen offset:448")
    A("L_s1:")
    DP = ["", "nt"][dpol]
    def dma(n, vaddr, gstep, lds):
        A("s_mul_i32 s56, s3, %d\ns_add_u32 m0, s56, %d" % (n * 1024, lds))
        for j in range(n):
            if j: A("s_add_u32 m0, m0, 1024\ns_add_u32 s45, s45, %d" % gstep)
            else: A("s_nop 0")
            A("buffer_load_dwordx4 v%d, s[36:39], s45 offen %s lds" % (vaddr, DP))
    A("v_lshrrev_b32 v12, 3, v0\nv_and_b32 v13, 7, v0\nv_lshlrev_b32 v13, 4, v13\nv_lshl_add_u32 v14, v12, 13, v13\nv_mul_u32_u24 v15, 896, v12\nv_add_u32 v15, v15, v13")
    A("s_mov_b32 s36, s10\ns_mov_b32 s37, s11\ns_mov_b32 s38, %d\ns_mov_b32 s39, 0x20000" % (448 * 8192))
    A.c("bring the kv head's wq columns into L2 in 1KB row pieces (rows 56y + 7w + (l>>3)), then fetch our 64 columns")
    A("v_min_u32 v12, 6, v12\nv_lshlrev_b32 v12, 13, v12\nv_lshl_add_u32 v12, v13, 3, v12")
    A("s_mul_i32 s46, s33, 56\ns_mul_i32 s56, s3, 7\ns_add_u32 s46, s46, s56\ns_lshl_b32 s46, s46, 13\ns_lshl_b32 s56, s35, 10\ns_add_u32 s46, s46, s56")
    A("buffer_load_dword v45, v12, s[36:39], s46 offen")
    A("s_lshl_b32 s44, s35, 3\ns_add_u32 s44, s44, s33\ns_lshl_b32 s45, s44, 7\ns_mul_i32 s56, s3, %d\ns_add_u32 s45, s45, s56" % (56 * 8192))
    A("s_waitcnt lgkmcnt(0)")
    A.tags_setup()
    A("s_cmp_lg_u32 s3, 1\ns_cbranch_scc1 L_s2")
    A("v_lshl_add_u32 v9, v0, 4, v%d" % V_MISC)
    A("v_mov_b32 v28, 0\nv_mov_b32 v29, 0\nv_mov_b32 v30, 0\nv_mov_b32 v31, 0\ns_mov_b64 exec, 0xffffffff\nds_write_b128 v9, v[28:31] offset:%d\ns_mov_b64 exec, -1" % L_ST)
    A("L_s2:")
    A("s_cmp_lg_u32 s3, 0\ns_cbranch_scc1 L_s3")
    A.c("wave 0: LayerNorm of both rows of x (half-wave per row), bf16 roundings as in the reference")
    A("s_waitcnt vmcnt(1)")
    A.stamp(5)
    X = 24
    for i in range(8):
        A("v_lshlrev_b32 v%d, 16, v%d\nv_and_b32 v%d, 0xffff0000, v%d" % (X + 2 * i, 16 + i, X + 2 * i + 1, 16 + i))
    A("v_add_f32 v40, v%d, v%d\nv_mul_f32 v41, v%d, v%d\nv_fmac_f32 v41, v%d, v%d" % (X, X + 1, X, X, X + 1, X + 1))
    for i in range(2, 16):
        A("v_add_f32 v40, v40, v%d\nv_fmac_f32 v41, v%d, v%d" % (X + i, X + i, X + i))
    for r in (1, 2, 4, 8):
        A.nop(1)
        A("v_add_f32_dpp v40, v40, v40 row_ror:%d %s\nv_add_f32_dpp v41, v41, v41 row_ror:%d %s" % (r, DPP, r, DPP))
    A("v_mov_b32 v42, v40\nv_mov_b32 v43, v41")
    A.nop(2)
    A("v_permlane16_swap_b32 v40, v42\nv_permlane16_swap_b32 v41, v43")
    A("v_add_f32 v40, v40, v42\nv_add_f32 v41, v41, v43")
    A("\n".join(A.ln_stats_list(40, 41, 42, 43, 44)))
    for i in range(8):
        a, b = X + 2 * i, X + 2 * i + 1
        A("v_sub_f32 v%d, v%d, v42\nv_sub_f32 v%d, v%d, v42\nv_cvt_pk_bf16_f32 v44, v%d, v%d" % (a, a, b, b, a, b))
        A("v_lshlrev_b32 v%d, 16, v44\nv_and_b32 v%d, 0xffff0000, v44" % (a, b))
        A("v_mul_f32 v%d, v%d, v43\nv_mul_f32 v%d, v%d, v43\nv_cvt_pk_bf16_f32 v%d, v%d, v%d" % (a, a, b, b, 16 + i, a, b))
    A("v_add_u32 v10, v%d, v10" % V_MISC)
    A.mask(0x0fffffff, "exec")
    A("ds_write_b128 v10, v[16:19] offset:%d\nds_write_b128 v10, v[20:23] offset:%d" % (L_LN, L_LN + 448))
    A("s_mov_b64 exec, -1")
    A("L_s3:")
    A("s_waitcnt vmcnt(0)\ns_barrier")
    dma(7, 14, 8 * 8192, R_A)
    A.c("v9 = fragment row 8g + r, v10 = l&3, v11 = row*128")
    A("v_lshrrev_b32 v9, 2, v%d\nv_lshl_add_u32 v9, v%d, 3, v9\nv_lshlrev_b32 v11, 7, v9\nv_and_b32 v10, 3, v0" % (V_N, V_G))
    A("s_waitcnt vmcnt(0) lgkmcnt(0)\ns_barrier")
    A.stamp(6)
    A("s_cmp_ge_u32 s3, 4\ns_cbranch_scc1 L_s4")
    BQ = 16; AQ = 72
    A("v_and_b32 v8, 1, v%d\nv_mul_u32_u24 v8, 896, v8\nv_lshl_add_u32 v8, v%d, 4, v8\nv_add_u32 v8, v%d, v8" % (V_N, V_G, V_MISC))
    A("v_lshl_add_u32 v12, v10, 3, v11\ns_lshl_b32 s56, s3, 5\nv_add_u32 v12, s56, v12")
    for kk in range(14):
        A("ds_read_b128 v[%d:%d], v8 offset:%d" % (BQ + 4 * kk, BQ + 4 * kk + 3, L_LN + kk * 64))
        A("ds_read_b64_tr_b16 v[%d:%d], v12 offset:%d" % (AQ + 4 * kk, AQ + 4 * kk + 1, R_A + kk * 4096))
        A("ds_read_b64_tr_b16 v[%d:%d], v12 offset:%d" % (AQ + 4 * kk + 2, AQ + 4 * kk + 3, R_A + kk * 4096 + 512))
    A("s_waitcnt lgkmcnt(0)")
    for kk in range(14):
        A(mfma(128, AQ + 4 * kk, BQ + 4 * kk, kk == 0))
    A("v_and_b32 v16, 1, v%d\nv_lshlrev_b32 v16, 14, v16\nv_lshl_add_u32 v16, v%d, 4, v16" % (V_N, V_G))
    A("s_lshl_b32 s45, s44, 8\ns_lshl_b32 s56, s3, 6\ns_add_u32 s45, s45, s56\ns_add_u32 s45, s45, %d" % WS_Q)
    A("s_getreg_b32 s46, hwreg(HW_REG_XCC_ID)\ns_and_b32 s46, s46, 15\ns_lshl_b32 s46, s46, 10")
    A("v_cvt_pk_bf16_f32 v12, v128, v129\nv_cvt_pk_bf16_f32 v13, v130, v131")
    A("v_lshl_or_b32 v128, v12, 16, v%d\nv_and_b32 v129, 0xffff0000, v12\nv_or_b32 v129, v129, v%d" % (V_TAG, V_TAG + 1))
    A("v_lshl_or_b32 v130, v13, 16, v%d\nv_and_b32 v131, 0xffff0000, v13\nv_or_b32 v131, v131, v%d" % (V_TAG + 2, V_TAG + 3))
    A("v_or_b32 v128, s46, v128")
    A.mask(0x00030003, "exec")
    A("buffer_store_dwordx4 v[128:131], v16, s[52:55], s45 offen sc1")
    A("s_mov_b64 exec, -1")
    A.stamp(7)
    A("L_s4:")
    A("s_cmp_lt_u32 s33, 7\ns_cbranch_scc1 L_s5")
    A.c("y == 7: touch the o-partial lines of this kv head so that later polls of them hit L2; done")
    A("s_lshr_b32 s56, s3, 2\ns_lshl_b32 s47, s56, 3\ns_add_u32 s47, s47, s35\ns_lshl_b32 s47, s47, 15\ns_and_b32 s56, s3, 3\ns_mul_i32 s56, s56, 6144\ns_add_u32 s47, s47, s56\ns_add_u32 s47, s47, %d" % WS_OP)
    A("v_min_u32 v8, 47, v0\nv_lshlrev_b32 v8, 7, v8\nbuffer_load_dword v9, v8, s[52:55], s47 offen sc1\ns_endpgm")
    A("L_s5:")
    A("s_mul_i32 s65, s35, 7\ns_add_u32 s65, s65, s33")
    A.c("row-wise L2 fill of gate/up (rows 64y + 16(w&3) + (l>>2), 4 lines) and wo (64KB contiguous), then the slices -> LDS")
    A("s_cmp_lt_u32 s3, 4\ns_cselect_b32 s36, s16, s18\ns_cselect_b32 s37, s17, s19\ns_mov_b32 s38, %d" % (448 * 3584))
    A("v_lshrrev_b32 v14, 2, v0\nv_mul_u32_u24 v14, 3584, v14\nv_lshl_add_u32 v12, v10, 7, v14\nv_lshl_add_u32 v14, v10, 4, v14")
    A("s_lshl_b32 s46, s33, 2\ns_and_b32 s57, s3, 3\ns_add_u32 s46, s46, s57\ns_mul_i32 s46, s46, %d\ns_mul_i32 s56, s35, 448\ns_and_b32 s56, s56, 0xffffff80\ns_add_u32 s46, s46, s56" % (16 * 3584))
    A("buffer_load_dword v45, v12, s[36:39], s46 offen")
    A("s_mov_b32 s60, s12\ns_mov_b32 s61, s13\ns_mov_b32 s62, %d\ns_mov_b32 s63, 0x20000\nv_lshlrev_b32 v12, 7, v0" % (4096 * 896))
    A("s_lshl_b32 s46, s65, 16\ns_lshl_b32 s56, s3, 13\ns_add_u32 s46, s46, s56")
    A("buffer_load_dword v46, v12, s[60:63], s46 offen")
    A("s_mul_i32 s45, s57, %d\ns_lshl_b32 s56, s65, 6\ns_add_u32 s45, s45, s56" % (112 * 3584))
    A("s_waitcnt vmcnt(1)\ns_barrier")
    dma(7, 14, 16 * 3584, R_G)
    A("v_lshlrev_b32 v14, 4, v0\ns_mul_i32 s45, s65, 28672\ns_mov_b32 s36, s20\ns_mov_b32 s37, s21\ns_mov_b32 s38, %d\ns_lshl_b32 s56, s3, 12\ns_add_u32 s45, s45, s56\ns_add_u32 m0, s56, %d" % (1792 * 896, R_D))
    A("s_cmp_eq_u32 s3, 7\ns_cbranch_scc1 L_s5a")
    for j in range(4):
        A("buffer_load_dwordx4 v14, s[36:39], s45 offen offset:%d nt lds" % (j * 1024))
    A("L_s5a:")
    A("s_mov_b32 s36, s12\ns_mov_b32 s37, s13\ns_mov_b32 s38, %d" % (4096 * 896))
    A("s_mul_i32 s45, s35, %d\ns_mul_i32 s56, s3, %d\ns_add_u32 s45, s45, s56\ns_lshl_b32 s56, s33, 7\ns_add_u32 s45, s45, s56" % (512 * 896, 64 * 896))
    dma(8, 15, 8 * 896, R_A)
    A.c("pull the code below into L2")
    A("s_getpc_b64 s[56:57]\nL_pc:\ns_lshl_b32 s46, s3, 10\nv_add_u32 v14, s46, v14\nv_min_u32 v14, L_end-L_pc-12, v14")
    A("global_load_dwordx4 v[28:31], v14, s[56:57]")
    A.c("addresses and lane masks of the later stages")
    A("v_lshlrev_b32 v21, 4, v%d\nv_add_u32 v22, v21, v%d" % (V_G, V_MISC))
    A("s_mov_b32 s48, 0xcccccccc\ns_mov_b32 s49, s48\ns_mov_b32 s50, 0xf0f0f0f0\ns_mov_b32 s51, s50")
    A("v_and_b32 v12, 8, v%d\nv_lshlrev_b32 v12, 2, v12\nv_lshl_add_u32 v12, v10, 3, v12\nv_lshl_add_u32 v12, v%d, 1, v12\ns_lshl_b32 s56, s3, 7\nv_add_u32 v12, s56, v12" % (V_N, V_G))
    A("v_bfe_u32 v13, v%d, 2, 1\nv_mul_u32_u24 v248, %d, v13\nv_add3_u32 v248, v248, v12, v%d\nv_mul_u32_u24 v13, 896, v13\nv_add_u32 v12, v12, v13\nv_mov_b32 v252, 0\nv_mov_b32 v253, 0" % (V_N, HSTR, V_MISC))
    A("buffer_load_short_d16_hi v252, v12, s[40:43], 0 offen\nbuffer_load_short_d16_hi v253, v12, s[40:43], 0 offen offset:64")
    A("v_and_b32 v12, 1, v0\nv_lshlrev_b32 v12, 3, v12\nv_lshl_add_u32 v12, v9, 6, v12\nv_lshrrev_b32 v13, 1, v10\nv_mul_u32_u24 v13, 28672, v13\ns_lshl_b32 s56, s3, 4\ns_add_u32 s56, s56, %d\nv_add3_u32 v12, v12, v13, s56" % R_G)
    A("v_lshl_add_u32 v13, v10, 3, v11\ns_and_b32 s56, s3, 3\ns_lshl_b32 s56, s56, 5\nv_add_u32 v13, s56, v13")
    A("v_mul_u32_u24 v14, 896, v9\nv_lshl_add_u32 v14, v10, 5, v14\ns_lshl_b32 s56, s3, 7\ns_add_u32 s56, s56, %d\nv_add_u32 v14, s56, v14" % R_D)
    A("s_lshr_b32 s56, s3, 2\ns_lshl_b32 s47, s56, 3\ns_add_u32 s47, s47, s35\ns_lshl_b32 s46, s47, 11\ns_add_u32 s46, s46, %d\ns_lshl_b32 s47, s47, 15" % WS_ML)
    A("s_and_b32 s57, s3, 3\ns_lshl_b32 s44, s57, 9\ns_add_u32 s47, s47, s44\ns_add_u32 s47, s47, %d" % WS_OP)
    A("v_mul_u32_u24 v8, 6144, v%d\nv_lshl_add_u32 v8, v%d, 4, v8\nv_add_u32 v15, 4096, v8" % (V_G, V_N))
    A("v_mul_u32_u24 v16, 3, v%d\nv_min_u32 v17, 11, v%d\nv_add_u32 v16, v16, v17\nv_subrev_u32 v17, 12, v16\nv_min_u32 v16, v16, v17\nv_lshlrev_b32 v16, 7, v16" % (V_G, V_N))
    A("v_and_b32 v17, 8, v%d\nv_lshl_add_u32 v17, v%d, 1, v17\nv_and_b32 v9, 6, v%d\nv_lshl_add_u32 v17, v9, 4, v17\nv_and_b32 v9, 1, v%d\nv_lshl_add_u32 v17, v9, 9, v17" % (V_N, V_G, V_N, V_N))
    A("s_mul_i32 s56, s56, %d\ns_lshl_b32 s44, s57, 7\ns_add_u32 s56, s56, s44\nv_add3_u32 v17, v17, s56, v%d" % (OSTR, V_MISC))
    A("v_mul_u32_u24 v18, %d, v9\nv_add_u32 v18, v18, v22" % OSTR)
    A("s_mul_i32 s44, s35, 28\ns_lshl_b32 s56, s33, 2\ns_add_u32 s44, s44, s56\ns_add_u32 s44, s44, s57\ns_lshl_b32 s44, s44, 7\ns_add_u32 s44, s44, %d" % WS_AP)
    A("s_mul_i32 s61, s65, 3584\ns_lshl_b32 s56, s3, 9\ns_add_u32 s61, s61, s56\ns_add_u32 s61, s61, %d" % WS_FP)
    A("v_lshl_add_u32 v19, v%d, 6, v21\nv_lshlrev_b32 v245, 7, v%d\nv_lshl_add_u32 v245, v%d, 4, v245" % (V_N, V_G, V_N))
    A("s_add_u32 s45, s56, %d\nv_mul_u32_u24 v249, 7168, v%d\nv_lshl_add_u32 v249, v%d, 4, v249" % (WS_AP, V_G, V_N))
    A("v_mul_u32_u24 v250, %d, v9\nv_add_u32 v250, v250, v22\nv_lshl_add_u32 v23, v9, 6, v22" % HSTR)
    A("v_and_b32 v251, 14, v%d\nv_lshlrev_b32 v251, 4, v251\nv_lshl_add_u32 v251, v9, 8, v251\nv_add_u32 v251, v251, v%d" % (V_N, V_MISC))
    A("v_and_b32 v247, 4, v%d\nv_lshlrev_b32 v247, 6, v247\nv_lshl_add_u32 v247, v%d, 3, v247\ns_lshl_b32 s56, s3, 5\nv_add3_u32 v247, v247, s56, v%d" % (V_N, V_G, V_MISC))
    A("v_and_b32 v254, 6, v%d\nv_lshl_add_u32 v254, v9, 6, v254\nv_lshl_add_u32 v254, v%d, 3, v254\ns_lshl_b32 s56, s3, 4\nv_add3_u32 v254, v254, s56, v%d" % (V_N, V_G, V_MISC))
    A("s_mov_b32 s20, 0x00110011\ns_mov_b32 s21, s20\ns_mov_b32 s66, 0x00ff00ff\ns_mov_b32 s67, s66")
    TM = (34, 10, 12, 62)
    for t in range(4):
        A("s_mov_b32 s%d, 0x%08x\ns_mov_b32 s%d, s%d" % (TM[t], 0x00030003 << (2 * t), TM[t] + 1, TM[t]))
    ga = 2 * math.sqrt(2 / math.pi) * math.log2(math.e); gb = ga * 0.044715
    A("v_mov_b32 v246, %s\ns_mov_b32 s60, %s" % (f32(-ga), f32(-gb)))
    AB = 216
    for k in range(16):
        A("v_mov_b32 v%d, 0" % (AB + k))
    A("s_lshr_b32 s19, s65, 1\ns_lshl_b32 s18, s19, 7\ns_and_b32 s56, s65, 1\ns_lshl_b32 s57, s56, 4\ns_add_u32 s18, s18, s57\ns_add_u32 s18, s18, %d" % WS_FP)
    A("v_lshrrev_b32 v9, 2, v0\nv_mul_u32_u24 v200, 3584, v9\nv_lshl_add_u32 v200, v10, 5, v200\nv_cmp_gt_u32 vcc, 8, v9")
    A("v_add_u32 v201, %d, v200\nv_add_u32 v202, %d, v200\nv_add_u32 v203, %d, v200" % (16 * 3584, 32 * 3584, 48 * 3584))
    A("v_cndmask_b32 v203, v200, v203, vcc\nv_cndmask_b32 v204, 0, 1.0, vcc\nv_mov_b32 v205, 0\nv_mov_b32 v208, 0")
    A("v_lshlrev_b32 v206, 3, v10\nv_lshl_add_u32 v206, v%d, 1, v206\ns_lshl_b32 s19, s19, 5" % V_G)
    A("s_mul_i32 s57, s56, %d\ns_add_u32 s57, s57, s19\nv_add3_u32 v207, v206, s57, v%d\ns_mul_i32 s56, s56, 896\ns_add_u32 s19, s19, s56" % (HSTR, V_MISC))
    A("s_mov_b32 s40, s22\ns_mov_b32 s41, s23\ns_mov_b32 s16, 0x000f000f\ns_mov_b32 s17, s16")
    A("s_waitcnt vmcnt(0)\ns_barrier")
    WA = 136; DA = 120
    A.c("weight fragments -> registers: down v120.., gate|up tile (waves 0..3) or wo tile (waves 4..7) v136..")
    for t in range(4):
        A("ds_read_b64_tr_b16 v[%d:%d], v14 offset:%d" % (DA + 4 * t, DA + 4 * t + 1, t * 8))
        A("ds_read_b64_tr_b16 v[%d:%d], v14 offset:%d" % (DA + 4 * t + 2, DA + 4 * t + 3, t * 8 + 4 * 896))
    A("s_cmp_ge_u32 s3, 4\ns_cbranch_scc1 L_s6")
    for kk in range(14):
        A("ds_read_b64_tr_b16 v[%d:%d], v12 offset:%d" % (WA + 4 * kk, WA + 4 * kk + 1, kk * 2048))
        A("ds_read_b64_tr_b16 v[%d:%d], v12 offset:%d" % (WA + 4 * kk + 2, WA + 4 * kk + 3, kk * 2048 + 256))
    A.c("column sums of the tile: LN(h).W = (h.W - mean*colsum(W)) / sigma")
    A("v_mov_b32 v56, 0x3f803f80\nv_mov_b32 v57, v56\nv_mov_b32 v58, v56\nv_mov_b32 v59, v56\ns_nop 1\ns_waitcnt lgkmcnt(0)")
    for kk in range(14):
        A(mfma(24, WA + 4 * kk, 56, kk == 0))
    A.nop(8)
    A("v_cndmask_b32 v24, v24, v25, s[48:49]\nv_cndmask_b32 v26, v26, v27, s[48:49]\nv_cndmask_b32 v244, v24, v26, s[50:51]")
    A("s_branch L_s7\nL_s6:")
    for kk in range(16):
        A("ds_read_b64_tr_b16 v[%d:%d], v13 offset:%d" % (WA + 4 * kk, WA + 4 * kk + 1, kk * 4096))
        A("ds_read_b64_tr_b16 v[%d:%d], v13 offset:%d" % (WA + 4 * kk + 2, WA + 4 * kk + 3, kk * 4096 + 512))
    A("L_s7:")
    A.stamp(17)
    A.c("split weights exp(m - M) / L of batch w>>2: lane n of row g holds split (3g + n) mod 12")
    A.gather([(16, 0)], 24, 20, "s46", 32)
    A("v_cmp_gt_u32 vcc, %d, v%d\nv_mov_b32 v28, v24\nv_mov_b32 v29, v25\nv_cndmask_b32 v26, 0, v26, vcc\nv_cndmask_b32 v27, 0, v27, vcc" % (NA, V_N))
    for r in (1, 2, 4, 8):
        A("v_max_f32_dpp v28, v28, v28 row_ror:%d %s\nv_max_f32_dpp v29, v29, v29 row_ror:%d %s" % (r, DPP, r, DPP))
        A.nop(1)
    A("v_sub_f32 v24, v24, v28\nv_sub_f32 v25, v25, v29\nv_mul_f32 v24, %s, v24\nv_mul_f32 v25, %s, v25\nv_exp_f32 v24, v24\nv_exp_f32 v25, v25\ns_nop 0" % (f32(C1), f32(C1)))
    A("v_mul_f32 v26, v24, v26\nv_mul_f32 v27, v25, v27")
    for r in (1, 2, 4, 8):
        A.nop(1)
        A("v_add_f32_dpp v26, v26, v26 row_ror:%d %s\nv_add_f32_dpp v27, v27, v27 row_ror:%d %s" % (r, DPP, r, DPP))
    A("v_rcp_f32 v26, v26\nv_rcp_f32 v27, v27\ns_nop 0\nv_mul_f32 v24, v24, v26\nv_mul_f32 v25, v25, v27")
    A.nop(2)
    for hh in range(2):
        for i in range(3):
            A("v_mov_b32_dpp v%d, v%d row_newbcast:%d %s" % (210 + 2 * i + hh, 24 + hh, i, DPP))
    A.mask(0xaaaaaaaa)
    for i in range(3):
        A("v_cndmask_b32 v%d, v%d, v%d, s[56:57]" % (210 + 2 * i, 210 + 2 * i, 211 + 2 * i))
    A.c("======== o = sum of weighted partials -> bf16 -> LDS; waves 4..7: o . wo tile -> attn partial of this kv head")
    A.gather2([[(8, 0), (8, 256)], [(8, 2048), (8, 2304)], [(15, 0), (15, 256)]], 24, 20, "s47", sentinel=0x00010001)
    A.stamp(12)
    for r in range(24, 32, 2):
        A("v_pk_mul_f32 v[%d:%d], v[%d:%d], v[210:211] op_sel_hi:[1,0]" % (r, r + 1, r, r + 1))
    for i in range(1, 3):
        for r in range(24, 32, 2):
            A("v_pk_fma_f32 v[%d:%d], v[%d:%d], v[%d:%d], v[%d:%d] op_sel_hi:[1,0,1]" % (r, r + 1, r + 8 * i, r + 8 * i + 1, 210 + 2 * i, 211 + 2 * i, r, r + 1))
    A.swapreduce2(24, 28)
    A("v_cvt_pk_bf16_f32 v24, v24, v28\nds_write_b16 v17, v24 offset:%d\nds_write_b16_d16_hi v17, v24 offset:%d" % (L_SO, L_SO + 16))
    A("s_cmp_lt_u32 s3, 4\ns_waitcnt lgkmcnt(0)\ns_barrier\ns_cbranch_scc1 L_s8")
    def chain(n, rd, mf, side=None):
        for kk in range(min(pre, n)): rd(kk)
        for kk in range(n):
            if kk + pre < n: rd(kk + pre)
            A("s_waitcnt lgkmcnt(%d)" % (min(n - 1, kk + pre) - kk))
            mf(kk)
            if side: side(kk)
    chain(16, lambda kk: A("ds_read_b128 v[%d:%d], v18 offset:%d" % (56 + 4 * kk, 59 + 4 * kk, L_SO + kk * 64)),
          lambda kk: A(mfma(24, WA + 4 * kk, 56 + 4 * kk, kk == 0)))
    A("s_mov_b64 exec, s[34:35]")
    A.nop(7)
    A.tag4(24)
    A("buffer_store_dwordx4 v[24:27], v19, s[52:55], s44 offen sc1")
    A.c("reads racing with the write-through of the same lines delay it: poll only after our stores are acknowledged")
    A("s_mov_b64 exec, -1\ns_waitcnt vmcnt(0)")
    A("L_s8:")
    A("s_cmp_eq_u32 s3, 7\ns_barrier")
    A.stamp(13)
    A("s_cbranch_scc1 L_final")
    A.c("======== waves 0..6: h = x + sum of attn partials (64 columns x 2 rows each), partial LayerNorm sums")
    A.gather2([[(249, 3584 * i), (249, 3584 * i + 256)] for i in range(2)], 28, 20, "s45", first=bool(apf))
    A.stamp(14)
    for k in range(28, 36, 2):
        A("v_pk_add_f32 v[%d:%d], v[%d:%d], v[%d:%d]" % (k, k + 1, k, k + 1, k + 8, k + 9))
    A.swapreduce2(28, 32)
    A("v_cvt_pk_bf16_f32 v28, v28, v32\nv_lshlrev_b32 v29, 16, v28\nv_and_b32 v28, 0xffff0000, v28\nv_add_f32 v29, v252, v29\nv_add_f32 v28, v253, v28\nv_cvt_pk_bf16_f32 v28, v29, v28")
    A("ds_write_b16 v248, v28 offset:%d\nds_write_b16_d16_hi v248, v28 offset:%d" % (L_H, L_H + 64))
    A("v_lshlrev_b32 v29, 16, v28\nv_and_b32 v30, 0xffff0000, v28\nv_add_f32 v32, v29, v30\nv_mul_f32 v33, v29, v29\nv_fmac_f32 v33, v30, v30")
    for m in ("quad_perm:[1,0,3,2]", "quad_perm:[2,3,0,1]", "row_ror:8"):
        A("v_add_f32_dpp v32, v32, v32 %s %s\ns_nop 0\nv_add_f32_dpp v33, v33, v33 %s %s" % (m, DPP, m, DPP))
    A("s_mov_b64 exec, s[20:21]\nds_write_b64 v247, v[32:33] offset:%d\ns_mov_b64 exec, -1" % L_ST)
    A("s_cmp_ge_u32 s3, 4\ns_waitcnt lgkmcnt(0)\ns_barrier")
    A.stamp(18)
    A("s_cbranch_scc1 L_f2")
    A.c("waves 0..3: rows 0..7 of the tile = 8 gate columns, rows 8..15 = the same 8 up columns; column parity = batch")
    HB = 56
    A("ds_read_b128 v[32:35], v251 offset:%d\nds_read_b128 v[36:39], v251 offset:%d" % (L_ST, L_ST + 16))
    side = [["v_pk_add_f32 v[32:33], v[32:33], v[34:35]", "v_pk_add_f32 v[36:37], v[36:37], v[38:39]"], ["v_pk_add_f32 v[40:41], v[32:33], v[36:37]"]]
    for m in ("row_ror:2", "row_ror:4", "row_ror:8"):
        side += [["v_add_f32_dpp v40, v40, v40 %s %s" % (m, DPP), "v_add_f32_dpp v41, v41, v41 %s %s" % (m, DPP)]]
    st = [x for x in A.ln_stats_list(40, 41, 42, 43, 44) if x != "s_nop 0"]
    side += [st[0:2], st[2:4], st[4:6], st[6:8], st[8:10], st[10:11], st[11:13], st[13:14], ["s_nop 7"]]
    assert len(side) == 14
    chain(14, lambda kk: A("ds_read_b128 v[%d:%d], v250 offset:%d" % (HB + 4 * kk, HB + 4 * kk + 3, L_H + kk * 64)),
          lambda kk: A(mfma(24, WA + 4 * kk, HB + 4 * kk, kk == 0)),
          lambda kk: A("\n".join(side[kk])))
    A("v_cndmask_b32 v24, v24, v25, s[48:49]\nv_cndmask_b32 v26, v26, v27, s[48:49]\nv_cndmask_b32 v24, v24, v26, s[50:51]")
    A("v_fma_f32 v24, -v244, v42, v24\nv_mul_f32 v24, v24, v43\nv_cvt_pk_bf16_f32 v24, v24, v24\nv_lshlrev_b32 v24, 16, v24")
    A.c("gelu_tanh(g) = g / (1 + exp(-2u)), u = sqrt(2/pi) (g + 0.044715 g^3)")
    A("v_mul_f32 v26, v24, v24\nv_fma_f32 v26, v26, s60, v246\nv_mul_f32 v26, v26, v24\nv_exp_f32 v26, v26\nv_mov_b32 v27, v24\nv_add_f32 v26, 1.0, v26\nv_rcp_f32 v26, v26")
    A("v_permlane32_swap_b32 v27, v25")
    A("v_mul_f32 v26, v26, v24\nv_cvt_pk_bf16_f32 v26, v26, v26\nv_lshlrev_b32 v26, 16, v26\nv_mul_f32 v26, v26, v25\nv_cvt_pk_bf16_f32 v26, v26, v26")
    A("s_mov_b64 exec, 0x00ff00ff\nds_write_b16 v254, v26 offset:%d" % L_ACT)
    A("L_f2:")
    if dmask:
        A("s_mov_b64 exec, s[%d:%d]\ns_waitcnt lgkmcnt(0)\ns_barrier" % (TM[0], TM[0] + 1))
        A.stamp(19)
        A.c("waves 0..6: act . w_down for 64 columns; tile t accumulates in columns 2t, 2t+1 (batches)")
        for t in range(4):
            if t: A("s_mov_b64 exec, s[%d:%d]" % (TM[t], TM[t] + 1))
            A("ds_read_b128 v[%d:%d], v23 offset:%d" % (AB + 4 * t, AB + 4 * t + 3, L_ACT))
        A("s_mov_b64 exec, -1")
        for t in range(4):
            A("s_waitcnt lgkmcnt(%d)" % (3 - t))
            A(mfma(48, DA + 4 * t, AB + 4 * t, t == 0))
        A("s_mov_b64 exec, s[66:67]")
        A.nop(7)
    else:
        A("s_mov_b64 exec, -1\ns_waitcnt lgkmcnt(0)\ns_barrier")
        A.stamp(19)
        A("ds_read_b128 v[24:27], v23 offset:%d\ns_waitcnt lgkmcnt(0)" % L_ACT)
        for t in range(4):
            A(mfma(48 + 4 * t, DA + 4 * t, 24, True))
        A("s_mov_b64 exec, s[66:67]")
        A.nop(5)
        for k in range(4): A("v_cndmask_b32 v%d, v%d, v%d, s[48:49]" % (48 + k, 48 + k, 52 + k))
        for k in range(4): A("v_cndmask_b32 v%d, v%d, v%d, s[48:49]" % (56 + k, 56 + k, 60 + k))
        for k in range(4): A("v_cndmask_b32 v%d, v%d, v%d, s[50:51]" % (48 + k, 48 + k, 56 + k))
    A.tag4(48)
    A("buffer_store_dwordx4 v[48:51], v245, s[52:55], s61 offen sc1")
    if stamps:
        A.stamp(15)
        A("s_cmp_lg_u32 s3, 0\ns_cbranch_scc1 L_end")
        A.stamp_flush([0, 5, 6, 7, 17, 12, 13, 14, 18, 19, 15])
    A("s_endpgm")
    A("L_final:")
    A.c("======== wave 7: 16 columns (tile F>>1) of output row F&1 = h + sum of the 56 down partials")
    A("s_barrier")
    A("ds_read_u16_d16_hi v208, v207 offset:%d" % L_H)
    A.c("h needed every workgroup's results, so every wave has read the epoch: advance it")
    A("s_cmp_lg_u32 s65, 0\ns_cbranch_scc1 L_noE")
    A("s_mov_b64 exec, 1\nbuffer_store_dwordx4 v[%d:%d], v205, s[52:55], 0 offen offset:%d\ns_mov_b64 exec, -1" % (V_TAG, V_TAG + 3, WS_E))
    A("L_noE:")
    A.c("poll back-off: the partials cannot be there yet, and a read that races with their write-through delays them")
    A("s_barrier\ns_sleep %d" % back)
    A.gather2([[(200, 0), (201, 0)], [(202, 0), (203, 0)]], 24, 20, "s18", first=True)
    A("v_pk_add_f32 v[24:25], v[24:25], v[28:29]\nv_pk_add_f32 v[26:27], v[26:27], v[30:31]")
    A("v_pk_fma_f32 v[32:33], v[36:37], v[204:205], v[32:33] op_sel_hi:[1,0,1]\nv_pk_fma_f32 v[34:35], v[38:39], v[204:205], v[34:35] op_sel_hi:[1,0,1]")
    A("v_pk_add_f32 v[24:25], v[24:25], v[32:33]\nv_pk_add_f32 v[26:27], v[26:27], v[34:35]")
    A.swapreduce(24)
    for r in (4, 8):
        A.nop(2)
        A("v_add_f32_dpp v24, v24, v24 row_ror:%d %s" % (r, DPP))
    A("s_waitcnt lgkmcnt(0)")
    A("v_cvt_pk_bf16_f32 v24, v24, v24\nv_lshlrev_b32 v24, 16, v24\nv_add_f32 v24, v208, v24\nv_cvt_pk_bf16_f32 v24, v24, v24")
    A("s_mov_b64 exec, s[16:17]")
    A("buffer_store_short v24, v206, s[40:43], s19 offen")
    if stamps:
        A.stamp(20)
        A("s_waitcnt vmcnt(0)")
        A.stamp(16)
        A.stamp_flush([20, 16])
    A("L_end:\ns_endpgm")
    A.L.append('.section .rodata,"a"\n.p2align 6\n.amdhsa_kernel %s_kernel' % NAME)
    A.L.append("  .amdhsa_next_free_vgpr 256\n  .amdhsa_next_free_sgpr 100\n  .amdhsa_accum_offset 256")
    A.L.append("  .amdhsa_group_segment_fixed_size 0\n  .amdhsa_kernarg_size 96\n  .amdhsa_user_sgpr_count 2\n  .amdhsa_user_sgpr_kernarg_segment_ptr 1\n  .amdhsa_system_sgpr_workgroup_id_x 1\n  .amdhsa_float_denorm_mode_32 3\n.end_amdhsa_kernel")
    return "\n".join(A.L) + "\n"

if __name__ == "__main__":
    out = sys.argv[1]
    kw = {}
    for a in sys.argv[2:]:
        k, v = a.split("="); kw[k] = int(v)
    open(out, "w").write(build(**kw))
```

```python
import sys, math, struct
NAME = "sequential_preLN__gqa_block_cached__geglu_ffn__decode"
HEADER = open("cdna_kernels/%s.s.ref" % NAME).read().split("; Override launch")[0]

DOC = """
; ---------------------------------------------------------------------------------------------------------
; ---------------------------------------------------------------------------------------------------------"""

NA = 12
NSL = 22
WS_E = 0
WS_Q = 0x1000
WS_AP = 0xA000
WS_ML = 0x18000
WS_OP = 0x20000
WS_FP = 0xA0000
WS_END = 0x100000
STAMP_OFF = 128 << 20
RING = 8
MISC = RING * 16384
L_Q = 0; L_P = 1024; PSTR = 1536; L_LSUM = 4096; L_MX = 4736
L_LAND = 4816; L_QF = 4820; L_C1 = 4824; L_C2 = 4828
L_PROG = 4848
R_A = 0; R_G = 65536; R_U = R_G + 28672; R_D = R_U + 28672; SMISC = R_D + 28672
L_LN = 0; L_SO = 0; OSTR = 1088; L_H = 2304; HSTR = 960; L_ACT = 4352; L_ST = 4480
LDS_TOTAL = SMISC + 5120
assert MISC + 8192 <= LDS_TOTAL <= 163840
TAGM = 0x3ff
BUDGET = 1 << 22
V_G = 1; V_N = 2; V_MISC = 3; V_TAG = 4
DPP = "row_mask:0xf bank_mask:0xf"
C1 = 0.0625 * math.log2(math.e)

def f32(x): return "0x%08x" % struct.unpack("<I", struct.pack("<f", x))[0]

class Gen:
    def __init__(self, stamps):
        self.L = []; self.uid = 0; self.stamps = stamps
    def __call__(self, s):
        for line in s.split("\n"):
            line = line.strip()
            if line: self.L.append(("" if line.endswith(":") else "    ") + line)
    def c(self, s): self.L.append("    ; " + s)
    def lab(self, p="L"):
        self.uid += 1
        return "%s_%d" % (p, self.uid)
    def nop(self, n):
        while n > 0:
            k = min(n, 16); self("s_nop %d" % (k - 1)); n -= k
    def mask(self, m32, dst="s[56:57]"):
        self("s_mov_b32 s56, 0x%08x\ns_mov_b32 s57, s56" % m32)
        if dst == "exec": self("s_mov_b64 exec, s[56:57]")
    def stamp(self, idx):
        if not self.stamps: return
        self("s_memrealtime s[%d:%d]\ns_waitcnt lgkmcnt(0)" % (68 + 2 * (idx % 16), 69 + 2 * (idx % 16)))
    def stamp_flush(self, idxs):
        if not self.stamps: return
        self("s_mov_b64 exec, 1\ns_mul_i32 s60, s2, 256\ns_add_u32 s60, s60, %d\nv_mov_b32 v255, s60" % STAMP_OFF)
        for idx in idxs:
            self("v_mov_b32 v250, s%d\nv_mov_b32 v251, s%d" % (68 + 2 * (idx % 16), 69 + 2 * (idx % 16)))
            self("global_store_dwordx2 v255, v[250:251], s[26:27] offset:%d\ns_nop 1" % (idx * 8))
        self("s_mov_b64 exec, -1")
    def again(self, l, sleep):
        if sleep: self("s_sleep %d" % sleep)
        self("s_sub_u32 s64, s64, %d\ns_cbranch_scc0 %s\ns_mov_b32 s64, 0" % (1 + sleep // 2, l))
    def lds_wait_ge(self, off, sreg, target, vt, cached=True, sleep=1):
        d = self.lab("Lw"); l = self.lab("Lw")
        if cached:
            self("s_cmp_ge_u32 s%d, %s\ns_cbranch_scc1 %s" % (sreg, target, d))
        self("%s:" % l)
        self("ds_read_b32 v%d, v%d offset:%d\ns_waitcnt lgkmcnt(0)" % (vt, V_MISC, off))
        self("v_readfirstlane_b32 s%d, v%d\ns_cmp_ge_u32 s%d, %s\ns_cbranch_scc1 %s" % (sreg, vt, sreg, target, d))
        self.again(l, sleep)
        self("%s:" % d)
    def lds_signal_add(self, off, vt):
        self("s_mov_b64 exec, 1\nv_mov_b32 v%d, 1\nds_add_u32 v%d, v%d offset:%d\ns_mov_b64 exec, -1" % (vt, V_MISC, vt, off))
    def _load(self, rr, va, soff, oo):
        self("buffer_load_dwordx4 v[%d:%d], v%d, s[52:55], %s offen offset:%d sc1" % (rr, rr + 3, va, soff, oo))
    def _check(self, regs, vt, dst):
        w = []
        for rr in regs:
            for k in range(4):
                self("v_xor_b32 v%d, s%d, v%d" % (rr + k, 28 + k, rr + k)); w.append(rr + k)
        self("v_or3_b32 v%d, v%d, v%d, v%d" % (vt, w[0], w[1], w[2])); w = w[3:]
        while len(w) > 1:
            self("v_or3_b32 v%d, v%d, v%d, v%d" % (vt, vt, w[0], w[1])); w = w[2:]
        self("v_bitop3_b32 v%d, v%d, v%d, s58 bitop3:0xa8\nv_cmp_ne_u32 %s, 0, v%d" % (vt, vt, w[0], dst, vt))
    def gather(self, offs, vd, vt, soff, sleep):
        l = self.lab("Lg"); d = self.lab("Lg")
        self("%s:" % l)
        for i, (va, oo) in enumerate(offs): self._load(vd + 4 * i, va, soff, oo)
        self("s_waitcnt vmcnt(0)")
        self._check([vd + 4 * i for i in range(len(offs))], vt, "vcc")
        self("s_cbranch_vccz %s" % d)
        self.again(l, sleep)
        self("%s:" % d)
    def gather2(self, groups, vd, vt, soff, sentinel=None, first=False, slow=0, MS=(4, 6, 8)):
        regs = []; r = vd
        for g in groups:
            regs.append([r + 4 * k for k in range(len(g))]); r += 4 * len(g)
        n = len(groups)
        M = ["s[%d:%d]" % (m, m + 1) for m in MS]
        def load(i):
            for (va, oo), rr in zip(groups[i], regs[i]): self._load(rr, va, soff, oo)
        def anyleft():
            self("s_or_b64 s[14:15], %s, %s" % (M[0], M[1]))
            for i in range(2, n): self("s_or_b64 s[14:15], s[14:15], %s" % M[i])
        if sentinel is not None:
            l = self.lab("Ls"); d = self.lab("Ls")
            self.mask(sentinel, "exec")
            self("%s:" % l)
            self._load(vd, groups[0][0][0], soff, groups[0][0][1])
            self("s_waitcnt vmcnt(0)")
            self._check([vd], vt, "vcc")
            self("s_cmp_lg_u64 vcc, exec\ns_cbranch_scc1 %s" % d)
            self.again(l, 6)
            self("%s:" % d)
        l = self.lab("Lg"); d = self.lab("Lg"); dd = self.lab("Lg")
        if first:
            if slow:
                sl = self.lab("Ls")
                self("%s:\ns_sleep %d" % (sl, slow))
            for i in range(n): load(i)
            left = sum(len(g) for g in groups)
            for i in range(n):
                left -= len(groups[i])
                self("s_waitcnt vmcnt(%d)" % left)
                self._check(regs[i], vt, M[i])
            anyleft()
            self("s_cbranch_scc0 %s" % dd)
            if slow:
                self("s_nand_b64 s[14:15], %s, %s\ns_cbranch_scc1 %s" % (M[0], M[1], l))
                self("s_sub_u32 s64, s64, %d\ns_cbranch_scc0 %s\ns_mov_b32 s64, 0" % (1 + slow // 2, sl))
        else:
            for i in range(n): self("s_mov_b64 %s, -1" % M[i])
        self("%s:" % l)
        for i in range(n):
            k = self.lab("Lk")
            self("s_mov_b64 exec, %s\ns_cbranch_execz %s" % (M[i], k))
            load(i)
            self("%s:" % k)
        self("s_waitcnt vmcnt(0)")
        for i in range(n):
            k = self.lab("Lk")
            self("s_mov_b64 exec, %s\ns_cbranch_execz %s" % (M[i], k))
            self._check(regs[i], vt, M[i])
            self("%s:" % k)
        anyleft()
        self("s_cbranch_scc0 %s" % d)
        self.again(l, 0)
        self("%s:\ns_mov_b64 exec, -1\n%s:" % (d, dd))
    def tag4(self, v):
        for k in range(4):
            self("v_and_or_b32 v%d, v%d, s59, v%d" % (v + k, v + k, V_TAG + k))
    def swapreduce(self, v):
        self.nop(1)
        self("v_permlane16_swap_b32 v%d, v%d\nv_permlane16_swap_b32 v%d, v%d" % (v, v + 1, v + 2, v + 3))
        self("v_add_f32 v%d, v%d, v%d\nv_add_f32 v%d, v%d, v%d" % (v, v, v + 1, v + 2, v + 2, v + 3))
        self.nop(2)
        self("v_permlane32_swap_b32 v%d, v%d" % (v, v + 2))
        self("v_add_f32 v%d, v%d, v%d" % (v, v, v + 2))
    def swapreduce2(self, v, u):
        self("v_permlane16_swap_b32 v%d, v%d\nv_permlane16_swap_b32 v%d, v%d" % (v, v + 1, v + 2, v + 3))
        self("v_permlane16_swap_b32 v%d, v%d\nv_permlane16_swap_b32 v%d, v%d" % (u, u + 1, u + 2, u + 3))
        self("v_add_f32 v%d, v%d, v%d\nv_add_f32 v%d, v%d, v%d" % (v, v, v + 1, v + 2, v + 2, v + 3))
        self("v_add_f32 v%d, v%d, v%d\nv_add_f32 v%d, v%d, v%d" % (u, u, u + 1, u + 2, u + 2, u + 3))
        self("v_permlane32_swap_b32 v%d, v%d" % (v, v + 2))
        self.nop(1)
        self("v_permlane32_swap_b32 v%d, v%d" % (u, u + 2))
        self("v_add_f32 v%d, v%d, v%d\nv_add_f32 v%d, v%d, v%d" % (v, v, v + 2, u, u, u + 2))
    def ln_stats_list(self, vs, vq, vm, vr, t):
        return ["v_mul_f32 v%d, %s, v%d" % (vs, f32(1.0 / 448), vs), "v_mul_f32 v%d, %s, v%d" % (vq, f32(1.0 / 448), vq),
                "v_fma_f32 v%d, -v%d, v%d, v%d" % (vq, vs, vs, vq), "v_max_f32 v%d, 0, v%d" % (vq, vq),
                "v_cvt_pk_bf16_f32 v%d, v%d, v%d" % (t, vs, vq),
                "v_and_b32 v%d, 0xffff0000, v%d" % (vq, t), "v_lshlrev_b32 v%d, 16, v%d" % (vm, t),
                "v_add_f32 v%d, %s, v%d" % (vq, f32(1e-5), vq), "v_cvt_pk_bf16_f32 v%d, v%d, v%d" % (t, vq, vq),
                "v_lshlrev_b32 v%d, 16, v%d" % (vq, t), "v_sqrt_f32 v%d, v%d" % (vq, vq), "s_nop 0",
                "v_cvt_pk_bf16_f32 v%d, v%d, v%d" % (t, vq, vq), "v_lshlrev_b32 v%d, 16, v%d" % (vq, t),
                "v_rcp_f32 v%d, v%d" % (vr, vq), "s_nop 0"]
    def tags_setup(self):
        for k in range(4):
            self("s_add_u32 s%d, s%d, %d\ns_and_b32 s%d, s%d, %d\nv_mov_b32 v%d, s%d" % (28 + k, 28 + k, (1, 7, 19, 45)[k], 28 + k, 28 + k, TAGM, V_TAG + k, 28 + k))

def mfma(d, a, b, first, shape="16x16x32", w=4):
    return "v_mfma_f32_%s_bf16 v[%d:%d], v[%d:%d], v[%d:%d], %s" % (shape, d, d + 3, a, a + w - 1, b, b + w - 1, "0" if first else "v[%d:%d]" % (d, d + 3))

def build(stamps=0, wink=32, winv=48, qp=13, fast=1, back=18, pre=4, dpol=1, apf=1, dmask=1):
    A = Gen(stamps)
    A.L.append(HEADER.rstrip())
    A.L.append("; @launch grid=(256,1,1) block=(512,1,1) lds=%d" % LDS_TOTAL)
    A.L.append(DOC.strip())
    A.L.append('.amdgcn_target "amdgcn-amd-amdhsa--gfx950"')
    A.L.append(".text\n.globl %s_kernel\n.p2align 8\n.type %s_kernel,@function\n%s_kernel:" % (NAME, NAME, NAME))
    A("s_cmp_ge_u32 s2, 256\ns_cbranch_scc1 L_end")
    A("s_load_dwordx16 s[4:19], s[0:1], 0\ns_load_dwordx8 s[20:27], s[0:1], 64")
    if stamps: A("s_memrealtime s[68:69]")
    A("v_lshrrev_b32 v1, 6, v0\nv_and_b32 v0, 63, v0\nv_readfirstlane_b32 s3, v1")
    A.c("s3 = wave, s32 = group (batch*8 + kv head), s33 = split, s34 = batch, s35 = kv head")
    A("s_and_b32 s32, s2, 15\ns_lshr_b32 s33, s2, 4\ns_lshr_b32 s34, s32, 3\ns_and_b32 s35, s32, 7")
    A("v_mov_b32 v%d, %d\ns_mov_b32 s64, %d" % (V_MISC, MISC, BUDGET))
    A("s_cmp_ge_u32 s33, %d\ns_cbranch_scc1 L_service" % NA)
    A.c("keys [s65, s66) = [split*8192/12, (split+1)*8192/12)")
    A("s_mul_i32 s65, s33, 43691\ns_add_u32 s66, s65, 43691\ns_lshr_b32 s65, s65, 6\ns_lshr_b32 s66, s66, 6")
    for a in range(NA + 1): assert (a * 43691) >> 6 == a * 8192 // NA
    for a in range(NA): assert 0 < (a + 1) * 8192 // NA - a * 8192 // NA - 32 * (NSL - 1) <= 16
    A("s_cmp_lg_u32 s3, 1\ns_cbranch_scc1 L_notloader")
    A.c("======== attention WG, wave 1: loader. slot n (16 x 1KB) -> ring position n & 7; rows past the range read as 0")
    A("s_setprio 3")
    A.c("K rows: 16B chunk c of row r is stored at chunk c ^ (r & 15)")
    A("v_lshrrev_b32 v1, 5, v0\nv_and_b32 v2, 31, v0\nv_xor_b32 v4, v2, v1\nv_lshlrev_b32 v4, 4, v4\nv_lshl_or_b32 v8, v1, 9, v4")
    for j in range(1, 8):
        A("v_xor_b32 v%d, %d, v8" % (8 + j, 32 * j))
    A("s_lshl_b32 s45, s32, 22\ns_lshl_b32 s44, s65, 9\ns_add_u32 s44, s44, s45\ns_lshl_b32 s38, s66, 9\ns_add_u32 s38, s38, s45")
    EV0 = wink // 16
    A("s_mov_b32 s45, s44\ns_mov_b32 s46, 0\ns_mov_b32 s47, 0\ns_mov_b32 s48, 0\ns_mov_b32 s50, %d\ns_mov_b32 m0, 0\ns_mov_b32 s39, 0x20000" % EV0)
    A("s_waitcnt lgkmcnt(0)")
    A("s_mov_b32 s36, s6\ns_mov_b32 s37, s7")
    def land(k):
        A("s_sub_i32 s56, s46, %d\ns_max_i32 s48, s48, s56\nv_mov_b32 v20, s48\nds_write_b32 v%d, v20 offset:%d" % (k, V_MISC, L_LAND))
    def body(W):
        for j in range(16):
            if j % 8 == 0:
                A("s_waitcnt vmcnt(%d)" % (W - 8))
                if (j - (W - 8)) % 16 == 0: land((W - 8 - j) // 16)
            A("buffer_load_dwordx4 v%d, s[36:39], s45 offen nt lds" % (8 + j % 8))
            A("s_add_u32 m0, m0, 1024\ns_add_u32 s45, s45, 1024")
    A("L_slot:")
    A("s_add_u32 s56, s47, %d\ns_cmp_lt_u32 s46, s56\ns_cbranch_scc0 L_waitfree" % RING)
    A("L_go:")
    A("s_cmp_ge_u32 s46, %d\ns_cbranch_scc1 L_go2" % NSL)
    body(wink)
    A("s_branch L_go3\nL_go2:")
    body(winv)
    A("L_go3:")
    A("s_and_b32 m0, m0, %d" % (MISC - 1))
    A("s_add_u32 s46, s46, 1\ns_cmp_lg_u32 s46, s50\ns_cbranch_scc1 L_slot")
    A("s_cmp_lg_u32 s46, %d\ns_cbranch_scc1 L_evV" % EV0)
    A("s_barrier\ns_mov_b32 s50, %d\ns_branch L_slot" % NSL)
    A("L_evV:\ns_cmp_lg_u32 s46, %d\ns_cbranch_scc1 L_ldone" % NSL)
    A.stamp(1)
    A.c("V rows: 32B chunk c of row r is stored at chunk c ^ (r & 7)")
    A("v_lshlrev_b32 v4, 1, v1\nv_xor_b32 v4, v2, v4\nv_lshlrev_b32 v4, 4, v4\nv_lshl_or_b32 v8, v1, 9, v4")
    for j in range(1, 8):
        A("v_xor_b32 v%d, %d, v8" % (8 + j, 64 * (j & 3)))
    A("s_mov_b32 s36, s8\ns_mov_b32 s37, s9\ns_mov_b32 s45, s44\ns_mov_b32 s50, %d\ns_branch L_slot" % (2 * NSL))
    A("L_ldone:")
    A.stamp(3)
    A("s_waitcnt vmcnt(32)")
    land(2)
    A.c("the last two slots are handed over by barrier")
    A("s_waitcnt vmcnt(16)\ns_barrier\ns_waitcnt vmcnt(0)\ns_barrier")
    A.stamp(4)
    A.stamp_flush([0, 1, 3, 4])
    A("s_endpgm")
    A("L_waitfree:")
    A.c("ring position not known to be free: re-read the readers' progress, publishing landed slots meanwhile")
    def prog_check():
        A("ds_read_b128 v[20:23], v%d offset:%d\nds_read_b64 v[24:25], v%d offset:%d\ns_waitcnt lgkmcnt(0)" % (V_MISC, L_PROG, V_MISC, L_PROG + 16))
        A("v_min3_u32 v20, v20, v21, v22\nv_min3_u32 v23, v23, v24, v25\nv_min_u32 v20, v20, v23\ns_nop 0\nv_readfirstlane_b32 s47, v20")
        A("s_add_u32 s56, s47, %d\ns_cmp_lt_u32 s46, s56\ns_cbranch_scc1 L_go" % RING)
    for k in (2, 1, 0):
        prog_check()
        A("s_waitcnt vmcnt(%d)" % (16 * k))
        land(k)
    A("L_wf2:")
    prog_check()
    A.again("L_wf2", 1)
    A("s_branch L_go")

    def common_setup():
        A("v_lshrrev_b32 v%d, 4, v0\nv_and_b32 v%d, 15, v0" % (V_G, V_N))
        A("s_waitcnt lgkmcnt(0)")
        A("s_load_dwordx4 s[28:31], s[26:27], %d" % WS_E)
        A("s_mov_b32 s52, s26\ns_mov_b32 s53, s27\ns_mov_b32 s54, %d\ns_mov_b32 s55, 0x20000" % WS_END)
        A("s_mov_b32 s58, %d\ns_mov_b32 s59, %d" % (TAGM, 0xffffffff & ~TAGM))
    A("L_notloader:")
    common_setup()
    A("s_cmp_lg_u32 s3, 0\ns_cbranch_scc1 L_noinit")
    A("v_mov_b32 v8, 0\nv_lshl_add_u32 v9, v0, 2, v%d\nds_write_b32 v9, v8 offset:%d" % (V_MISC, L_LSUM))
    A("s_mov_b64 exec, 0xff\nds_write_b32 v9, v8 offset:%d\nds_write_b32 v9, v0 offset:%d" % (L_LAND, L_PROG))
    A("s_mov_b64 exec, 0x3\nv_mov_b32 v10, 0xff800000\nds_write_b32 v9, v10 offset:%d\ns_mov_b64 exec, -1" % L_MX)
    A("L_noinit:")
    A("s_sub_u32 s61, s3, 2")
    A("s_waitcnt lgkmcnt(0)")
    A.tags_setup()
    A("s_mov_b32 s48, 0\ns_barrier")
    A("s_cmp_ge_u32 s3, 2\ns_cbranch_scc1 L_cons")
    A.c("======== attention WG, wave 0: fetch q (once it has long been written), later publish (max, sum)")
    A("s_lshl_b32 s45, s34, 14\ns_lshl_b32 s46, s35, 11\ns_add_u32 s45, s45, s46\ns_add_u32 s45, s45, %d" % WS_Q)
    A("v_lshlrev_b32 v16, 4, v0")
    A.lds_wait_ge(L_LAND, 48, str(qp), 17)
    A.stamp(7)
    A.gather([(16, 0), (16, 1024)], 20, 17, "s45", 16)
    A("s_mov_b32 s56, 0x07060302")
    for i in range(4):
        A("v_perm_b32 v%d, v%d, v%d, s56" % (28 + i, 21 + 2 * i, 20 + 2 * i))
    A("v_lshl_add_u32 v16, v0, 3, v%d" % V_MISC)
    A("ds_write_b64 v16, v[28:29] offset:%d\nds_write_b64 v16, v[30:31] offset:%d" % (L_Q, L_Q + 512))
    A.c("flag = 2 if all eight writers of this q (the readers of our partials) run on our XCC, else 1")
    A("s_getreg_b32 s56, hwreg(HW_REG_XCC_ID)\ns_and_b32 s56, s56, 15\nv_bfe_u32 v18, v20, 10, 4\nv_bfe_u32 v19, v24, 10, 4")
    A("v_cmp_ne_u32 vcc, s56, v18\nv_cmp_ne_u32 s[44:45], s56, v19\ns_nop 0\ns_or_b64 vcc, vcc, s[44:45]\ns_cselect_b32 s67, 1, %d" % (2 if fast else 1))
    A("v_mov_b32 v17, s67\nds_write_b32 v%d, v17 offset:%d" % (V_MISC, L_QF))
    A.stamp(8)
    A.lds_wait_ge(L_C2, 47, "6", 8, cached=False, sleep=4)
    A("ds_read_b32 v10, v9 offset:%d\nds_read_b64 v[12:13], v%d offset:%d\ns_waitcnt lgkmcnt(0)" % (L_LSUM, V_MISC, L_MX))
    for r in (1, 2, 4, 8):
        A("v_add_f32_dpp v10, v10, v10 row_ror:%d %s" % (r, DPP))
        A.nop(2)
    A("v_readlane_b32 s56, v10, 16\nv_readlane_b32 s57, v10, 32\nv_readlane_b32 s60, v10, 48")
    A.nop(1)
    A("v_add_f32 v14, s56, v10\nv_mov_b32 v15, s57\nv_add_f32 v15, s60, v15")
    A.tag4(12)
    A("s_lshl_b32 s45, s32, 11\ns_add_u32 s45, s45, %d\ns_lshl_b32 s46, s33, 7\nv_mov_b32 v9, s46" % WS_ML)
    A("s_mov_b64 exec, 1\ns_cmp_eq_u32 s67, 2\ns_cbranch_scc1 L_mlfast")
    A("buffer_store_dwordx4 v[12:15], v9, s[52:55], s45 offen sc1\ns_branch L_mldone\nL_mlfast:")
    A("buffer_store_dwordx4 v[12:15], v9, s[52:55], s45 offen\nL_mldone:")
    A.stamp_flush([7, 8])
    A("s_endpgm")

    A("L_cons:")
    A.c("======== attention WG, waves 2..7 (c = s61): K slots c, c+6, ... -> registers, scores once q is there")
    KA = 8; KT = 244; KD = [16, 80, 144, 16]; QB = 208; AC = 240; S = 248
    A("v_xor_b32 v12, v%d, v%d\nv_lshlrev_b32 v12, 4, v12\nv_lshl_or_b32 v%d, v%d, 9, v12" % (V_G, V_N, KA, V_N))
    for k in range(1, 4):
        A("v_xor_b32 v%d, %d, v%d" % (KA + k, 64 * k, KA))
    A("s_add_u32 s46, s61, 1\ns_lshl_b32 s44, s61, 14")
    A("s_lshl_b32 s62, s61, 2\nv_add_u32 v13, s62, v%d" % V_MISC)
    def kread(i):
        for k in range(4):
            A("v_add_u32 v%d, s44, v%d" % (KT + k, KA + k))
        A.lds_wait_ge(L_LAND, 48, "s46", 12)
        for tt in range(2):
            for kk in range(8):
                r = KD[i] + 32 * tt + 4 * kk
                A("ds_read_b128 v[%d:%d], v%d offset:%d" % (r, r + 3, KT + (kk & 3), tt * 8192 + (kk >> 2) * 256))
        A("s_add_u32 s56, s46, 5\ns_min_u32 s56, s56, %d\nv_mov_b32 v12, s56\ns_add_u32 s46, s46, 6" % NSL)
        A("s_add_u32 s44, s44, %d\ns_and_b32 s44, s44, %d" % (6 * 16384, MISC - 1))
        A("s_waitcnt lgkmcnt(0)")
        A("ds_write_b32 v13, v12 offset:%d" % L_PROG)
    def kcomp(i):
        for kk in range(8):
            for tt in range(2):
                A(mfma(AC + 4 * tt, KD[i] + 32 * tt + 4 * kk, QB + 4 * kk, kk == 0))
        A.mask(0x00030003 << (4 * i))
        A.nop(5)
        for k in range(4):
            A("v_cndmask_b32 v%d, v%d, v%d, s[56:57]" % (S + k, S + k, AC + k))
        A("s_lshl_b64 s[56:57], s[56:57], 2")
        for k in range(4):
            A("v_cndmask_b32 v%d, v%d, v%d, s[56:57]" % (S + k, S + k, AC + 4 + k))
    for i in range(3):
        kread(i)
    A.lds_wait_ge(L_QF, 67, "1", 12, cached=False)
    A("v_and_b32 v12, 1, v%d\nv_lshlrev_b32 v12, 9, v12\nv_lshl_add_u32 v12, v%d, 4, v12\nv_add_u32 v12, v%d, v12" % (V_N, V_G, V_MISC))
    for kk in range(8):
        A("ds_read_b128 v[%d:%d], v12 offset:%d" % (QB + 4 * kk, QB + 4 * kk + 3, L_Q + kk * 64))
    A("s_waitcnt lgkmcnt(0)")
    for i in range(3):
        kcomp(i)
    A("s_cmp_gt_u32 s46, %d\ns_cbranch_scc1 L_kdone" % NSL)
    kread(3); kcomp(3)
    A("L_kdone:")
    A.stamp(9)
    A.c("softmax over this WG's keys. lane holds head n&1, keys 192*(n>>2) + 32c + 16*((n>>1)&1) + 4g + r; keys past the range -> -inf")
    A("v_lshrrev_b32 v23, 2, v%d\nv_mul_u32_u24 v16, 192, v23\nv_and_b32 v22, 2, v%d\nv_lshl_add_u32 v16, v22, 3, v16\nv_lshl_add_u32 v16, v%d, 2, v16" % (V_N, V_N, V_G))
    A("s_sub_u32 s44, s66, s65\ns_lshl_b32 s45, s61, 5\ns_sub_u32 s44, s44, s45\nv_mov_b32 v17, 0xff800000")
    for k in range(4):
        A("v_cmp_gt_u32 vcc, s44, v16\nv_add_u32 v16, 1, v16\ns_nop 0\nv_cndmask_b32 v%d, v17, v%d, vcc" % (S + k, S + k))
    A("v_cvt_pk_bf16_f32 v16, v%d, v%d\nv_cvt_pk_bf16_f32 v17, v%d, v%d" % (S, S + 1, S + 2, S + 3))
    A("v_lshlrev_b32 v%d, 16, v16\nv_and_b32 v%d, 0xffff0000, v16\nv_lshlrev_b32 v%d, 16, v17\nv_and_b32 v%d, 0xffff0000, v17" % (S, S + 1, S + 2, S + 3))
    A("v_max3_f32 v16, v%d, v%d, v%d\nv_max_f32 v16, v16, v%d" % (S, S + 1, S + 2, S + 3))
    for r in (2, 4, 8):
        A.nop(2)
        A("v_max_f32_dpp v16, v16, v16 row_ror:%d %s" % (r, DPP))
    A("v_and_b32 v17, 1, v%d\nv_lshl_add_u32 v18, v17, 2, v%d" % (V_N, V_MISC))
    A.mask(0x00030003, "exec")
    A("ds_max_f32 v18, v16 offset:%d" % L_MX)
    A.lds_signal_add(L_C1, 12)
    A("v_mul_u32_u24 v19, 384, v23\nv_mul_u32_u24 v14, %d, v17\nv_lshl_add_u32 v14, v%d, 4, v14\nv_add_u32 v14, v%d, v14" % (PSTR, V_G, V_MISC))
    A("v_lshl_add_u32 v19, v22, 2, v19\ns_lshl_b32 s62, s61, 6\nv_add3_u32 v19, v19, s62, v14")
    A("v_lshlrev_b32 v20, 7, v17\nv_lshl_add_u32 v20, v%d, 2, v20\ns_lshl_b32 s62, s61, 4\nv_add3_u32 v20, v20, s62, v%d" % (V_G, V_MISC))
    A.lds_wait_ge(L_C1, 47, "6", 12, cached=False, sleep=0)
    A("ds_read_b32 v16, v18 offset:%d\ns_waitcnt lgkmcnt(0)" % L_MX)
    for k in range(4):
        A("v_sub_f32 v%d, v%d, v16\nv_mul_f32 v%d, %s, v%d\nv_exp_f32 v%d, v%d" % (S + k, S + k, S + k, f32(C1), S + k, S + k, S + k))
    A("v_add_f32 v16, v%d, v%d\nv_add_f32 v16, v16, v%d\nv_add_f32 v16, v16, v%d" % (S, S + 1, S + 2, S + 3))
    A("v_cvt_pk_bf16_f32 v24, v%d, v%d\nv_cvt_pk_bf16_f32 v25, v%d, v%d" % (S, S + 1, S + 2, S + 3))
    A("ds_write_b64 v19, v[24:25] offset:%d" % L_P)
    for r in (2, 4, 8):
        A("v_add_f32_dpp v16, v16, v16 row_ror:%d %s" % (r, DPP))
        A.nop(2)
    A("s_mov_b64 exec, s[56:57]\nds_write_b32 v20, v16 offset:%d" % L_LSUM)
    A.lds_signal_add(L_C2, 12)
    A("s_cmp_ge_u32 s3, 4\ns_cbranch_scc1 L_pv")
    A("v_mov_b32 v12, 0x7fff\nds_write_b32 v13, v12 offset:%d\ns_endpgm" % L_PROG)
    A("L_pv:")
    A.c("======== waves 4..7: P.V for dims 64c..64c+63; dim tile t accumulates in columns 2t, 2t+1 (heads) of one D")
    A("s_sub_u32 s61, s3, 4")
    VA = 8; VT = 16; VD = 24; PB = 40; OA = 96
    A("v_lshrrev_b32 v16, 2, v0\nv_and_b32 v18, 7, v16\ns_lshl_b32 s62, s61, 2\nv_xor_b32 v18, s62, v18\nv_lshlrev_b32 v18, 5, v18")
    A("v_lshl_or_b32 v18, v16, 9, v18\nv_and_b32 v16, 3, v0\nv_lshl_or_b32 v%d, v16, 3, v18" % VA)
    for tt in range(1, 4):
        A("v_xor_b32 v%d, %d, v%d" % (VA + tt, 32 * tt, VA))
    for k in range(4):
        A("v_mov_b32 v%d, 0" % (OA + k))
    for k in range(16):
        A("v_mov_b32 v%d, 0" % (PB + k))
    A("v_lshlrev_b32 v112, 7, v%d\nv_lshl_add_u32 v112, v%d, 4, v112" % (V_G, V_N))
    A("s_lshl_b32 s40, s32, 15\ns_lshl_b32 s56, s61, 9\ns_add_u32 s40, s40, s56\ns_lshl_b32 s56, s33, 11\ns_add_u32 s40, s40, s56\ns_add_u32 s40, s40, %d" % WS_OP)
    for tt in range(4):
        A("s_mov_b32 s%d, 0x%08x\ns_mov_b32 s%d, s%d" % (4 + 2 * tt, 0x00030003 << (2 * tt), 5 + 2 * tt, 4 + 2 * tt))
    A("s_mov_b32 s12, 0x00ff00ff\ns_mov_b32 s13, s12")
    A.lds_wait_ge(L_C2, 47, "6", 12, cached=False, sleep=0)
    A.stamp(10)
    A("s_mov_b32 s46, %d\ns_mov_b32 s44, %d" % (NSL + 1, (NSL % RING) * 16384))
    A("L_vloop:")
    for tt in range(4):
        A("s_mov_b64 exec, s[%d:%d]\nds_read_b128 v[%d:%d], v14 offset:%d" % (4 + 2 * tt, 5 + 2 * tt, PB + 4 * tt, PB + 4 * tt + 3, L_P))
    A("s_mov_b64 exec, -1")
    for tt in range(4):
        A("v_add_u32 v%d, s44, v%d" % (VT + tt, VA + tt))
    A("s_cmp_lg_u32 s46, %d\ns_cbranch_scc1 L_vw\ns_barrier\ns_branch L_vg\nL_vw:" % (2 * NSL - 1))
    A.lds_wait_ge(L_LAND, 48, "s46", 12, sleep=0)
    A("L_vg:")
    for tt in range(4):
        A("ds_read_b64_tr_b16 v[%d:%d], v%d" % (VD + 4 * tt, VD + 4 * tt + 1, VT + tt))
        A("ds_read_b64_tr_b16 v[%d:%d], v%d offset:8192" % (VD + 4 * tt + 2, VD + 4 * tt + 3, VT + tt))
    A("v_mov_b32 v12, s46\nv_add_u32 v14, 64, v14\ns_add_u32 s44, s44, 16384\ns_and_b32 s44, s44, %d" % (MISC - 1))
    A("s_add_u32 s46, s46, 1\ns_cmp_le_u32 s46, %d" % (2 * NSL - 1))
    for tt in range(4):
        A("s_waitcnt lgkmcnt(%d)" % (6 - 2 * tt))
        A(mfma(OA, VD + 4 * tt, PB + 4 * tt, False))
    A("ds_write_b32 v13, v12 offset:%d" % L_PROG)
    A("s_cbranch_scc1 L_vloop")
    A.c("last slot: rows 0..15 only")
    for tt in range(4):
        A("s_mov_b64 exec, s[%d:%d]\nds_read_b64 v[%d:%d], v14 offset:%d" % (4 + 2 * tt, 5 + 2 * tt, PB + 4 * tt, PB + 4 * tt + 1, L_P))
    A("s_mov_b64 exec, -1")
    for tt in range(4):
        A("v_add_u32 v%d, s44, v%d" % (VT + tt, VA + tt))
    A("s_cmp_eq_u32 s67, 2\ns_barrier")
    for tt in range(4):
        A("ds_read_b64_tr_b16 v[%d:%d], v%d" % (VD + 4 * tt, VD + 4 * tt + 1, VT + tt))
    for tt in range(4):
        A("s_waitcnt lgkmcnt(%d)" % (3 - tt))
        A(mfma(OA, VD + 4 * tt, PB + 4 * tt, False, "16x16x16", 2))
    A("s_mov_b64 exec, s[12:13]")
    A.nop(7)
    A.tag4(OA)
    A("s_cbranch_scc0 L_slowpub")
    A("buffer_store_dwordx4 v[%d:%d], v112, s[52:55], s40 offen" % (OA, OA + 3))
    A("s_branch L_pubdone\nL_slowpub:")
    A("buffer_store_dwordx4 v[%d:%d], v112, s[52:55], s40 offen sc1" % (OA, OA + 3))
    A("L_pubdone:")
    if stamps:
        A.stamp(11)
        A("s_cmp_lg_u32 s3, 4\ns_cbranch_scc1 L_end")
        A.stamp_flush([9, 10, 11])
    A("s_endpgm")

    A("L_service:")
    A.c("======== service WG: x = wg&7 (s35), y = (wg-192)>>3 (s33). q columns 64*(8x+y); y<7: wo rows 512x.., columns 64y..; F = 7x+y")
    A("v_mov_b32 v%d, %d" % (V_MISC, SMISC))
    common_setup()
    A("s_sub_u32 s33, s2, %d\ns_lshr_b32 s33, s33, 3" % (16 * NA))
    A("s_mov_b32 s40, s4\ns_mov_b32 s41, s5\ns_mov_b32 s42, 1792\ns_mov_b32 s43, 0x20000")
    A("s_cmp_lg_u32 s3, 0\ns_cbranch_scc1 L_s1")
    A("v_lshrrev_b32 v8, 5, v0\nv_and_b32 v9, 31, v0\nv_mul_u32_u24 v10, 896, v8\nv_lshl_add_u32 v10, v9, 4, v10")
    A("v_cmp_gt_u32 vcc, 28, v9\nv_mov_b32 v11, 0x1000\ns_nop 0\nv_cndmask_b32 v11, v11, v10, vcc")
    A("buffer_load_dwordx4 v[16:19], v11, s[40:43], 0 offen\nbuffer_load_dwordx4 v[20:23], v11, s[40:43], 0 offen offset:448")
    A("L_s1:")
    DP = ["", "nt"][dpol]
    def dma(n, vaddr, gstep, lds):
        A("s_mul_i32 s56, s3, %d\ns_add_u32 m0, s56, %d" % (n * 1024, lds))
        for j in range(n):
            if j: A("s_add_u32 m0, m0, 1024\ns_add_u32 s45, s45, %d" % gstep)
            else: A("s_nop 0")
            A("buffer_load_dwordx4 v%d, s[36:39], s45 offen %s lds" % (vaddr, DP))
    A("v_lshrrev_b32 v12, 3, v0\nv_and_b32 v13, 7, v0\nv_lshlrev_b32 v13, 4, v13\nv_lshl_add_u32 v14, v12, 13, v13\nv_mul_u32_u24 v15, 896, v12\nv_add_u32 v15, v15, v13")
    A("s_mov_b32 s36, s10\ns_mov_b32 s37, s11\ns_mov_b32 s38, %d\ns_mov_b32 s39, 0x20000" % (448 * 8192))
    A.c("bring the kv head's wq columns into L2 in 1KB row pieces (rows 56y + 7w + (l>>3)), then fetch our 64 columns")
    A("v_min_u32 v12, 6, v12\nv_lshlrev_b32 v12, 13, v12\nv_lshl_add_u32 v12, v13, 3, v12")
    A("s_mul_i32 s46, s33, 56\ns_mul_i32 s56, s3, 7\ns_add_u32 s46, s46, s56\ns_lshl_b32 s46, s46, 13\ns_lshl_b32 s56, s35, 10\ns_add_u32 s46, s46, s56")
    A("buffer_load_dword v45, v12, s[36:39], s46 offen")
    A("s_lshl_b32 s44, s35, 3\ns_add_u32 s44, s44, s33\ns_lshl_b32 s45, s44, 7\ns_mul_i32 s56, s3, %d\ns_add_u32 s45, s45, s56" % (56 * 8192))
    A("s_waitcnt lgkmcnt(0)")
    A.tags_setup()
    A("s_cmp_lg_u32 s3, 1\ns_cbranch_scc1 L_s2")
    A("v_lshl_add_u32 v9, v0, 4, v%d" % V_MISC)
    A("v_mov_b32 v28, 0\nv_mov_b32 v29, 0\nv_mov_b32 v30, 0\nv_mov_b32 v31, 0\ns_mov_b64 exec, 0xffffffff\nds_write_b128 v9, v[28:31] offset:%d\ns_mov_b64 exec, -1" % L_ST)
    A("L_s2:")
    A("s_cmp_lg_u32 s3, 0\ns_cbranch_scc1 L_s3")
    A.c("wave 0: LayerNorm of both rows of x (half-wave per row), bf16 roundings as in the reference")
    A("s_waitcnt vmcnt(1)")
    A.stamp(5)
    X = 24
    for i in range(8):
        A("v_lshlrev_b32 v%d, 16, v%d\nv_and_b32 v%d, 0xffff0000, v%d" % (X + 2 * i, 16 + i, X + 2 * i + 1, 16 + i))
    A("v_add_f32 v40, v%d, v%d\nv_mul_f32 v41, v%d, v%d\nv_fmac_f32 v41, v%d, v%d" % (X, X + 1, X, X, X + 1, X + 1))
    for i in range(2, 16):
        A("v_add_f32 v40, v40, v%d\nv_fmac_f32 v41, v%d, v%d" % (X + i, X + i, X + i))
    for r in (1, 2, 4, 8):
        A.nop(1)
        A("v_add_f32_dpp v40, v40, v40 row_ror:%d %s\nv_add_f32_dpp v41, v41, v41 row_ror:%d %s" % (r, DPP, r, DPP))
    A("v_mov_b32 v42, v40\nv_mov_b32 v43, v41")
    A.nop(2)
    A("v_permlane16_swap_b32 v40, v42\nv_permlane16_swap_b32 v41, v43")
    A("v_add_f32 v40, v40, v42\nv_add_f32 v41, v41, v43")
    A("\n".join(A.ln_stats_list(40, 41, 42, 43, 44)))
    for i in range(8):
        a, b = X + 2 * i, X + 2 * i + 1
        A("v_sub_f32 v%d, v%d, v42\nv_sub_f32 v%d, v%d, v42\nv_cvt_pk_bf16_f32 v44, v%d, v%d" % (a, a, b, b, a, b))
        A("v_lshlrev_b32 v%d, 16, v44\nv_and_b32 v%d, 0xffff0000, v44" % (a, b))
        A("v_mul_f32 v%d, v%d, v43\nv_mul_f32 v%d, v%d, v43\nv_cvt_pk_bf16_f32 v%d, v%d, v%d" % (a, a, b, b, 16 + i, a, b))
    A("v_add_u32 v10, v%d, v10" % V_MISC)
    A.mask(0x0fffffff, "exec")
    A("ds_write_b128 v10, v[16:19] offset:%d\nds_write_b128 v10, v[20:23] offset:%d" % (L_LN, L_LN + 448))
    A("s_mov_b64 exec, -1")
    A("L_s3:")
    A("s_waitcnt vmcnt(0)\ns_barrier")
    dma(7, 14, 8 * 8192, R_A)
    A.c("v9 = fragment row 8g + r, v10 = l&3, v11 = row*128")
    A("v_lshrrev_b32 v9, 2, v%d\nv_lshl_add_u32 v9, v%d, 3, v9\nv_lshlrev_b32 v11, 7, v9\nv_and_b32 v10, 3, v0" % (V_N, V_G))
    A("s_waitcnt vmcnt(0) lgkmcnt(0)\ns_barrier")
    A.stamp(6)
    A("s_cmp_ge_u32 s3, 4\ns_cbranch_scc1 L_s4")
    BQ = 16; AQ = 72
    A("v_and_b32 v8, 1, v%d\nv_mul_u32_u24 v8, 896, v8\nv_lshl_add_u32 v8, v%d, 4, v8\nv_add_u32 v8, v%d, v8" % (V_N, V_G, V_MISC))
    A("v_lshl_add_u32 v12, v10, 3, v11\ns_lshl_b32 s56, s3, 5\nv_add_u32 v12, s56, v12")
    for kk in range(14):
        A("ds_read_b128 v[%d:%d], v8 offset:%d" % (BQ + 4 * kk, BQ + 4 * kk + 3, L_LN + kk * 64))
        A("ds_read_b64_tr_b16 v[%d:%d], v12 offset:%d" % (AQ + 4 * kk, AQ + 4 * kk + 1, R_A + kk * 4096))
        A("ds_read_b64_tr_b16 v[%d:%d], v12 offset:%d" % (AQ + 4 * kk + 2, AQ + 4 * kk + 3, R_A + kk * 4096 + 512))
    A("s_waitcnt lgkmcnt(0)")
    for kk in range(14):
        A(mfma(128, AQ + 4 * kk, BQ + 4 * kk, kk == 0))
    A("v_and_b32 v16, 1, v%d\nv_lshlrev_b32 v16, 14, v16\nv_lshl_add_u32 v16, v%d, 4, v16" % (V_N, V_G))
    A("s_lshl_b32 s45, s44, 8\ns_lshl_b32 s56, s3, 6\ns_add_u32 s45, s45, s56\ns_add_u32 s45, s45, %d" % WS_Q)
    A("s_getreg_b32 s46, hwreg(HW_REG_XCC_ID)\ns_and_b32 s46, s46, 15\ns_lshl_b32 s46, s46, 10")
    A("v_cvt_pk_bf16_f32 v12, v128, v129\nv_cvt_pk_bf16_f32 v13, v130, v131")
    A("v_lshl_or_b32 v128, v12, 16, v%d\nv_and_b32 v129, 0xffff0000, v12\nv_or_b32 v129, v129, v%d" % (V_TAG, V_TAG + 1))
    A("v_lshl_or_b32 v130, v13, 16, v%d\nv_and_b32 v131, 0xffff0000, v13\nv_or_b32 v131, v131, v%d" % (V_TAG + 2, V_TAG + 3))
    A("v_or_b32 v128, s46, v128")
    A.mask(0x00030003, "exec")
    A("buffer_store_dwordx4 v[128:131], v16, s[52:55], s45 offen sc1")
    A("s_mov_b64 exec, -1")
    A.stamp(7)
    A("L_s4:")
    A("s_cmp_lt_u32 s33, 7\ns_cbranch_scc1 L_s5")
    A.c("y == 7: touch the o-partial lines of this kv head so that later polls of them hit L2; done")
    A("s_lshr_b32 s56, s3, 2\ns_lshl_b32 s47, s56, 3\ns_add_u32 s47, s47, s35\ns_lshl_b32 s47, s47, 15\ns_and_b32 s56, s3, 3\ns_mul_i32 s56, s56, 6144\ns_add_u32 s47, s47, s56\ns_add_u32 s47, s47, %d" % WS_OP)
    A("v_min_u32 v8, 47, v0\nv_lshlrev_b32 v8, 7, v8\nbuffer_load_dword v9, v8, s[52:55], s47 offen sc1\ns_endpgm")
    A("L_s5:")
    A("s_mul_i32 s65, s35, 7\ns_add_u32 s65, s65, s33")
    A.c("row-wise L2 fill of gate/up (rows 64y + 16(w&3) + (l>>2), 4 lines) and wo (64KB contiguous), then the slices -> LDS")
    A("s_cmp_lt_u32 s3, 4\ns_cselect_b32 s36, s16, s18\ns_cselect_b32 s37, s17, s19\ns_mov_b32 s38, %d" % (448 * 3584))
    A("v_lshrrev_b32 v14, 2, v0\nv_mul_u32_u24 v14, 3584, v14\nv_lshl_add_u32 v12, v10, 7, v14\nv_lshl_add_u32 v14, v10, 4, v14")
    A("s_lshl_b32 s46, s33, 2\ns_and_b32 s57, s3, 3\ns_add_u32 s46, s46, s57\ns_mul_i32 s46, s46, %d\ns_mul_i32 s56, s35, 448\ns_and_b32 s56, s56, 0xffffff80\ns_add_u32 s46, s46, s56" % (16 * 3584))
    A("buffer_load_dword v45, v12, s[36:39], s46 offen")
    A("s_mov_b32 s60, s12\ns_mov_b32 s61, s13\ns_mov_b32 s62, %d\ns_mov_b32 s63, 0x20000\nv_lshlrev_b32 v12, 7, v0" % (4096 * 896))
    A("s_lshl_b32 s46, s65, 16\ns_lshl_b32 s56, s3, 13\ns_add_u32 s46, s46, s56")
    A("buffer_load_dword v46, v12, s[60:63], s46 offen")
    A("s_mul_i32 s45, s57, %d\ns_lshl_b32 s56, s65, 6\ns_add_u32 s45, s45, s56" % (112 * 3584))
    A("s_waitcnt vmcnt(1)\ns_barrier")
    dma(7, 14, 16 * 3584, R_G)
    A("v_lshlrev_b32 v14, 4, v0\ns_mul_i32 s45, s65, 28672\ns_mov_b32 s36, s20\ns_mov_b32 s37, s21\ns_mov_b32 s38, %d\ns_lshl_b32 s56, s3, 12\ns_add_u32 s45, s45, s56\ns_add_u32 m0, s56, %d" % (1792 * 896, R_D))
    A("s_cmp_eq_u32 s3, 7\ns_cbranch_scc1 L_s5a")
    for j in range(4):
        A("buffer_load_dwordx4 v14, s[36:39], s45 offen offset:%d nt lds" % (j * 1024))
    A("L_s5a:")
    A("s_mov_b32 s36, s12\ns_mov_b32 s37, s13\ns_mov_b32 s38, %d" % (4096 * 896))
    A("s_mul_i32 s45, s35, %d\ns_mul_i32 s56, s3, %d\ns_add_u32 s45, s45, s56\ns_lshl_b32 s56, s33, 7\ns_add_u32 s45, s45, s56" % (512 * 896, 64 * 896))
    dma(8, 15, 8 * 896, R_A)
    A.c("pull the code below into L2")
    A("s_getpc_b64 s[56:57]\nL_pc:\ns_lshl_b32 s46, s3, 10\nv_add_u32 v14, s46, v14\nv_min_u32 v14, L_end-L_pc-12, v14")
    A("global_load_dwordx4 v[28:31], v14, s[56:57]")
    A.c("addresses and lane masks of the later stages")
    A("v_lshlrev_b32 v21, 4, v%d\nv_add_u32 v22, v21, v%d" % (V_G, V_MISC))
    A("s_mov_b32 s48, 0xcccccccc\ns_mov_b32 s49, s48\ns_mov_b32 s50, 0xf0f0f0f0\ns_mov_b32 s51, s50")
    A("v_and_b32 v12, 8, v%d\nv_lshlrev_b32 v12, 2, v12\nv_lshl_add_u32 v12, v10, 3, v12\nv_lshl_add_u32 v12, v%d, 1, v12\ns_lshl_b32 s56, s3, 7\nv_add_u32 v12, s56, v12" % (V_N, V_G))
    A("v_bfe_u32 v13, v%d, 2, 1\nv_mul_u32_u24 v248, %d, v13\nv_add3_u32 v248, v248, v12, v%d\nv_mul_u32_u24 v13, 896, v13\nv_add_u32 v12, v12, v13\nv_mov_b32 v252, 0\nv_mov_b32 v253, 0" % (V_N, HSTR, V_MISC))
    A("buffer_load_short_d16_hi v252, v12, s[40:43], 0 offen\nbuffer_load_short_d16_hi v253, v12, s[40:43], 0 offen offset:64")
    A("v_and_b32 v12, 1, v0\nv_lshlrev_b32 v12, 3, v12\nv_lshl_add_u32 v12, v9, 6, v12\nv_lshrrev_b32 v13, 1, v10\nv_mul_u32_u24 v13, 28672, v13\ns_lshl_b32 s56, s3, 4\ns_add_u32 s56, s56, %d\nv_add3_u32 v12, v12, v13, s56" % R_G)
    A("v_lshl_add_u32 v13, v10, 3, v11\ns_and_b32 s56, s3, 3\ns_lshl_b32 s56, s56, 5\nv_add_u32 v13, s56, v13")
    A("v_mul_u32_u24 v14, 896, v9\nv_lshl_add_u32 v14, v10, 5, v14\ns_lshl_b32 s56, s3, 7\ns_add_u32 s56, s56, %d\nv_add_u32 v14, s56, v14" % R_D)
    A("s_lshr_b32 s56, s3, 2\ns_lshl_b32 s47, s56, 3\ns_add_u32 s47, s47, s35\ns_lshl_b32 s46, s47, 11\ns_add_u32 s46, s46, %d\ns_lshl_b32 s47, s47, 15" % WS_ML)
    A("s_and_b32 s57, s3, 3\ns_lshl_b32 s44, s57, 9\ns_add_u32 s47, s47, s44\ns_add_u32 s47, s47, %d" % WS_OP)
    A("v_mul_u32_u24 v8, 6144, v%d\nv_lshl_add_u32 v8, v%d, 4, v8\nv_add_u32 v15, 4096, v8" % (V_G, V_N))
    A("v_mul_u32_u24 v16, 3, v%d\nv_min_u32 v17, 11, v%d\nv_add_u32 v16, v16, v17\nv_subrev_u32 v17, 12, v16\nv_min_u32 v16, v16, v17\nv_lshlrev_b32 v16, 7, v16" % (V_G, V_N))
    A("v_and_b32 v17, 8, v%d\nv_lshl_add_u32 v17, v%d, 1, v17\nv_and_b32 v9, 6, v%d\nv_lshl_add_u32 v17, v9, 4, v17\nv_and_b32 v9, 1, v%d\nv_lshl_add_u32 v17, v9, 9, v17" % (V_N, V_G, V_N, V_N))
    A("s_mul_i32 s56, s56, %d\ns_lshl_b32 s44, s57, 7\ns_add_u32 s56, s56, s44\nv_add3_u32 v17, v17, s56, v%d" % (OSTR, V_MISC))
    A("v_mul_u32_u24 v18, %d, v9\nv_add_u32 v18, v18, v22" % OSTR)
    A("s_mul_i32 s44, s35, 28\ns_lshl_b32 s56, s33, 2\ns_add_u32 s44, s44, s56\ns_add_u32 s44, s44, s57\ns_lshl_b32 s44, s44, 7\ns_add_u32 s44, s44, %d" % WS_AP)
    A("s_mul_i32 s61, s65, 3584\ns_lshl_b32 s56, s3, 9\ns_add_u32 s61, s61, s56\ns_add_u32 s61, s61, %d" % WS_FP)
    A("v_lshl_add_u32 v19, v%d, 6, v21\nv_lshlrev_b32 v245, 7, v%d\nv_lshl_add_u32 v245, v%d, 4, v245" % (V_N, V_G, V_N))
    A("s_add_u32 s45, s56, %d\nv_mul_u32_u24 v249, 7168, v%d\nv_lshl_add_u32 v249, v%d, 4, v249" % (WS_AP, V_G, V_N))
    A("v_mul_u32_u24 v250, %d, v9\nv_add_u32 v250, v250, v22\nv_lshl_add_u32 v23, v9, 6, v22" % HSTR)
    A("v_and_b32 v251, 14, v%d\nv_lshlrev_b32 v251, 4, v251\nv_lshl_add_u32 v251, v9, 8, v251\nv_add_u32 v251, v251, v%d" % (V_N, V_MISC))
    A("v_and_b32 v247, 4, v%d\nv_lshlrev_b32 v247, 6, v247\nv_lshl_add_u32 v247, v%d, 3, v247\ns_lshl_b32 s56, s3, 5\nv_add3_u32 v247, v247, s56, v%d" % (V_N, V_G, V_MISC))
    A("v_and_b32 v254, 6, v%d\nv_lshl_add_u32 v254, v9, 6, v254\nv_lshl_add_u32 v254, v%d, 3, v254\ns_lshl_b32 s56, s3, 4\nv_add3_u32 v254, v254, s56, v%d" % (V_N, V_G, V_MISC))
    A("s_mov_b32 s20, 0x00110011\ns_mov_b32 s21, s20\ns_mov_b32 s66, 0x00ff00ff\ns_mov_b32 s67, s66")
    TM = (34, 10, 12, 62)
    for t in range(4):
        A("s_mov_b32 s%d, 0x%08x\ns_mov_b32 s%d, s%d" % (TM[t], 0x00030003 << (2 * t), TM[t] + 1, TM[t]))
    ga = 2 * math.sqrt(2 / math.pi) * math.log2(math.e); gb = ga * 0.044715
    A("v_mov_b32 v246, %s\ns_mov_b32 s60, %s" % (f32(-ga), f32(-gb)))
    AB = 216
    for k in range(16):
        A("v_mov_b32 v%d, 0" % (AB + k))
    A("s_lshr_b32 s19, s65, 1\ns_lshl_b32 s18, s19, 7\ns_and_b32 s56, s65, 1\ns_lshl_b32 s57, s56, 4\ns_add_u32 s18, s18, s57\ns_add_u32 s18, s18, %d" % WS_FP)
    A("v_lshrrev_b32 v9, 2, v0\nv_mul_u32_u24 v200, 3584, v9\nv_lshl_add_u32 v200, v10, 5, v200\nv_cmp_gt_u32 vcc, 8, v9")
    A("v_add_u32 v201, %d, v200\nv_add_u32 v202, %d, v200\nv_add_u32 v203, %d, v200" % (16 * 3584, 32 * 3584, 48 * 3584))
    A("v_cndmask_b32 v203, v200, v203, vcc\nv_cndmask_b32 v204, 0, 1.0, vcc\nv_mov_b32 v205, 0\nv_mov_b32 v208, 0")
    A("v_lshlrev_b32 v206, 3, v10\nv_lshl_add_u32 v206, v%d, 1, v206\ns_lshl_b32 s19, s19, 5" % V_G)
    A("s_mul_i32 s57, s56, %d\ns_add_u32 s57, s57, s19\nv_add3_u32 v207, v206, s57, v%d\ns_mul_i32 s56, s56, 896\ns_add_u32 s19, s19, s56" % (HSTR, V_MISC))
    A("s_mov_b32 s40, s22\ns_mov_b32 s41, s23\ns_mov_b32 s16, 0x000f000f\ns_mov_b32 s17, s16")
    A("s_waitcnt vmcnt(0)\ns_barrier")
    WA = 136; DA = 120
    A.c("weight fragments -> registers: down v120.., gate|up tile (waves 0..3) or wo tile (waves 4..7) v136..")
    for t in range(4):
        A("ds_read_b64_tr_b16 v[%d:%d], v14 offset:%d" % (DA + 4 * t, DA + 4 * t + 1, t * 8))
        A("ds_read_b64_tr_b16 v[%d:%d], v14 offset:%d" % (DA + 4 * t + 2, DA + 4 * t + 3, t * 8 + 4 * 896))
    A("s_cmp_ge_u32 s3, 4\ns_cbranch_scc1 L_s6")
    for kk in range(14):
        A("ds_read_b64_tr_b16 v[%d:%d], v12 offset:%d" % (WA + 4 * kk, WA + 4 * kk + 1, kk * 2048))
        A("ds_read_b64_tr_b16 v[%d:%d], v12 offset:%d" % (WA + 4 * kk + 2, WA + 4 * kk + 3, kk * 2048 + 256))
    A.c("column sums of the tile: LN(h).W = (h.W - mean*colsum(W)) / sigma")
    A("v_mov_b32 v56, 0x3f803f80\nv_mov_b32 v57, v56\nv_mov_b32 v58, v56\nv_mov_b32 v59, v56\ns_nop 1\ns_waitcnt lgkmcnt(0)")
    for kk in range(14):
        A(mfma(24, WA + 4 * kk, 56, kk == 0))
    A.nop(8)
    A("v_cndmask_b32 v24, v24, v25, s[48:49]\nv_cndmask_b32 v26, v26, v27, s[48:49]\nv_cndmask_b32 v244, v24, v26, s[50:51]")
    A("s_branch L_s7\nL_s6:")
    for kk in range(16):
        A("ds_read_b64_tr_b16 v[%d:%d], v13 offset:%d" % (WA + 4 * kk, WA + 4 * kk + 1, kk * 4096))
        A("ds_read_b64_tr_b16 v[%d:%d], v13 offset:%d" % (WA + 4 * kk + 2, WA + 4 * kk + 3, kk * 4096 + 512))
    A("L_s7:")
    A.stamp(17)
    A.c("split weights exp(m - M) / L of batch w>>2: lane n of row g holds split (3g + n) mod 12")
    A.gather([(16, 0)], 24, 20, "s46", 32)
    A("v_cmp_gt_u32 vcc, %d, v%d\nv_mov_b32 v28, v24\nv_mov_b32 v29, v25\nv_cndmask_b32 v26, 0, v26, vcc\nv_cndmask_b32 v27, 0, v27, vcc" % (NA, V_N))
    for r in (1, 2, 4, 8):
        A("v_max_f32_dpp v28, v28, v28 row_ror:%d %s\nv_max_f32_dpp v29, v29, v29 row_ror:%d %s" % (r, DPP, r, DPP))
        A.nop(1)
    A("v_sub_f32 v24, v24, v28\nv_sub_f32 v25, v25, v29\nv_mul_f32 v24, %s, v24\nv_mul_f32 v25, %s, v25\nv_exp_f32 v24, v24\nv_exp_f32 v25, v25\ns_nop 0" % (f32(C1), f32(C1)))
    A("v_mul_f32 v26, v24, v26\nv_mul_f32 v27, v25, v27")
    for r in (1, 2, 4, 8):
        A.nop(1)
        A("v_add_f32_dpp v26, v26, v26 row_ror:%d %s\nv_add_f32_dpp v27, v27, v27 row_ror:%d %s" % (r, DPP, r, DPP))
    A("v_rcp_f32 v26, v26\nv_rcp_f32 v27, v27\ns_nop 0\nv_mul_f32 v24, v24, v26\nv_mul_f32 v25, v25, v27")
    A.nop(2)
    for hh in range(2):
        for i in range(3):
            A("v_mov_b32_dpp v%d, v%d row_newbcast:%d %s" % (210 + 2 * i + hh, 24 + hh, i, DPP))
    A.mask(0xaaaaaaaa)
    for i in range(3):
        A("v_cndmask_b32 v%d, v%d, v%d, s[56:57]" % (210 + 2 * i, 210 + 2 * i, 211 + 2 * i))
    A.c("======== o = sum of weighted partials -> bf16 -> LDS; waves 4..7: o . wo tile -> attn partial of this kv head")
    A.gather2([[(8, 0), (8, 256)], [(8, 2048), (8, 2304)], [(15, 0), (15, 256)]], 24, 20, "s47", sentinel=0x00010001)
    A.stamp(12)
    for r in range(24, 32, 2):
        A("v_pk_mul_f32 v[%d:%d], v[%d:%d], v[210:211] op_sel_hi:[1,0]" % (r, r + 1, r, r + 1))
    for i in range(1, 3):
        for r in range(24, 32, 2):
            A("v_pk_fma_f32 v[%d:%d], v[%d:%d], v[%d:%d], v[%d:%d] op_sel_hi:[1,0,1]" % (r, r + 1, r + 8 * i, r + 8 * i + 1, 210 + 2 * i, 211 + 2 * i, r, r + 1))
    A.swapreduce2(24, 28)
    A("v_cvt_pk_bf16_f32 v24, v24, v28\nds_write_b16 v17, v24 offset:%d\nds_write_b16_d16_hi v17, v24 offset:%d" % (L_SO, L_SO + 16))
    A("s_cmp_lt_u32 s3, 4\ns_waitcnt lgkmcnt(0)\ns_barrier\ns_cbranch_scc1 L_s8")
    def chain(n, rd, mf, side=None):
        for kk in range(min(pre, n)): rd(kk)
        for kk in range(n):
            if kk + pre < n: rd(kk + pre)
            A("s_waitcnt lgkmcnt(%d)" % (min(n - 1, kk + pre) - kk))
            mf(kk)
            if side: side(kk)
    chain(16, lambda kk: A("ds_read_b128 v[%d:%d], v18 offset:%d" % (56 + 4 * kk, 59 + 4 * kk, L_SO + kk * 64)),
          lambda kk: A(mfma(24, WA + 4 * kk, 56 + 4 * kk, kk == 0)))
    A("s_mov_b64 exec, s[34:35]")
    A.nop(7)
    A.tag4(24)
    A("buffer_store_dwordx4 v[24:27], v19, s[52:55], s44 offen sc1")
    A.c("reads racing with the write-through of the same lines delay it: poll only after our stores are acknowledged")
    A("s_mov_b64 exec, -1\ns_waitcnt vmcnt(0)")
    A("L_s8:")
    A("s_cmp_eq_u32 s3, 7\ns_barrier")
    A.stamp(13)
    A("s_cbranch_scc1 L_final")
    A.c("======== waves 0..6: h = x + sum of attn partials (64 columns x 2 rows each), partial LayerNorm sums")
    A.gather2([[(249, 3584 * i), (249, 3584 * i + 256)] for i in range(2)], 28, 20, "s45", first=bool(apf))
    A.stamp(14)
    for k in range(28, 36, 2):
        A("v_pk_add_f32 v[%d:%d], v[%d:%d], v[%d:%d]" % (k, k + 1, k, k + 1, k + 8, k + 9))
    A.swapreduce2(28, 32)
    A("v_cvt_pk_bf16_f32 v28, v28, v32\nv_lshlrev_b32 v29, 16, v28\nv_and_b32 v28, 0xffff0000, v28\nv_add_f32 v29, v252, v29\nv_add_f32 v28, v253, v28\nv_cvt_pk_bf16_f32 v28, v29, v28")
    A("ds_write_b16 v248, v28 offset:%d\nds_write_b16_d16_hi v248, v28 offset:%d" % (L_H, L_H + 64))
    A("v_lshlrev_b32 v29, 16, v28\nv_and_b32 v30, 0xffff0000, v28\nv_add_f32 v32, v29, v30\nv_mul_f32 v33, v29, v29\nv_fmac_f32 v33, v30, v30")
    for m in ("quad_perm:[1,0,3,2]", "quad_perm:[2,3,0,1]", "row_ror:8"):
        A("v_add_f32_dpp v32, v32, v32 %s %s\ns_nop 0\nv_add_f32_dpp v33, v33, v33 %s %s" % (m, DPP, m, DPP))
    A("s_mov_b64 exec, s[20:21]\nds_write_b64 v247, v[32:33] offset:%d\ns_mov_b64 exec, -1" % L_ST)
    A("s_cmp_ge_u32 s3, 4\ns_waitcnt lgkmcnt(0)\ns_barrier")
    A.stamp(18)
    A("s_cbranch_scc1 L_f2")
    A.c("waves 0..3: rows 0..7 of the tile = 8 gate columns, rows 8..15 = the same 8 up columns; column parity = batch")
    HB = 56
    A("ds_read_b128 v[32:35], v251 offset:%d\nds_read_b128 v[36:39], v251 offset:%d" % (L_ST, L_ST + 16))
    side = [["v_pk_add_f32 v[32:33], v[32:33], v[34:35]", "v_pk_add_f32 v[36:37], v[36:37], v[38:39]"], ["v_pk_add_f32 v[40:41], v[32:33], v[36:37]"]]
    for m in ("row_ror:2", "row_ror:4", "row_ror:8"):
        side += [["v_add_f32_dpp v40, v40, v40 %s %s" % (m, DPP), "v_add_f32_dpp v41, v41, v41 %s %s" % (m, DPP)]]
    st = [x for x in A.ln_stats_list(40, 41, 42, 43, 44) if x != "s_nop 0"]
    side += [st[0:2], st[2:4], st[4:6], st[6:8], st[8:10], st[10:11], st[11:13], st[13:14], ["s_nop 7"]]
    assert len(side) == 14
    chain(14, lambda kk: A("ds_read_b128 v[%d:%d], v250 offset:%d" % (HB + 4 * kk, HB + 4 * kk + 3, L_H + kk * 64)),
          lambda kk: A(mfma(24, WA + 4 * kk, HB + 4 * kk, kk == 0)),
          lambda kk: A("\n".join(side[kk])))
    A("v_cndmask_b32 v24, v24, v25, s[48:49]\nv_cndmask_b32 v26, v26, v27, s[48:49]\nv_cndmask_b32 v24, v24, v26, s[50:51]")
    A("v_fma_f32 v24, -v244, v42, v24\nv_mul_f32 v24, v24, v43\nv_cvt_pk_bf16_f32 v24, v24, v24\nv_lshlrev_b32 v24, 16, v24")
    A.c("gelu_tanh(g) = g / (1 + exp(-2u)), u = sqrt(2/pi) (g + 0.044715 g^3)")
    A("v_mul_f32 v26, v24, v24\nv_fma_f32 v26, v26, s60, v246\nv_mul_f32 v26, v26, v24\nv_exp_f32 v26, v26\nv_mov_b32 v27, v24\nv_add_f32 v26, 1.0, v26\nv_rcp_f32 v26, v26")
    A("v_permlane32_swap_b32 v27, v25")
    A("v_mul_f32 v26, v26, v24\nv_cvt_pk_bf16_f32 v26, v26, v26\nv_lshlrev_b32 v26, 16, v26\nv_mul_f32 v26, v26, v25\nv_cvt_pk_bf16_f32 v26, v26, v26")
    A("s_mov_b64 exec, 0x00ff00ff\nds_write_b16 v254, v26 offset:%d" % L_ACT)
    A("L_f2:")
    if dmask:
        A("s_mov_b64 exec, s[%d:%d]\ns_waitcnt lgkmcnt(0)\ns_barrier" % (TM[0], TM[0] + 1))
        A.stamp(19)
        A.c("waves 0..6: act . w_down for 64 columns; tile t accumulates in columns 2t, 2t+1 (batches)")
        for t in range(4):
            if t: A("s_mov_b64 exec, s[%d:%d]" % (TM[t], TM[t] + 1))
            A("ds_read_b128 v[%d:%d], v23 offset:%d" % (AB + 4 * t, AB + 4 * t + 3, L_ACT))
        A("s_mov_b64 exec, -1")
        for t in range(4):
            A("s_waitcnt lgkmcnt(%d)" % (3 - t))
            A(mfma(48, DA + 4 * t, AB + 4 * t, t == 0))
        A("s_mov_b64 exec, s[66:67]")
        A.nop(7)
    else:
        A("s_mov_b64 exec, -1\ns_waitcnt lgkmcnt(0)\ns_barrier")
        A.stamp(19)
        A("ds_read_b128 v[24:27], v23 offset:%d\ns_waitcnt lgkmcnt(0)" % L_ACT)
        for t in range(4):
            A(mfma(48 + 4 * t, DA + 4 * t, 24, True))
        A("s_mov_b64 exec, s[66:67]")
        A.nop(5)
        for k in range(4): A("v_cndmask_b32 v%d, v%d, v%d, s[48:49]" % (48 + k, 48 + k, 52 + k))
        for k in range(4): A("v_cndmask_b32 v%d, v%d, v%d, s[48:49]" % (56 + k, 56 + k, 60 + k))
        for k in range(4): A("v_cndmask_b32 v%d, v%d, v%d, s[50:51]" % (48 + k, 48 + k, 56 + k))
    A.tag4(48)
    A("buffer_store_dwordx4 v[48:51], v245, s[52:55], s61 offen sc1")
    if stamps:
        A.stamp(15)
        A("s_cmp_lg_u32 s3, 0\ns_cbranch_scc1 L_end")
        A.stamp_flush([0, 5, 6, 7, 17, 12, 13, 14, 18, 19, 15])
    A("s_endpgm")
    A("L_final:")
    A.c("======== wave 7: 16 columns (tile F>>1) of output row F&1 = h + sum of the 56 down partials")
    A("s_barrier")
    A("ds_read_u16_d16_hi v208, v207 offset:%d" % L_H)
    A.c("h needed every workgroup's results, so every wave has read the epoch: advance it")
    A("s_cmp_lg_u32 s65, 0\ns_cbranch_scc1 L_noE")
    A("s_mov_b64 exec, 1\nbuffer_store_dwordx4 v[%d:%d], v205, s[52:55], 0 offen offset:%d\ns_mov_b64 exec, -1" % (V_TAG, V_TAG + 3, WS_E))
    A("L_noE:")
    A.c("poll at a low rate until partials show up: a read that races with the write-through of a line delays it")
    A("s_barrier")
    A.gather2([[(200, 0), (201, 0)], [(202, 0), (203, 0)]], 24, 20, "s18", first=True, slow=back)
    A("v_pk_add_f32 v[24:25], v[24:25], v[28:29]\nv_pk_add_f32 v[26:27], v[26:27], v[30:31]")
    A("v_pk_fma_f32 v[32:33], v[36:37], v[204:205], v[32:33] op_sel_hi:[1,0,1]\nv_pk_fma_f32 v[34:35], v[38:39], v[204:205], v[34:35] op_sel_hi:[1,0,1]")
    A("v_pk_add_f32 v[24:25], v[24:25], v[32:33]\nv_pk_add_f32 v[26:27], v[26:27], v[34:35]")
    A.swapreduce(24)
    for r in (4, 8):
        A.nop(2)
        A("v_add_f32_dpp v24, v24, v24 row_ror:%d %s" % (r, DPP))
    A("s_waitcnt lgkmcnt(0)")
    A("v_cvt_pk_bf16_f32 v24, v24, v24\nv_lshlrev_b32 v24, 16, v24\nv_add_f32 v24, v208, v24\nv_cvt_pk_bf16_f32 v24, v24, v24")
    A("s_mov_b64 exec, s[16:17]")
    A("buffer_store_short v24, v206, s[40:43], s19 offen")
    if stamps:
        A.stamp(20)
        A("s_waitcnt vmcnt(0)")
        A.stamp(16)
        A.stamp_flush([20, 16])
    A("L_end:\ns_endpgm")
    A.L.append('.section .rodata,"a"\n.p2align 6\n.amdhsa_kernel %s_kernel' % NAME)
    A.L.append("  .amdhsa_next_free_vgpr 256\n  .amdhsa_next_free_sgpr 100\n  .amdhsa_accum_offset 256")
    A.L.append("  .amdhsa_group_segment_fixed_size 0\n  .amdhsa_kernarg_size 96\n  .amdhsa_user_sgpr_count 2\n  .amdhsa_user_sgpr_kernarg_segment_ptr 1\n  .amdhsa_system_sgpr_workgroup_id_x 1\n  .amdhsa_float_denorm_mode_32 3\n.end_amdhsa_kernel")
    return "\n".join(A.L) + "\n"

if __name__ == "__main__":
    out = sys.argv[1]
    kw = {}
    for a in sys.argv[2:]:
        k, v = a.split("="); kw[k] = int(v)
    open(out, "w").write(build(**kw))
```

```python
import sys, math, struct
NAME = "sequential_preLN__gqa_block_cached__geglu_ffn__decode"
HEADER = open("cdna_kernels/%s.s.ref" % NAME).read().split("; Override launch")[0]

DOC = """
; ---------------------------------------------------------------------------------------------------------
; ---------------------------------------------------------------------------------------------------------"""

NA = 12
NSL = 22
WS_E = 0
WS_Q = 0x1000
WS_AP = 0xA000
WS_ML = 0x18000
WS_OP = 0x20000
WS_FP = 0xA0000
WS_END = 0x100000
STAMP_OFF = 128 << 20
RING = 8
MISC = RING * 16384
L_Q = 0; L_P = 1024; PSTR = 1536; L_LSUM = 4096; L_MX = 4736
L_LAND = 4816; L_QF = 4820; L_C1 = 4824; L_C2 = 4828
L_PROG = 4848
R_A = 0; R_G = 65536; R_U = R_G + 28672; R_D = R_U + 28672; SMISC = R_D + 28672
L_LN = 0; L_SO = 0; OSTR = 1088; L_H = 2304; HSTR = 960; L_ACT = 4352; L_ST = 4480
LDS_TOTAL = SMISC + 5120
assert MISC + 8192 <= LDS_TOTAL <= 163840
TAGM = 0x3ff
BUDGET = 1 << 22
V_G = 1; V_N = 2; V_MISC = 3; V_TAG = 4
DPP = "row_mask:0xf bank_mask:0xf"
C1 = 0.0625 * math.log2(math.e)

def f32(x): return "0x%08x" % struct.unpack("<I", struct.pack("<f", x))[0]

class Gen:
    def __init__(self, stamps):
        self.L = []; self.uid = 0; self.stamps = stamps
    def __call__(self, s):
        for line in s.split("\n"):
            line = line.strip()
            if line: self.L.append(("" if line.endswith(":") else "    ") + line)
    def c(self, s): self.L.append("    ; " + s)
    def lab(self, p="L"):
        self.uid += 1
        return "%s_%d" % (p, self.uid)
    def nop(self, n):
        while n > 0:
            k = min(n, 16); self("s_nop %d" % (k - 1)); n -= k
    def mask(self, m32, dst="s[56:57]"):
        self("s_mov_b32 s56, 0x%08x\ns_mov_b32 s57, s56" % m32)
        if dst == "exec": self("s_mov_b64 exec, s[56:57]")
    def stamp(self, idx):
        if not self.stamps: return
        self("s_memrealtime s[%d:%d]\ns_waitcnt lgkmcnt(0)" % (68 + 2 * (idx % 16), 69 + 2 * (idx % 16)))
    def stamp_flush(self, idxs):
        if not self.stamps: return
        self("s_mov_b64 exec, 1\ns_mul_i32 s60, s2, 256\ns_add_u32 s60, s60, %d\nv_mov_b32 v255, s60" % STAMP_OFF)
        for idx in idxs:
            self("v_mov_b32 v250, s%d\nv_mov_b32 v251, s%d" % (68 + 2 * (idx % 16), 69 + 2 * (idx % 16)))
            self("global_store_dwordx2 v255, v[250:251], s[26:27] offset:%d\ns_nop 1" % (idx * 8))
        self("s_mov_b64 exec, -1")
    def again(self, l, sleep):
        if sleep: self("s_sleep %d" % sleep)
        self("s_sub_u32 s64, s64, %d\ns_cbranch_scc0 %s\ns_mov_b32 s64, 0" % (1 + sleep // 2, l))
    def lds_wait_ge(self, off, sreg, target, vt, cached=True, sleep=1):
        d = self.lab("Lw"); l = self.lab("Lw")
        if cached:
            self("s_cmp_ge_u32 s%d, %s\ns_cbranch_scc1 %s" % (sreg, target, d))
        self("%s:" % l)
        self("ds_read_b32 v%d, v%d offset:%d\ns_waitcnt lgkmcnt(0)" % (vt, V_MISC, off))
        self("v_readfirstlane_b32 s%d, v%d\ns_cmp_ge_u32 s%d, %s\ns_cbranch_scc1 %s" % (sreg, vt, sreg, target, d))
        self.again(l, sleep)
        self("%s:" % d)
    def lds_signal_add(self, off, vt):
        self("s_mov_b64 exec, 1\nv_mov_b32 v%d, 1\nds_add_u32 v%d, v%d offset:%d\ns_mov_b64 exec, -1" % (vt, V_MISC, vt, off))
    def _load(self, rr, va, soff, oo):
        self("buffer_load_dwordx4 v[%d:%d], v%d, s[52:55], %s offen offset:%d sc1" % (rr, rr + 3, va, soff, oo))
    def _check(self, regs, vt, dst):
        w = []
        for rr in regs:
            for k in range(4):
                self("v_xor_b32 v%d, s%d, v%d" % (rr + k, 28 + k, rr + k)); w.append(rr + k)
        self("v_or3_b32 v%d, v%d, v%d, v%d" % (vt, w[0], w[1], w[2])); w = w[3:]
        while len(w) > 1:
            self("v_or3_b32 v%d, v%d, v%d, v%d" % (vt, vt, w[0], w[1])); w = w[2:]
        self("v_bitop3_b32 v%d, v%d, v%d, s58 bitop3:0xa8\nv_cmp_ne_u32 %s, 0, v%d" % (vt, vt, w[0], dst, vt))
    def gather(self, offs, vd, vt, soff, sleep):
        l = self.lab("Lg"); d = self.lab("Lg")
        self("%s:" % l)
        for i, (va, oo) in enumerate(offs): self._load(vd + 4 * i, va, soff, oo)
        self("s_waitcnt vmcnt(0)")
        self._check([vd + 4 * i for i in range(len(offs))], vt, "vcc")
        self("s_cbranch_vccz %s" % d)
        self.again(l, sleep)
        self("%s:" % d)
    def gather2(self, groups, vd, vt, soff, sentinel=None, first=False, slow=0, MS=(4, 6, 8)):
        regs = []; r = vd
        for g in groups:
            regs.append([r + 4 * k for k in range(len(g))]); r += 4 * len(g)
        n = len(groups)
        M = ["s[%d:%d]" % (m, m + 1) for m in MS]
        def load(i):
            for (va, oo), rr in zip(groups[i], regs[i]): self._load(rr, va, soff, oo)
        def anyleft():
            self("s_or_b64 s[14:15], %s, %s" % (M[0], M[1]))
            for i in range(2, n): self("s_or_b64 s[14:15], s[14:15], %s" % M[i])
        if sentinel is not None:
            l = self.lab("Ls"); d = self.lab("Ls")
            self.mask(sentinel, "exec")
            self("%s:" % l)
            self._load(vd, groups[0][0][0], soff, groups[0][0][1])
            self("s_waitcnt vmcnt(0)")
            self._check([vd], vt, "vcc")
            self("s_cmp_lg_u64 vcc, exec\ns_cbranch_scc1 %s" % d)
            self.again(l, 6)
            self("%s:" % d)
        l = self.lab("Lg"); d = self.lab("Lg"); dd = self.lab("Lg")
        if first:
            if slow:
                sl = self.lab("Ls")
                self("%s:\ns_sleep %d" % (sl, slow))
            for i in range(n): load(i)
            left = sum(len(g) for g in groups)
            for i in range(n):
                left -= len(groups[i])
                self("s_waitcnt vmcnt(%d)" % left)
                self._check(regs[i], vt, M[i])
            anyleft()
            self("s_cbranch_scc0 %s" % dd)
            if slow:
                self("s_nand_b64 s[14:15], %s, %s\ns_cbranch_scc1 %s" % (M[0], M[1], l))
                self("s_sub_u32 s64, s64, %d\ns_cbranch_scc0 %s\ns_mov_b32 s64, 0" % (1 + slow // 2, sl))
        else:
            for i in range(n): self("s_mov_b64 %s, -1" % M[i])
        self("%s:" % l)
        for i in range(n):
            k = self.lab("Lk")
            self("s_mov_b64 exec, %s\ns_cbranch_execz %s" % (M[i], k))
            load(i)
            self("%s:" % k)
        self("s_waitcnt vmcnt(0)")
        for i in range(n):
            k = self.lab("Lk")
            self("s_mov_b64 exec, %s\ns_cbranch_execz %s" % (M[i], k))
            self._check(regs[i], vt, M[i])
            self("%s:" % k)
        anyleft()
        self("s_cbranch_scc0 %s" % d)
        self.again(l, 0)
        self("%s:\ns_mov_b64 exec, -1\n%s:" % (d, dd))
    def tag4(self, v):
        for k in range(4):
            self("v_and_or_b32 v%d, v%d, s59, v%d" % (v + k, v + k, V_TAG + k))
    def swapreduce(self, v):
        self.nop(1)
        self("v_permlane16_swap_b32 v%d, v%d\nv_permlane16_swap_b32 v%d, v%d" % (v, v + 1, v + 2, v + 3))
        self("v_add_f32 v%d, v%d, v%d\nv_add_f32 v%d, v%d, v%d" % (v, v, v + 1, v + 2, v + 2, v + 3))
        self.nop(2)
        self("v_permlane32_swap_b32 v%d, v%d" % (v, v + 2))
        self("v_add_f32 v%d, v%d, v%d" % (v, v, v + 2))
    def swapreduce2(self, v, u):
        self("v_permlane16_swap_b32 v%d, v%d\nv_permlane16_swap_b32 v%d, v%d" % (v, v + 1, v + 2, v + 3))
        self("v_permlane16_swap_b32 v%d, v%d\nv_permlane16_swap_b32 v%d, v%d" % (u, u + 1, u + 2, u + 3))
        self("v_add_f32 v%d, v%d, v%d\nv_add_f32 v%d, v%d, v%d" % (v, v, v + 1, v + 2, v + 2, v + 3))
        self("v_add_f32 v%d, v%d, v%d\nv_add_f32 v%d, v%d, v%d" % (u, u, u + 1, u + 2, u + 2, u + 3))
        self("v_permlane32_swap_b32 v%d, v%d" % (v, v + 2))
        self.nop(1)
        self("v_permlane32_swap_b32 v%d, v%d" % (u, u + 2))
        self("v_add_f32 v%d, v%d, v%d\nv_add_f32 v%d, v%d, v%d" % (v, v, v + 2, u, u, u + 2))
    def ln_stats_list(self, vs, vq, vm, vr, t):
        return ["v_mul_f32 v%d, %s, v%d" % (vs, f32(1.0 / 448), vs), "v_mul_f32 v%d, %s, v%d" % (vq, f32(1.0 / 448), vq),
                "v_fma_f32 v%d, -v%d, v%d, v%d" % (vq, vs, vs, vq), "v_max_f32 v%d, 0, v%d" % (vq, vq),
                "v_cvt_pk_bf16_f32 v%d, v%d, v%d" % (t, vs, vq),
                "v_and_b32 v%d, 0xffff0000, v%d" % (vq, t), "v_lshlrev_b32 v%d, 16, v%d" % (vm, t),
                "v_add_f32 v%d, %s, v%d" % (vq, f32(1e-5), vq), "v_cvt_pk_bf16_f32 v%d, v%d, v%d" % (t, vq, vq),
                "v_lshlrev_b32 v%d, 16, v%d" % (vq, t), "v_sqrt_f32 v%d, v%d" % (vq, vq), "s_nop 0",
                "v_cvt_pk_bf16_f32 v%d, v%d, v%d" % (t, vq, vq), "v_lshlrev_b32 v%d, 16, v%d" % (vq, t),
                "v_rcp_f32 v%d, v%d" % (vr, vq), "s_nop 0"]
    def tags_setup(self):
        for k in range(4):
            self("s_add_u32 s%d, s%d, %d\ns_and_b32 s%d, s%d, %d\nv_mov_b32 v%d, s%d" % (28 + k, 28 + k, (1, 7, 19, 45)[k], 28 + k, 28 + k, TAGM, V_TAG + k, 28 + k))

def mfma(d, a, b, first, shape="16x16x32", w=4):
    return "v_mfma_f32_%s_bf16 v[%d:%d], v[%d:%d], v[%d:%d], %s" % (shape, d, d + 3, a, a + w - 1, b, b + w - 1, "0" if first else "v[%d:%d]" % (d, d + 3))

def build(stamps=0, wink=32, winv=48, qp=13, fast=1, back=18, pre=4, dpol=1, apf=1, dmask=1, ts=0, sh=-1, ksw=22):
    A = Gen(stamps)
    A.L.append(HEADER.rstrip())
    A.L.append("; @launch grid=(256,1,1) block=(512,1,1) lds=%d" % LDS_TOTAL)
    A.L.append(DOC.strip())
    A.L.append('.amdgcn_target "amdgcn-amd-amdhsa--gfx950"')
    A.L.append(".text\n.globl %s_kernel\n.p2align 8\n.type %s_kernel,@function\n%s_kernel:" % (NAME, NAME, NAME))
    A("s_cmp_ge_u32 s2, 256\ns_cbranch_scc1 L_end")
    A("s_load_dwordx16 s[4:19], s[0:1], 0\ns_load_dwordx8 s[20:27], s[0:1], 64")
    if stamps: A("s_memrealtime s[68:69]")
    A("v_lshrrev_b32 v1, 6, v0\nv_and_b32 v0, 63, v0\nv_readfirstlane_b32 s3, v1")
    A.c("s3 = wave, s32 = group (batch*8 + kv head), s33 = split, s34 = batch, s35 = kv head")
    A("s_and_b32 s32, s2, 15\ns_lshr_b32 s33, s2, 4\ns_lshr_b32 s34, s32, 3\ns_and_b32 s35, s32, 7")
    A("v_mov_b32 v%d, %d\ns_mov_b32 s64, %d" % (V_MISC, MISC, BUDGET))
    A("s_cmp_ge_u32 s33, %d\ns_cbranch_scc1 L_service" % NA)
    A.c("keys [s65, s66) = [split*8192/12, (split+1)*8192/12)")
    A("s_mul_i32 s65, s33, 43691\ns_add_u32 s66, s65, 43691\ns_lshr_b32 s65, s65, 6\ns_lshr_b32 s66, s66, 6")
    for a in range(NA + 1): assert (a * 43691) >> 6 == a * 8192 // NA
    for a in range(NA): assert 0 < (a + 1) * 8192 // NA - a * 8192 // NA - 32 * (NSL - 1) <= 16
    A("s_cmp_lg_u32 s3, 1\ns_cbranch_scc1 L_notloader")
    A.c("======== attention WG, wave 1: loader. slot n (16 x 1KB) -> ring position n & 7; rows past the range read as 0")
    A("s_setprio 3")
    A.c("K rows: 16B chunk c of row r is stored at chunk c ^ (r & 15)")
    A("v_lshrrev_b32 v1, 5, v0\nv_and_b32 v2, 31, v0\nv_xor_b32 v4, v2, v1\nv_lshlrev_b32 v4, 4, v4\nv_lshl_or_b32 v8, v1, 9, v4")
    for j in range(1, 8):
        A("v_xor_b32 v%d, %d, v8" % (8 + j, 32 * j))
    A.c("V rows: 32B chunk c of row r is stored at chunk c ^ (r & 7)")
    A("v_lshlrev_b32 v4, 1, v1\nv_xor_b32 v4, v2, v4\nv_lshlrev_b32 v4, 4, v4\nv_lshl_or_b32 v16, v1, 9, v4")
    for j in range(1, 4):
        A("v_xor_b32 v%d, %d, v16" % (16 + j, 64 * j))
    A("s_lshl_b32 s45, s32, 22\ns_lshl_b32 s44, s65, 9\ns_add_u32 s44, s44, s45\ns_lshl_b32 s38, s66, 9\ns_add_u32 s38, s38, s45")
    EV0 = wink // 16
    A("s_mov_b32 s45, s44\ns_mov_b32 s46, 0\ns_mov_b32 s47, %d\ns_mov_b32 s48, 0\ns_mov_b32 s50, %d\ns_mov_b32 m0, 0\ns_mov_b32 s39, 0x20000" % (EV0 - RING, EV0))
    A("s_waitcnt lgkmcnt(0)")
    A("s_mov_b32 s36, s6\ns_mov_b32 s37, s7\ns_mov_b32 s40, s8\ns_mov_b32 s41, s9\ns_mov_b32 s42, s38\ns_mov_b32 s43, 0x20000")
    def land(k):
        A("s_sub_i32 s56, s46, %d\ns_max_i32 s48, s48, s56\nv_mov_b32 v20, s48\nds_write_b32 v%d, v20 offset:%d" % (k, V_MISC, L_LAND))
    def body(W, isv):
        for j in range(16):
            if j % 8 == 0:
                A("s_waitcnt vmcnt(%d)" % (W - 8))
                if (j - (W - 8)) % 16 == 0: land((W - 8 - j) // 16)
            srd, so, va = ("s[40:43]", "s44", 16 + j % 4) if isv else ("s[36:39]", "s45", 8 + j % 8)
            A("buffer_load_dwordx4 v%d, %s, %s offen offset:%d nt lds" % (va, srd, so, (j % 4) * 1024))
            if j % 4 == 3: A("s_add_u32 m0, m0, 4096\ns_add_u32 %s, %s, 4096" % (so, so))
    A("L_slot:")
    A("s_add_u32 s56, s47, %d\ns_cmp_lt_u32 s46, s56\ns_cbranch_scc0 L_waitfree" % RING)
    A("L_go:")
    if ts: A("s_memrealtime s[90:91]\ns_lshl_b64 exec, 1, s46\ns_waitcnt lgkmcnt(0)\nv_mov_b32 v30, s90\ns_mov_b64 exec, -1")
    A("s_cmp_ge_u32 s46, %d\ns_cbranch_scc1 L_go2" % NSL)
    if ksw < NSL: A("s_cmp_ge_u32 s46, %d\ns_cbranch_scc1 L_go1" % ksw)
    body(wink, False)
    if ksw < NSL:
        A("s_branch L_go3\nL_go1:")
        body(winv, False)
    A("s_branch L_go3\nL_go2:")
    body(winv, True)
    A("L_go3:")
    A("s_and_b32 m0, m0, %d" % (MISC - 1))
    A("s_add_u32 s46, s46, 1\ns_cmp_lg_u32 s46, s50\ns_cbranch_scc1 L_slot")
    A("s_cmp_lg_u32 s46, %d\ns_cbranch_scc1 L_ldone" % EV0)
    A("s_barrier\ns_mov_b32 s50, %d\ns_branch L_slot" % (2 * NSL))
    A("L_ldone:")
    A.stamp(3)
    A("s_waitcnt vmcnt(32)")
    land(2)
    A.c("the last two slots are handed over by barrier")
    A("s_waitcnt vmcnt(16)\ns_barrier\ns_waitcnt vmcnt(0)\ns_barrier")
    A.stamp(4)
    A.stamp_flush([0, 3, 4])
    if ts:
        A("v_writelane_b32 v30, s68, 63\ns_mul_i32 s60, s2, 256\ns_add_u32 s60, s60, %d\nv_lshl_add_u32 v31, v0, 2, s60\nglobal_store_dword v31, v30, s[26:27]" % (STAMP_OFF + (1 << 20)))
    A("s_endpgm")
    A("L_waitfree:")
    A.c("ring position not known to be free: re-read the readers' progress, publishing landed slots meanwhile")
    def prog_check():
        A("ds_read_b128 v[20:23], v%d offset:%d\nds_read_b64 v[24:25], v%d offset:%d\ns_waitcnt lgkmcnt(0)" % (V_MISC, L_PROG, V_MISC, L_PROG + 16))
        A("v_min3_u32 v20, v20, v21, v22\nv_min3_u32 v23, v23, v24, v25\nv_min_u32 v20, v20, v23\ns_nop 0\nv_readfirstlane_b32 s47, v20")
        A("s_add_u32 s56, s47, %d\ns_cmp_lt_u32 s46, s56\ns_cbranch_scc1 L_go" % RING)
    for k in (2, 1, 0):
        prog_check()
        A("s_waitcnt vmcnt(%d)" % (16 * k))
        land(k)
    A("L_wf2:")
    prog_check()
    A.again("L_wf2", 1)
    A("s_branch L_go")

    def common_setup():
        A("v_lshrrev_b32 v%d, 4, v0\nv_and_b32 v%d, 15, v0" % (V_G, V_N))
        A("s_waitcnt lgkmcnt(0)")
        A("s_load_dwordx4 s[28:31], s[26:27], %d" % WS_E)
        A("s_mov_b32 s52, s26\ns_mov_b32 s53, s27\ns_mov_b32 s54, %d\ns_mov_b32 s55, 0x20000" % WS_END)
        A("s_mov_b32 s58, %d\ns_mov_b32 s59, %d" % (TAGM, 0xffffffff & ~TAGM))
    A("L_notloader:")
    common_setup()
    A("s_cmp_lg_u32 s3, 0\ns_cbranch_scc1 L_noinit")
    A("v_mov_b32 v8, 0\nv_lshl_add_u32 v9, v0, 2, v%d\nds_write_b32 v9, v8 offset:%d" % (V_MISC, L_LSUM))
    A("s_mov_b64 exec, 0xff\nds_write_b32 v9, v8 offset:%d\nds_write_b32 v9, v0 offset:%d" % (L_LAND, L_PROG))
    A("s_mov_b64 exec, 0x3\nv_mov_b32 v10, 0xff800000\nds_write_b32 v9, v10 offset:%d\ns_mov_b64 exec, -1" % L_MX)
    A("L_noinit:")
    A("s_sub_u32 s61, s3, 2")
    A("s_waitcnt lgkmcnt(0)")
    A.tags_setup()
    A("s_mov_b32 s48, 0\ns_barrier")
    A("s_cmp_ge_u32 s3, 2\ns_cbranch_scc1 L_cons")
    A.c("======== attention WG, wave 0: fetch q (once it has long been written), later publish (max, sum)")
    A("s_lshl_b32 s45, s34, 14\ns_lshl_b32 s46, s35, 11\ns_add_u32 s45, s45, s46\ns_add_u32 s45, s45, %d" % WS_Q)
    A("v_lshlrev_b32 v16, 4, v0")
    A.lds_wait_ge(L_LAND, 48, str(qp), 17)
    A.stamp(7)
    A.gather([(16, 0), (16, 1024)], 20, 17, "s45", 16)
    A("s_mov_b32 s56, 0x07060302")
    for i in range(4):
        A("v_perm_b32 v%d, v%d, v%d, s56" % (28 + i, 21 + 2 * i, 20 + 2 * i))
    A("v_lshl_add_u32 v16, v0, 3, v%d" % V_MISC)
    A("ds_write_b64 v16, v[28:29] offset:%d\nds_write_b64 v16, v[30:31] offset:%d" % (L_Q, L_Q + 512))
    A.c("flag = 2 if all eight writers of this q (the readers of our partials) run on our XCC, else 1")
    A("s_getreg_b32 s56, hwreg(HW_REG_XCC_ID)\ns_and_b32 s56, s56, 15\nv_bfe_u32 v18, v20, 10, 4\nv_bfe_u32 v19, v24, 10, 4")
    A("v_cmp_ne_u32 vcc, s56, v18\nv_cmp_ne_u32 s[44:45], s56, v19\ns_nop 0\ns_or_b64 vcc, vcc, s[44:45]\ns_cselect_b32 s67, 1, %d" % (2 if fast else 1))
    A("v_mov_b32 v17, s67\nds_write_b32 v%d, v17 offset:%d" % (V_MISC, L_QF))
    A.stamp(8)
    A.lds_wait_ge(L_C2, 47, "6", 8, cached=False, sleep=4)
    A("ds_read_b32 v10, v9 offset:%d\nds_read_b64 v[12:13], v%d offset:%d\ns_waitcnt lgkmcnt(0)" % (L_LSUM, V_MISC, L_MX))
    for r in (1, 2, 4, 8):
        A("v_add_f32_dpp v10, v10, v10 row_ror:%d %s" % (r, DPP))
        A.nop(2)
    A("v_readlane_b32 s56, v10, 16\nv_readlane_b32 s57, v10, 32\nv_readlane_b32 s60, v10, 48")
    A.nop(1)
    A("v_add_f32 v14, s56, v10\nv_mov_b32 v15, s57\nv_add_f32 v15, s60, v15")
    A.tag4(12)
    A("s_lshl_b32 s45, s32, 11\ns_add_u32 s45, s45, %d\ns_lshl_b32 s46, s33, 7\nv_mov_b32 v9, s46" % WS_ML)
    A("s_mov_b64 exec, 1\ns_cmp_eq_u32 s67, 2\ns_cbranch_scc1 L_mlfast")
    A("buffer_store_dwordx4 v[12:15], v9, s[52:55], s45 offen sc1\ns_branch L_mldone\nL_mlfast:")
    A("buffer_store_dwordx4 v[12:15], v9, s[52:55], s45 offen\nL_mldone:")
    A.stamp_flush([7, 8])
    A("s_endpgm")

    A("L_cons:")
    A.c("======== attention WG, waves 2..7 (c = s61): K slots c, c+6, ... -> registers, scores once q is there")
    KA = 8; KT = 244; KD = [16, 80, 144, 16]; QB = 208; AC = 240; S = 248
    A("v_xor_b32 v12, v%d, v%d\nv_lshlrev_b32 v12, 4, v12\nv_lshl_or_b32 v%d, v%d, 9, v12" % (V_G, V_N, KA, V_N))
    for k in range(1, 4):
        A("v_xor_b32 v%d, %d, v%d" % (KA + k, 64 * k, KA))
    A("s_add_u32 s46, s61, 1\ns_lshl_b32 s44, s61, 14")
    A("s_lshl_b32 s62, s61, 2\nv_add_u32 v13, s62, v%d" % V_MISC)
    def kread(i):
        for k in range(4):
            A("v_add_u32 v%d, s44, v%d" % (KT + k, KA + k))
        A.lds_wait_ge(L_LAND, 48, "s46", 12)
        for tt in range(2):
            for kk in range(8):
                r = KD[i] + 32 * tt + 4 * kk
                A("ds_read_b128 v[%d:%d], v%d offset:%d" % (r, r + 3, KT + (kk & 3), tt * 8192 + (kk >> 2) * 256))
        A("s_add_u32 s56, s46, 5\ns_min_u32 s56, s56, %d\nv_mov_b32 v12, s56\ns_add_u32 s46, s46, 6" % NSL)
        A("s_add_u32 s44, s44, %d\ns_and_b32 s44, s44, %d" % (6 * 16384, MISC - 1))
        A("s_waitcnt lgkmcnt(0)")
        A("ds_write_b32 v13, v12 offset:%d" % L_PROG)
    def kcomp(i):
        for kk in range(8):
            for tt in range(2):
                A(mfma(AC + 4 * tt, KD[i] + 32 * tt + 4 * kk, QB + 4 * kk, kk == 0))
        A.mask(0x00030003 << (4 * i))
        A.nop(5)
        for k in range(4):
            A("v_cndmask_b32 v%d, v%d, v%d, s[56:57]" % (S + k, S + k, AC + k))
        A("s_lshl_b64 s[56:57], s[56:57], 2")
        for k in range(4):
            A("v_cndmask_b32 v%d, v%d, v%d, s[56:57]" % (S + k, S + k, AC + 4 + k))
    for i in range(3):
        kread(i)
    A.lds_wait_ge(L_QF, 67, "1", 12, cached=False)
    A("v_and_b32 v12, 1, v%d\nv_lshlrev_b32 v12, 9, v12\nv_lshl_add_u32 v12, v%d, 4, v12\nv_add_u32 v12, v%d, v12" % (V_N, V_G, V_MISC))
    for kk in range(8):
        A("ds_read_b128 v[%d:%d], v12 offset:%d" % (QB + 4 * kk, QB + 4 * kk + 3, L_Q + kk * 64))
    A("s_waitcnt lgkmcnt(0)")
    for i in range(3):
        kcomp(i)
    A("s_cmp_gt_u32 s46, %d\ns_cbranch_scc1 L_kdone" % NSL)
    kread(3); kcomp(3)
    A("L_kdone:")
    A.stamp(9)
    A.c("softmax over this WG's keys. lane holds head n&1, keys 192*(n>>2) + 32c + 16*((n>>1)&1) + 4g + r; keys past the range -> -inf")
    A("v_lshrrev_b32 v23, 2, v%d\nv_mul_u32_u24 v16, 192, v23\nv_and_b32 v22, 2, v%d\nv_lshl_add_u32 v16, v22, 3, v16\nv_lshl_add_u32 v16, v%d, 2, v16" % (V_N, V_N, V_G))
    A("s_sub_u32 s44, s66, s65\ns_lshl_b32 s45, s61, 5\ns_sub_u32 s44, s44, s45\nv_mov_b32 v17, 0xff800000")
    for k in range(4):
        A("v_cmp_gt_u32 vcc, s44, v16\nv_add_u32 v16, 1, v16\ns_nop 0\nv_cndmask_b32 v%d, v17, v%d, vcc" % (S + k, S + k))
    A("v_cvt_pk_bf16_f32 v16, v%d, v%d\nv_cvt_pk_bf16_f32 v17, v%d, v%d" % (S, S + 1, S + 2, S + 3))
    A("v_lshlrev_b32 v%d, 16, v16\nv_and_b32 v%d, 0xffff0000, v16\nv_lshlrev_b32 v%d, 16, v17\nv_and_b32 v%d, 0xffff0000, v17" % (S, S + 1, S + 2, S + 3))
    A("v_max3_f32 v16, v%d, v%d, v%d\nv_max_f32 v16, v16, v%d" % (S, S + 1, S + 2, S + 3))
    for r in (2, 4, 8):
        A.nop(2)
        A("v_max_f32_dpp v16, v16, v16 row_ror:%d %s" % (r, DPP))
    A("v_and_b32 v17, 1, v%d\nv_lshl_add_u32 v18, v17, 2, v%d" % (V_N, V_MISC))
    A.mask(0x00030003, "exec")
    A("ds_max_f32 v18, v16 offset:%d" % L_MX)
    A.lds_signal_add(L_C1, 12)
    A("v_mul_u32_u24 v19, 384, v23\nv_mul_u32_u24 v14, %d, v17\nv_lshl_add_u32 v14, v%d, 4, v14\nv_add_u32 v14, v%d, v14" % (PSTR, V_G, V_MISC))
    A("v_lshl_add_u32 v19, v22, 2, v19\ns_lshl_b32 s62, s61, 6\nv_add3_u32 v19, v19, s62, v14")
    A("v_lshlrev_b32 v20, 7, v17\nv_lshl_add_u32 v20, v%d, 2, v20\ns_lshl_b32 s62, s61, 4\nv_add3_u32 v20, v20, s62, v%d" % (V_G, V_MISC))
    A.lds_wait_ge(L_C1, 47, "6", 12, cached=False, sleep=0)
    A("ds_read_b32 v16, v18 offset:%d\ns_waitcnt lgkmcnt(0)" % L_MX)
    for k in range(4):
        A("v_sub_f32 v%d, v%d, v16\nv_mul_f32 v%d, %s, v%d\nv_exp_f32 v%d, v%d" % (S + k, S + k, S + k, f32(C1), S + k, S + k, S + k))
    A("v_add_f32 v16, v%d, v%d\nv_add_f32 v16, v16, v%d\nv_add_f32 v16, v16, v%d" % (S, S + 1, S + 2, S + 3))
    A("v_cvt_pk_bf16_f32 v24, v%d, v%d\nv_cvt_pk_bf16_f32 v25, v%d, v%d" % (S, S + 1, S + 2, S + 3))
    A("ds_write_b64 v19, v[24:25] offset:%d" % L_P)
    for r in (2, 4, 8):
        A("v_add_f32_dpp v16, v16, v16 row_ror:%d %s" % (r, DPP))
        A.nop(2)
    A("s_mov_b64 exec, s[56:57]\nds_write_b32 v20, v16 offset:%d" % L_LSUM)
    A.lds_signal_add(L_C2, 12)
    A("s_cmp_ge_u32 s3, 4\ns_cbranch_scc1 L_pv")
    A("v_mov_b32 v12, 0x7fff\nds_write_b32 v13, v12 offset:%d\ns_endpgm" % L_PROG)
    A("L_pv:")
    A.c("======== waves 4..7: P.V for dims 64c..64c+63; dim tile t accumulates in columns 2t, 2t+1 (heads) of one D")
    A("s_sub_u32 s61, s3, 4")
    VA = 8; VT = 16; VD = 24; PB = 40; OA = 96
    A("v_lshrrev_b32 v16, 2, v0\nv_and_b32 v18, 7, v16\ns_lshl_b32 s62, s61, 2\nv_xor_b32 v18, s62, v18\nv_lshlrev_b32 v18, 5, v18")
    A("v_lshl_or_b32 v18, v16, 9, v18\nv_and_b32 v16, 3, v0\nv_lshl_or_b32 v%d, v16, 3, v18" % VA)
    for tt in range(1, 4):
        A("v_xor_b32 v%d, %d, v%d" % (VA + tt, 32 * tt, VA))
    for k in range(4):
        A("v_mov_b32 v%d, 0" % (OA + k))
    for k in range(16):
        A("v_mov_b32 v%d, 0" % (PB + k))
    A("v_lshlrev_b32 v112, 7, v%d\nv_lshl_add_u32 v112, v%d, 4, v112" % (V_G, V_N))
    A("s_lshl_b32 s40, s32, 15\ns_lshl_b32 s56, s61, 9\ns_add_u32 s40, s40, s56\ns_lshl_b32 s56, s33, 11\ns_add_u32 s40, s40, s56\ns_add_u32 s40, s40, %d" % WS_OP)
    for tt in range(4):
        A("s_mov_b32 s%d, 0x%08x\ns_mov_b32 s%d, s%d" % (4 + 2 * tt, 0x00030003 << (2 * tt), 5 + 2 * tt, 4 + 2 * tt))
    A("s_mov_b32 s12, 0x00ff00ff\ns_mov_b32 s13, s12")
    A.lds_wait_ge(L_C2, 47, "6", 12, cached=False, sleep=0)
    A.stamp(10)
    A("s_mov_b32 s46, %d\ns_mov_b32 s44, %d" % (NSL + 1, (NSL % RING) * 16384))
    A("L_vloop:")
    for tt in range(4):
        A("s_mov_b64 exec, s[%d:%d]\nds_read_b128 v[%d:%d], v14 offset:%d" % (4 + 2 * tt, 5 + 2 * tt, PB + 4 * tt, PB + 4 * tt + 3, L_P))
    A("s_mov_b64 exec, -1")
    for tt in range(4):
        A("v_add_u32 v%d, s44, v%d" % (VT + tt, VA + tt))
    A("s_cmp_lg_u32 s46, %d\ns_cbranch_scc1 L_vw\ns_barrier\ns_branch L_vg\nL_vw:" % (2 * NSL - 1))
    A.lds_wait_ge(L_LAND, 48, "s46", 12, sleep=0)
    A("L_vg:")
    for tt in range(4):
        A("ds_read_b64_tr_b16 v[%d:%d], v%d" % (VD + 4 * tt, VD + 4 * tt + 1, VT + tt))
        A("ds_read_b64_tr_b16 v[%d:%d], v%d offset:8192" % (VD + 4 * tt + 2, VD + 4 * tt + 3, VT + tt))
    A("v_mov_b32 v12, s46\nv_add_u32 v14, 64, v14\ns_add_u32 s44, s44, 16384\ns_and_b32 s44, s44, %d" % (MISC - 1))
    A("s_add_u32 s46, s46, 1\ns_cmp_le_u32 s46, %d" % (2 * NSL - 1))
    for tt in range(4):
        A("s_waitcnt lgkmcnt(%d)" % (6 - 2 * tt))
        A(mfma(OA, VD + 4 * tt, PB + 4 * tt, False))
    A("ds_write_b32 v13, v12 offset:%d" % L_PROG)
    A("s_cbranch_scc1 L_vloop")
    A.c("last slot: rows 0..15 only")
    for tt in range(4):
        A("s_mov_b64 exec, s[%d:%d]\nds_read_b64 v[%d:%d], v14 offset:%d" % (4 + 2 * tt, 5 + 2 * tt, PB + 4 * tt, PB + 4 * tt + 1, L_P))
    A("s_mov_b64 exec, -1")
    for tt in range(4):
        A("v_add_u32 v%d, s44, v%d" % (VT + tt, VA + tt))
    A("s_cmp_eq_u32 s67, 2\ns_barrier")
    for tt in range(4):
        A("ds_read_b64_tr_b16 v[%d:%d], v%d" % (VD + 4 * tt, VD + 4 * tt + 1, VT + tt))
    for tt in range(4):
        A("s_waitcnt lgkmcnt(%d)" % (3 - tt))
        A(mfma(OA, VD + 4 * tt, PB + 4 * tt, False, "16x16x16", 2))
    A("s_mov_b64 exec, s[12:13]")
    A.nop(7)
    A.tag4(OA)
    A("s_cbranch_scc0 L_slowpub")
    A("buffer_store_dwordx4 v[%d:%d], v112, s[52:55], s40 offen" % (OA, OA + 3))
    A("s_branch L_pubdone\nL_slowpub:")
    A("buffer_store_dwordx4 v[%d:%d], v112, s[52:55], s40 offen sc1" % (OA, OA + 3))
    A("L_pubdone:")
    if stamps:
        A.stamp(11)
        A("s_cmp_lg_u32 s3, 4\ns_cbranch_scc1 L_end")
        A.stamp_flush([9, 10, 11])
    A("s_endpgm")

    if sh >= 0:
        A.L.append(".p2align 7")
        for _ in range(sh): A("s_endpgm")
    A("L_service:")
    A.c("======== service WG: x = wg&7 (s35), y = (wg-192)>>3 (s33). q columns 64*(8x+y); y<7: wo rows 512x.., columns 64y..; F = 7x+y")
    A("v_mov_b32 v%d, %d" % (V_MISC, SMISC))
    common_setup()
    A("s_sub_u32 s33, s2, %d\ns_lshr_b32 s33, s33, 3" % (16 * NA))
    A("s_mov_b32 s40, s4\ns_mov_b32 s41, s5\ns_mov_b32 s42, 1792\ns_mov_b32 s43, 0x20000")
    A("s_cmp_lg_u32 s3, 0\ns_cbranch_scc1 L_s1")
    A("v_lshrrev_b32 v8, 5, v0\nv_and_b32 v9, 31, v0\nv_mul_u32_u24 v10, 896, v8\nv_lshl_add_u32 v10, v9, 4, v10")
    A("v_cmp_gt_u32 vcc, 28, v9\nv_mov_b32 v11, 0x1000\ns_nop 0\nv_cndmask_b32 v11, v11, v10, vcc")
    A("buffer_load_dwordx4 v[16:19], v11, s[40:43], 0 offen\nbuffer_load_dwordx4 v[20:23], v11, s[40:43], 0 offen offset:448")
    A("L_s1:")
    DP = ["", "nt"][dpol]
    def dma(n, vaddr, gstep, lds):
        A("s_mul_i32 s56, s3, %d\ns_add_u32 m0, s56, %d" % (n * 1024, lds))
        for j in range(n):
            if j: A("s_add_u32 m0, m0, 1024\ns_add_u32 s45, s45, %d" % gstep)
            else: A("s_nop 0")
            A("buffer_load_dwordx4 v%d, s[36:39], s45 offen %s lds" % (vaddr, DP))
    A("v_lshrrev_b32 v12, 3, v0\nv_and_b32 v13, 7, v0\nv_lshlrev_b32 v13, 4, v13\nv_lshl_add_u32 v14, v12, 13, v13\nv_mul_u32_u24 v15, 896, v12\nv_add_u32 v15, v15, v13")
    A("s_mov_b32 s36, s10\ns_mov_b32 s37, s11\ns_mov_b32 s38, %d\ns_mov_b32 s39, 0x20000" % (448 * 8192))
    A.c("bring the kv head's wq columns into L2 in 1KB row pieces (rows 56y + 7w + (l>>3)), then fetch our 64 columns")
    A("v_min_u32 v12, 6, v12\nv_lshlrev_b32 v12, 13, v12\nv_lshl_add_u32 v12, v13, 3, v12")
    A("s_mul_i32 s46, s33, 56\ns_mul_i32 s56, s3, 7\ns_add_u32 s46, s46, s56\ns_lshl_b32 s46, s46, 13\ns_lshl_b32 s56, s35, 10\ns_add_u32 s46, s46, s56")
    A("buffer_load_dword v45, v12, s[36:39], s46 offen")
    A("s_lshl_b32 s44, s35, 3\ns_add_u32 s44, s44, s33\ns_lshl_b32 s45, s44, 7\ns_mul_i32 s56, s3, %d\ns_add_u32 s45, s45, s56" % (56 * 8192))
    A("s_waitcnt lgkmcnt(0)")
    A.tags_setup()
    A("s_cmp_lg_u32 s3, 1\ns_cbranch_scc1 L_s2")
    A("v_lshl_add_u32 v9, v0, 4, v%d" % V_MISC)
    A("v_mov_b32 v28, 0\nv_mov_b32 v29, 0\nv_mov_b32 v30, 0\nv_mov_b32 v31, 0\ns_mov_b64 exec, 0xffffffff\nds_write_b128 v9, v[28:31] offset:%d\ns_mov_b64 exec, -1" % L_ST)
    A("L_s2:")
    A("s_cmp_lg_u32 s3, 0\ns_cbranch_scc1 L_s3")
    A.c("wave 0: LayerNorm of both rows of x (half-wave per row), bf16 roundings as in the reference")
    A("s_waitcnt vmcnt(1)")
    A.stamp(5)
    X = 24
    for i in range(8):
        A("v_lshlrev_b32 v%d, 16, v%d\nv_and_b32 v%d, 0xffff0000, v%d" % (X + 2 * i, 16 + i, X + 2 * i + 1, 16 + i))
    A("v_add_f32 v40, v%d, v%d\nv_mul_f32 v41, v%d, v%d\nv_fmac_f32 v41, v%d, v%d" % (X, X + 1, X, X, X + 1, X + 1))
    for i in range(2, 16):
        A("v_add_f32 v40, v40, v%d\nv_fmac_f32 v41, v%d, v%d" % (X + i, X + i, X + i))
    for r in (1, 2, 4, 8):
        A.nop(1)
        A("v_add_f32_dpp v40, v40, v40 row_ror:%d %s\nv_add_f32_dpp v41, v41, v41 row_ror:%d %s" % (r, DPP, r, DPP))
    A("v_mov_b32 v42, v40\nv_mov_b32 v43, v41")
    A.nop(2)
    A("v_permlane16_swap_b32 v40, v42\nv_permlane16_swap_b32 v41, v43")
    A("v_add_f32 v40, v40, v42\nv_add_f32 v41, v41, v43")
    A("\n".join(A.ln_stats_list(40, 41, 42, 43, 44)))
    for i in range(8):
        a, b = X + 2 * i, X + 2 * i + 1
        A("v_sub_f32 v%d, v%d, v42\nv_sub_f32 v%d, v%d, v42\nv_cvt_pk_bf16_f32 v44, v%d, v%d" % (a, a, b, b, a, b))
        A("v_lshlrev_b32 v%d, 16, v44\nv_and_b32 v%d, 0xffff0000, v44" % (a, b))
        A("v_mul_f32 v%d, v%d, v43\nv_mul_f32 v%d, v%d, v43\nv_cvt_pk_bf16_f32 v%d, v%d, v%d" % (a, a, b, b, 16 + i, a, b))
    A("v_add_u32 v10, v%d, v10" % V_MISC)
    A.mask(0x0fffffff, "exec")
    A("ds_write_b128 v10, v[16:19] offset:%d\nds_write_b128 v10, v[20:23] offset:%d" % (L_LN, L_LN + 448))
    A("s_mov_b64 exec, -1")
    A("L_s3:")
    A("s_waitcnt vmcnt(0)\ns_barrier")
    dma(7, 14, 8 * 8192, R_A)
    A.c("v9 = fragment row 8g + r, v10 = l&3, v11 = row*128")
    A("v_lshrrev_b32 v9, 2, v%d\nv_lshl_add_u32 v9, v%d, 3, v9\nv_lshlrev_b32 v11, 7, v9\nv_and_b32 v10, 3, v0" % (V_N, V_G))
    A("s_waitcnt vmcnt(0) lgkmcnt(0)\ns_barrier")
    A.stamp(6)
    A("s_cmp_ge_u32 s3, 4\ns_cbranch_scc1 L_s4")
    BQ = 16; AQ = 72
    A("v_and_b32 v8, 1, v%d\nv_mul_u32_u24 v8, 896, v8\nv_lshl_add_u32 v8, v%d, 4, v8\nv_add_u32 v8, v%d, v8" % (V_N, V_G, V_MISC))
    A("v_lshl_add_u32 v12, v10, 3, v11\ns_lshl_b32 s56, s3, 5\nv_add_u32 v12, s56, v12")
    for kk in range(14):
        A("ds_read_b128 v[%d:%d], v8 offset:%d" % (BQ + 4 * kk, BQ + 4 * kk + 3, L_LN + kk * 64))
        A("ds_read_b64_tr_b16 v[%d:%d], v12 offset:%d" % (AQ + 4 * kk, AQ + 4 * kk + 1, R_A + kk * 4096))
        A("ds_read_b64_tr_b16 v[%d:%d], v12 offset:%d" % (AQ + 4 * kk + 2, AQ + 4 * kk + 3, R_A + kk * 4096 + 512))
    A("s_waitcnt lgkmcnt(0)")
    for kk in range(14):
        A(mfma(128, AQ + 4 * kk, BQ + 4 * kk, kk == 0))
    A("v_and_b32 v16, 1, v%d\nv_lshlrev_b32 v16, 14, v16\nv_lshl_add_u32 v16, v%d, 4, v16" % (V_N, V_G))
    A("s_lshl_b32 s45, s44, 8\ns_lshl_b32 s56, s3, 6\ns_add_u32 s45, s45, s56\ns_add_u32 s45, s45, %d" % WS_Q)
    A("s_getreg_b32 s46, hwreg(HW_REG_XCC_ID)\ns_and_b32 s46, s46, 15\ns_lshl_b32 s46, s46, 10")
    A("v_cvt_pk_bf16_f32 v12, v128, v129\nv_cvt_pk_bf16_f32 v13, v130, v131")
    A("v_lshl_or_b32 v128, v12, 16, v%d\nv_and_b32 v129, 0xffff0000, v12\nv_or_b32 v129, v129, v%d" % (V_TAG, V_TAG + 1))
    A("v_lshl_or_b32 v130, v13, 16, v%d\nv_and_b32 v131, 0xffff0000, v13\nv_or_b32 v131, v131, v%d" % (V_TAG + 2, V_TAG + 3))
    A("v_or_b32 v128, s46, v128")
    A.mask(0x00030003, "exec")
    A("buffer_store_dwordx4 v[128:131], v16, s[52:55], s45 offen sc1")
    A("s_mov_b64 exec, -1")
    A.stamp(7)
    A("L_s4:")
    A("s_cmp_lt_u32 s33, 7\ns_cbranch_scc1 L_s5")
    A.c("y == 7: touch the o-partial lines of this kv head so that later polls of them hit L2; done")
    A("s_lshr_b32 s56, s3, 2\ns_lshl_b32 s47, s56, 3\ns_add_u32 s47, s47, s35\ns_lshl_b32 s47, s47, 15\ns_and_b32 s56, s3, 3\ns_mul_i32 s56, s56, 6144\ns_add_u32 s47, s47, s56\ns_add_u32 s47, s47, %d" % WS_OP)
    A("v_min_u32 v8, 47, v0\nv_lshlrev_b32 v8, 7, v8\nbuffer_load_dword v9, v8, s[52:55], s47 offen sc1\ns_endpgm")
    A("L_s5:")
    A("s_mul_i32 s65, s35, 7\ns_add_u32 s65, s65, s33")
    A.c("row-wise L2 fill of gate/up (rows 64y + 16(w&3) + (l>>2), 4 lines) and wo (64KB contiguous), then the slices -> LDS")
    A("s_cmp_lt_u32 s3, 4\ns_cselect_b32 s36, s16, s18\ns_cselect_b32 s37, s17, s19\ns_mov_b32 s38, %d" % (448 * 3584))
    A("v_lshrrev_b32 v14, 2, v0\nv_mul_u32_u24 v14, 3584, v14\nv_lshl_add_u32 v12, v10, 7, v14\nv_lshl_add_u32 v14, v10, 4, v14")
    A("s_lshl_b32 s46, s33, 2\ns_and_b32 s57, s3, 3\ns_add_u32 s46, s46, s57\ns_mul_i32 s46, s46, %d\ns_mul_i32 s56, s35, 448\ns_and_b32 s56, s56, 0xffffff80\ns_add_u32 s46, s46, s56" % (16 * 3584))
    A("buffer_load_dword v45, v12, s[36:39], s46 offen")
    A("s_mov_b32 s60, s12\ns_mov_b32 s61, s13\ns_mov_b32 s62, %d\ns_mov_b32 s63, 0x20000\nv_lshlrev_b32 v12, 7, v0" % (4096 * 896))
    A("s_lshl_b32 s46, s65, 16\ns_lshl_b32 s56, s3, 13\ns_add_u32 s46, s46, s56")
    A("buffer_load_dword v46, v12, s[60:63], s46 offen")
    A("s_mul_i32 s45, s57, %d\ns_lshl_b32 s56, s65, 6\ns_add_u32 s45, s45, s56" % (112 * 3584))
    A("s_waitcnt vmcnt(1)\ns_barrier")
    dma(7, 14, 16 * 3584, R_G)
    A("v_lshlrev_b32 v14, 4, v0\ns_mul_i32 s45, s65, 28672\ns_mov_b32 s36, s20\ns_mov_b32 s37, s21\ns_mov_b32 s38, %d\ns_lshl_b32 s56, s3, 12\ns_add_u32 s45, s45, s56\ns_add_u32 m0, s56, %d" % (1792 * 896, R_D))
    A("s_cmp_eq_u32 s3, 7\ns_cbranch_scc1 L_s5a")
    for j in range(4):
        A("buffer_load_dwordx4 v14, s[36:39], s45 offen offset:%d nt lds" % (j * 1024))
    A("L_s5a:")
    A("s_mov_b32 s36, s12\ns_mov_b32 s37, s13\ns_mov_b32 s38, %d" % (4096 * 896))
    A("s_mul_i32 s45, s35, %d\ns_mul_i32 s56, s3, %d\ns_add_u32 s45, s45, s56\ns_lshl_b32 s56, s33, 7\ns_add_u32 s45, s45, s56" % (512 * 896, 64 * 896))
    dma(8, 15, 8 * 896, R_A)
    A.c("pull the code below into L2")
    A("s_getpc_b64 s[56:57]\nL_pc:\ns_lshl_b32 s46, s3, 10\nv_add_u32 v14, s46, v14\nv_min_u32 v14, L_end-L_pc-12, v14")
    A("global_load_dwordx4 v[28:31], v14, s[56:57]")
    A.c("addresses and lane masks of the later stages")
    A("v_lshlrev_b32 v21, 4, v%d\nv_add_u32 v22, v21, v%d" % (V_G, V_MISC))
    A("s_mov_b32 s48, 0xcccccccc\ns_mov_b32 s49, s48\ns_mov_b32 s50, 0xf0f0f0f0\ns_mov_b32 s51, s50")
    A("v_and_b32 v12, 8, v%d\nv_lshlrev_b32 v12, 2, v12\nv_lshl_add_u32 v12, v10, 3, v12\nv_lshl_add_u32 v12, v%d, 1, v12\ns_lshl_b32 s56, s3, 7\nv_add_u32 v12, s56, v12" % (V_N, V_G))
    A("v_bfe_u32 v13, v%d, 2, 1\nv_mul_u32_u24 v248, %d, v13\nv_add3_u32 v248, v248, v12, v%d\nv_mul_u32_u24 v13, 896, v13\nv_add_u32 v12, v12, v13\nv_mov_b32 v252, 0\nv_mov_b32 v253, 0" % (V_N, HSTR, V_MISC))
    A("buffer_load_short_d16_hi v252, v12, s[40:43], 0 offen\nbuffer_load_short_d16_hi v253, v12, s[40:43], 0 offen offset:64")
    A("v_and_b32 v12, 1, v0\nv_lshlrev_b32 v12, 3, v12\nv_lshl_add_u32 v12, v9, 6, v12\nv_lshrrev_b32 v13, 1, v10\nv_mul_u32_u24 v13, 28672, v13\ns_lshl_b32 s56, s3, 4\ns_add_u32 s56, s56, %d\nv_add3_u32 v12, v12, v13, s56" % R_G)
    A("v_lshl_add_u32 v13, v10, 3, v11\ns_and_b32 s56, s3, 3\ns_lshl_b32 s56, s56, 5\nv_add_u32 v13, s56, v13")
    A("v_mul_u32_u24 v14, 896, v9\nv_lshl_add_u32 v14, v10, 5, v14\ns_lshl_b32 s56, s3, 7\ns_add_u32 s56, s56, %d\nv_add_u32 v14, s56, v14" % R_D)
    A("s_lshr_b32 s56, s3, 2\ns_lshl_b32 s47, s56, 3\ns_add_u32 s47, s47, s35\ns_lshl_b32 s46, s47, 11\ns_add_u32 s46, s46, %d\ns_lshl_b32 s47, s47, 15" % WS_ML)
    A("s_and_b32 s57, s3, 3\ns_lshl_b32 s44, s57, 9\ns_add_u32 s47, s47, s44\ns_add_u32 s47, s47, %d" % WS_OP)
    A("v_mul_u32_u24 v8, 6144, v%d\nv_lshl_add_u32 v8, v%d, 4, v8\nv_add_u32 v15, 4096, v8" % (V_G, V_N))
    A("v_mul_u32_u24 v16, 3, v%d\nv_min_u32 v17, 11, v%d\nv_add_u32 v16, v16, v17\nv_subrev_u32 v17, 12, v16\nv_min_u32 v16, v16, v17\nv_lshlrev_b32 v16, 7, v16" % (V_G, V_N))
    A("v_and_b32 v17, 8, v%d\nv_lshl_add_u32 v17, v%d, 1, v17\nv_and_b32 v9, 6, v%d\nv_lshl_add_u32 v17, v9, 4, v17\nv_and_b32 v9, 1, v%d\nv_lshl_add_u32 v17, v9, 9, v17" % (V_N, V_G, V_N, V_N))
    A("s_mul_i32 s56, s56, %d\ns_lshl_b32 s44, s57, 7\ns_add_u32 s56, s56, s44\nv_add3_u32 v17, v17, s56, v%d" % (OSTR, V_MISC))
    A("v_mul_u32_u24 v18, %d, v9\nv_add_u32 v18, v18, v22" % OSTR)
    A("s_mul_i32 s44, s35, 28\ns_lshl_b32 s56, s33, 2\ns_add_u32 s44, s44, s56\ns_add_u32 s44, s44, s57\ns_lshl_b32 s44, s44, 7\ns_add_u32 s44, s44, %d" % WS_AP)
    A("s_mul_i32 s61, s65, 3584\ns_lshl_b32 s56, s3, 9\ns_add_u32 s61, s61, s56\ns_add_u32 s61, s61, %d" % WS_FP)
    A("v_lshl_add_u32 v19, v%d, 6, v21\nv_lshlrev_b32 v245, 7, v%d\nv_lshl_add_u32 v245, v%d, 4, v245" % (V_N, V_G, V_N))
    A("s_add_u32 s45, s56, %d\nv_mul_u32_u24 v249, 7168, v%d\nv_lshl_add_u32 v249, v%d, 4, v249" % (WS_AP, V_G, V_N))
    A("v_mul_u32_u24 v250, %d, v9\nv_add_u32 v250, v250, v22\nv_lshl_add_u32 v23, v9, 6, v22" % HSTR)
    A("v_and_b32 v251, 14, v%d\nv_lshlrev_b32 v251, 4, v251\nv_lshl_add_u32 v251, v9, 8, v251\nv_add_u32 v251, v251, v%d" % (V_N, V_MISC))
    A("v_and_b32 v247, 4, v%d\nv_lshlrev_b32 v247, 6, v247\nv_lshl_add_u32 v247, v%d, 3, v247\ns_lshl_b32 s56, s3, 5\nv_add3_u32 v247, v247, s56, v%d" % (V_N, V_G, V_MISC))
    A("v_and_b32 v254, 6, v%d\nv_lshl_add_u32 v254, v9, 6, v254\nv_lshl_add_u32 v254, v%d, 3, v254\ns_lshl_b32 s56, s3, 4\nv_add3_u32 v254, v254, s56, v%d" % (V_N, V_G, V_MISC))
    A("s_mov_b32 s20, 0x00110011\ns_mov_b32 s21, s20\ns_mov_b32 s66, 0x00ff00ff\ns_mov_b32 s67, s66")
    TM = (34, 10, 12, 62)
    for t in range(4):
        A("s_mov_b32 s%d, 0x%08x\ns_mov_b32 s%d, s%d" % (TM[t], 0x00030003 << (2 * t), TM[t] + 1, TM[t]))
    ga = 2 * math.sqrt(2 / math.pi) * math.log2(math.e); gb = ga * 0.044715
    A("v_mov_b32 v246, %s\ns_mov_b32 s60, %s" % (f32(-ga), f32(-gb)))
    AB = 216
    for k in range(16):
        A("v_mov_b32 v%d, 0" % (AB + k))
    A("s_lshr_b32 s19, s65, 1\ns_lshl_b32 s18, s19, 7\ns_and_b32 s56, s65, 1\ns_lshl_b32 s57, s56, 4\ns_add_u32 s18, s18, s57\ns_add_u32 s18, s18, %d" % WS_FP)
    A("v_lshrrev_b32 v9, 2, v0\nv_mul_u32_u24 v200, 3584, v9\nv_lshl_add_u32 v200, v10, 5, v200\nv_cmp_gt_u32 vcc, 8, v9")
    A("v_add_u32 v201, %d, v200\nv_add_u32 v202, %d, v200\nv_add_u32 v203, %d, v200" % (16 * 3584, 32 * 3584, 48 * 3584))
    A("v_cndmask_b32 v203, v200, v203, vcc\nv_cndmask_b32 v204, 0, 1.0, vcc\nv_mov_b32 v205, 0\nv_mov_b32 v208, 0")
    A("v_lshlrev_b32 v206, 3, v10\nv_lshl_add_u32 v206, v%d, 1, v206\ns_lshl_b32 s19, s19, 5" % V_G)
    A("s_mul_i32 s57, s56, %d\ns_add_u32 s57, s57, s19\nv_add3_u32 v207, v206, s57, v%d\ns_mul_i32 s56, s56, 896\ns_add_u32 s19, s19, s56" % (HSTR, V_MISC))
    A("s_mov_b32 s40, s22\ns_mov_b32 s41, s23\ns_mov_b32 s16, 0x000f000f\ns_mov_b32 s17, s16")
    A("s_waitcnt vmcnt(0)\ns_barrier")
    WA = 136; DA = 120
    A.c("weight fragments -> registers: down v120.., gate|up tile (waves 0..3) or wo tile (waves 4..7) v136..")
    for t in range(4):
        A("ds_read_b64_tr_b16 v[%d:%d], v14 offset:%d" % (DA + 4 * t, DA + 4 * t + 1, t * 8))
        A("ds_read_b64_tr_b16 v[%d:%d], v14 offset:%d" % (DA + 4 * t + 2, DA + 4 * t + 3, t * 8 + 4 * 896))
    A("s_cmp_ge_u32 s3, 4\ns_cbranch_scc1 L_s6")
    for kk in range(14):
        A("ds_read_b64_tr_b16 v[%d:%d], v12 offset:%d" % (WA + 4 * kk, WA + 4 * kk + 1, kk * 2048))
        A("ds_read_b64_tr_b16 v[%d:%d], v12 offset:%d" % (WA + 4 * kk + 2, WA + 4 * kk + 3, kk * 2048 + 256))
    A.c("column sums of the tile: LN(h).W = (h.W - mean*colsum(W)) / sigma")
    A("v_mov_b32 v56, 0x3f803f80\nv_mov_b32 v57, v56\nv_mov_b32 v58, v56\nv_mov_b32 v59, v56\ns_nop 1\ns_waitcnt lgkmcnt(0)")
    for kk in range(14):
        A(mfma(24, WA + 4 * kk, 56, kk == 0))
    A.nop(8)
    A("v_cndmask_b32 v24, v24, v25, s[48:49]\nv_cndmask_b32 v26, v26, v27, s[48:49]\nv_cndmask_b32 v244, v24, v26, s[50:51]")
    A("s_branch L_s7\nL_s6:")
    for kk in range(16):
        A("ds_read_b64_tr_b16 v[%d:%d], v13 offset:%d" % (WA + 4 * kk, WA + 4 * kk + 1, kk * 4096))
        A("ds_read_b64_tr_b16 v[%d:%d], v13 offset:%d" % (WA + 4 * kk + 2, WA + 4 * kk + 3, kk * 4096 + 512))
    A("L_s7:")
    A.stamp(17)
    A.c("split weights exp(m - M) / L of batch w>>2: lane n of row g holds split (3g + n) mod 12")
    A.gather([(16, 0)], 24, 20, "s46", 32)
    A("v_cmp_gt_u32 vcc, %d, v%d\nv_mov_b32 v28, v24\nv_mov_b32 v29, v25\nv_cndmask_b32 v26, 0, v26, vcc\nv_cndmask_b32 v27, 0, v27, vcc" % (NA, V_N))
    for r in (1, 2, 4, 8):
        A("v_max_f32_dpp v28, v28, v28 row_ror:%d %s\nv_max_f32_dpp v29, v29, v29 row_ror:%d %s" % (r, DPP, r, DPP))
        A.nop(1)
    A("v_sub_f32 v24, v24, v28\nv_sub_f32 v25, v25, v29\nv_mul_f32 v24, %s, v24\nv_mul_f32 v25, %s, v25\nv_exp_f32 v24, v24\nv_exp_f32 v25, v25\ns_nop 0" % (f32(C1), f32(C1)))
    A("v_mul_f32 v26, v24, v26\nv_mul_f32 v27, v25, v27")
    for r in (1, 2, 4, 8):
        A.nop(1)
        A("v_add_f32_dpp v26, v26, v26 row_ror:%d %s\nv_add_f32_dpp v27, v27, v27 row_ror:%d %s" % (r, DPP, r, DPP))
    A("v_rcp_f32 v26, v26\nv_rcp_f32 v27, v27\ns_nop 0\nv_mul_f32 v24, v24, v26\nv_mul_f32 v25, v25, v27")
    A.nop(2)
    for hh in range(2):
        for i in range(3):
            A("v_mov_b32_dpp v%d, v%d row_newbcast:%d %s" % (210 + 2 * i + hh, 24 + hh, i, DPP))
    A.mask(0xaaaaaaaa)
    for i in range(3):
        A("v_cndmask_b32 v%d, v%d, v%d, s[56:57]" % (210 + 2 * i, 210 + 2 * i, 211 + 2 * i))
    A.c("======== o = sum of weighted partials -> bf16 -> LDS; waves 4..7: o . wo tile -> attn partial of this kv head")
    A.gather2([[(8, 0), (8, 256)], [(8, 2048), (8, 2304)], [(15, 0), (15, 256)]], 24, 20, "s47", sentinel=0x00010001)
    A.stamp(12)
    for r in range(24, 32, 2):
        A("v_pk_mul_f32 v[%d:%d], v[%d:%d], v[210:211] op_sel_hi:[1,0]" % (r, r + 1, r, r + 1))
    for i in range(1, 3):
        for r in range(24, 32, 2):
            A("v_pk_fma_f32 v[%d:%d], v[%d:%d], v[%d:%d], v[%d:%d] op_sel_hi:[1,0,1]" % (r, r + 1, r + 8 * i, r + 8 * i + 1, 210 + 2 * i, 211 + 2 * i, r, r + 1))
    A.swapreduce2(24, 28)
    A("v_cvt_pk_bf16_f32 v24, v24, v28\nds_write_b16 v17, v24 offset:%d\nds_write_b16_d16_hi v17, v24 offset:%d" % (L_SO, L_SO + 16))
    A("s_cmp_lt_u32 s3, 4\ns_waitcnt lgkmcnt(0)\ns_barrier\ns_cbranch_scc1 L_s8")
    def chain(n, rd, mf, side=None):
        for kk in range(min(pre, n)): rd(kk)
        for kk in range(n):
            if kk + pre < n: rd(kk + pre)
            A("s_waitcnt lgkmcnt(%d)" % (min(n - 1, kk + pre) - kk))
            mf(kk)
            if side: side(kk)
    chain(16, lambda kk: A("ds_read_b128 v[%d:%d], v18 offset:%d" % (56 + 4 * kk, 59 + 4 * kk, L_SO + kk * 64)),
          lambda kk: A(mfma(24, WA + 4 * kk, 56 + 4 * kk, kk == 0)))
    A("s_mov_b64 exec, s[34:35]")
    A.nop(7)
    A.tag4(24)
    A("buffer_store_dwordx4 v[24:27], v19, s[52:55], s44 offen sc1")
    A.c("reads racing with the write-through of the same lines delay it: poll only after our stores are acknowledged")
    A("s_mov_b64 exec, -1\ns_waitcnt vmcnt(0)")
    A("L_s8:")
    A("s_cmp_eq_u32 s3, 7\ns_barrier")
    A.stamp(13)
    A("s_cbranch_scc1 L_final")
    A.c("======== waves 0..6: h = x + sum of attn partials (64 columns x 2 rows each), partial LayerNorm sums")
    A.gather2([[(249, 3584 * i), (249, 3584 * i + 256)] for i in range(2)], 28, 20, "s45", first=bool(apf))
    A.stamp(14)
    for k in range(28, 36, 2):
        A("v_pk_add_f32 v[%d:%d], v[%d:%d], v[%d:%d]" % (k, k + 1, k, k + 1, k + 8, k + 9))
    A.swapreduce2(28, 32)
    A("v_cvt_pk_bf16_f32 v28, v28, v32\nv_lshlrev_b32 v29, 16, v28\nv_and_b32 v28, 0xffff0000, v28\nv_add_f32 v29, v252, v29\nv_add_f32 v28, v253, v28\nv_cvt_pk_bf16_f32 v28, v29, v28")
    A("ds_write_b16 v248, v28 offset:%d\nds_write_b16_d16_hi v248, v28 offset:%d" % (L_H, L_H + 64))
    A("v_lshlrev_b32 v29, 16, v28\nv_and_b32 v30, 0xffff0000, v28\nv_add_f32 v32, v29, v30\nv_mul_f32 v33, v29, v29\nv_fmac_f32 v33, v30, v30")
    for m in ("quad_perm:[1,0,3,2]", "quad_perm:[2,3,0,1]", "row_ror:8"):
        A("v_add_f32_dpp v32, v32, v32 %s %s\ns_nop 0\nv_add_f32_dpp v33, v33, v33 %s %s" % (m, DPP, m, DPP))
    A("s_mov_b64 exec, s[20:21]\nds_write_b64 v247, v[32:33] offset:%d\ns_mov_b64 exec, -1" % L_ST)
    A("s_cmp_ge_u32 s3, 4\ns_waitcnt lgkmcnt(0)\ns_barrier")
    A.stamp(18)
    A("s_cbranch_scc1 L_f2")
    A.c("waves 0..3: rows 0..7 of the tile = 8 gate columns, rows 8..15 = the same 8 up columns; column parity = batch")
    HB = 56
    A("ds_read_b128 v[32:35], v251 offset:%d\nds_read_b128 v[36:39], v251 offset:%d" % (L_ST, L_ST + 16))
    side = [["v_pk_add_f32 v[32:33], v[32:33], v[34:35]", "v_pk_add_f32 v[36:37], v[36:37], v[38:39]"], ["v_pk_add_f32 v[40:41], v[32:33], v[36:37]"]]
    for m in ("row_ror:2", "row_ror:4", "row_ror:8"):
        side += [["v_add_f32_dpp v40, v40, v40 %s %s" % (m, DPP), "v_add_f32_dpp v41, v41, v41 %s %s" % (m, DPP)]]
    st = [x for x in A.ln_stats_list(40, 41, 42, 43, 44) if x != "s_nop 0"]
    side += [st[0:2], st[2:4], st[4:6], st[6:8], st[8:10], st[10:11], st[11:13], st[13:14], ["s_nop 7"]]
    assert len(side) == 14
    chain(14, lambda kk: A("ds_read_b128 v[%d:%d], v250 offset:%d" % (HB + 4 * kk, HB + 4 * kk + 3, L_H + kk * 64)),
          lambda kk: A(mfma(24, WA + 4 * kk, HB + 4 * kk, kk == 0)),
          lambda kk: A("\n".join(side[kk])))
    A("v_cndmask_b32 v24, v24, v25, s[48:49]\nv_cndmask_b32 v26, v26, v27, s[48:49]\nv_cndmask_b32 v24, v24, v26, s[50:51]")
    A("v_fma_f32 v24, -v244, v42, v24\nv_mul_f32 v24, v24, v43\nv_cvt_pk_bf16_f32 v24, v24, v24\nv_lshlrev_b32 v24, 16, v24")
    A.c("gelu_tanh(g) = g / (1 + exp(-2u)), u = sqrt(2/pi) (g + 0.044715 g^3)")
    A("v_mul_f32 v26, v24, v24\nv_fma_f32 v26, v26, s60, v246\nv_mul_f32 v26, v26, v24\nv_exp_f32 v26, v26\nv_mov_b32 v27, v24\nv_add_f32 v26, 1.0, v26\nv_rcp_f32 v26, v26")
    A("v_permlane32_swap_b32 v27, v25")
    A("v_mul_f32 v26, v26, v24\nv_cvt_pk_bf16_f32 v26, v26, v26\nv_lshlrev_b32 v26, 16, v26\nv_mul_f32 v26, v26, v25\nv_cvt_pk_bf16_f32 v26, v26, v26")
    A("s_mov_b64 exec, 0x00ff00ff\nds_write_b16 v254, v26 offset:%d" % L_ACT)
    A("L_f2:")
    if dmask:
        A("s_mov_b64 exec, s[%d:%d]\ns_waitcnt lgkmcnt(0)\ns_barrier" % (TM[0], TM[0] + 1))
        A.stamp(19)
        A.c("waves 0..6: act . w_down for 64 columns; tile t accumulates in columns 2t, 2t+1 (batches)")
        for t in range(4):
            if t: A("s_mov_b64 exec, s[%d:%d]" % (TM[t], TM[t] + 1))
            A("ds_read_b128 v[%d:%d], v23 offset:%d" % (AB + 4 * t, AB + 4 * t + 3, L_ACT))
        A("s_mov_b64 exec, -1")
        for t in range(4):
            A("s_waitcnt lgkmcnt(%d)" % (3 - t))
            A(mfma(48, DA + 4 * t, AB + 4 * t, t == 0))
        A("s_mov_b64 exec, s[66:67]")
        A.nop(7)
    else:
        A("s_mov_b64 exec, -1\ns_waitcnt lgkmcnt(0)\ns_barrier")
        A.stamp(19)
        A("ds_read_b128 v[24:27], v23 offset:%d\ns_waitcnt lgkmcnt(0)" % L_ACT)
        for t in range(4):
            A(mfma(48 + 4 * t, DA + 4 * t, 24, True))
        A("s_mov_b64 exec, s[66:67]")
        A.nop(5)
        for k in range(4): A("v_cndmask_b32 v%d, v%d, v%d, s[48:49]" % (48 + k, 48 + k, 52 + k))
        for k in range(4): A("v_cndmask_b32 v%d, v%d, v%d, s[48:49]" % (56 + k, 56 + k, 60 + k))
        for k in range(4): A("v_cndmask_b32 v%d, v%d, v%d, s[50:51]" % (48 + k, 48 + k, 56 + k))
    A.tag4(48)
    A("buffer_store_dwordx4 v[48:51], v245, s[52:55], s61 offen sc1")
    if stamps:
        A.stamp(15)
        A("s_cmp_lg_u32 s3, 0\ns_cbranch_scc1 L_end")
        A.stamp_flush([0, 5, 6, 7, 17, 12, 13, 14, 18, 19, 15])
    A("s_endpgm")
    A("L_final:")
    A.c("======== wave 7: 16 columns (tile F>>1) of output row F&1 = h + sum of the 56 down partials")
    A("s_barrier")
    A("ds_read_u16_d16_hi v208, v207 offset:%d" % L_H)
    A.c("h needed every workgroup's results, so every wave has read the epoch: advance it")
    A("s_cmp_lg_u32 s65, 0\ns_cbranch_scc1 L_noE")
    A("s_mov_b64 exec, 1\nbuffer_store_dwordx4 v[%d:%d], v205, s[52:55], 0 offen offset:%d\ns_mov_b64 exec, -1" % (V_TAG, V_TAG + 3, WS_E))
    A("L_noE:")
    A.c("poll at a low rate until partials show up: a read that races with the write-through of a line delays it")
    A("s_barrier")
    A.gather2([[(200, 0), (201, 0)], [(202, 0), (203, 0)]], 24, 20, "s18", first=True, slow=back)
    A("v_pk_add_f32 v[24:25], v[24:25], v[28:29]\nv_pk_add_f32 v[26:27], v[26:27], v[30:31]")
    A("v_pk_fma_f32 v[32:33], v[36:37], v[204:205], v[32:33] op_sel_hi:[1,0,1]\nv_pk_fma_f32 v[34:35], v[38:39], v[204:205], v[34:35] op_sel_hi:[1,0,1]")
    A("v_pk_add_f32 v[24:25], v[24:25], v[32:33]\nv_pk_add_f32 v[26:27], v[26:27], v[34:35]")
    A.swapreduce(24)
    for r in (4, 8):
        A.nop(2)
        A("v_add_f32_dpp v24, v24, v24 row_ror:%d %s" % (r, DPP))
    A("s_waitcnt lgkmcnt(0)")
    A("v_cvt_pk_bf16_f32 v24, v24, v24\nv_lshlrev_b32 v24, 16, v24\nv_add_f32 v24, v208, v24\nv_cvt_pk_bf16_f32 v24, v24, v24")
    A("s_mov_b64 exec, s[16:17]")
    A("buffer_store_short v24, v206, s[40:43], s19 offen")
    if stamps:
        A.stamp(20)
        A("s_waitcnt vmcnt(0)")
        A.stamp(16)
        A.stamp_flush([20, 16])
    A("L_end:\ns_endpgm")
    A.L.append('.section .rodata,"a"\n.p2align 6\n.amdhsa_kernel %s_kernel' % NAME)
    A.L.append("  .amdhsa_next_free_vgpr 256\n  .amdhsa_next_free_sgpr 100\n  .amdhsa_accum_offset 256")
    A.L.append("  .amdhsa_group_segment_fixed_size 0\n  .amdhsa_kernarg_size 96\n  .amdhsa_user_sgpr_count 2\n  .amdhsa_user_sgpr_kernarg_segment_ptr 1\n  .amdhsa_system_sgpr_workgroup_id_x 1\n  .amdhsa_float_denorm_mode_32 3\n.end_amdhsa_kernel")
    return "\n".join(A.L) + "\n"

if __name__ == "__main__":
    out = sys.argv[1]
    kw = {}
    for a in sys.argv[2:]:
        k, v = a.split("="); kw[k] = int(v)
    open(out, "w").write(build(**kw))
```
